```python
import torch

def _softmax(x, axis=-1):
    return torch.softmax(x, dim=axis)
def _gelu(x):
    return torch.nn.functional.gelu(x, approximate="tanh")
def _silu(x):
    return torch.nn.functional.silu(x)
def _sigmoid(x):
    return torch.sigmoid(x)
def _layernorm(x, axis=-1, eps=1e-5):
    m = x.mean(dim=axis, keepdim=True)
    v = x.var(dim=axis, keepdim=True, unbiased=False)
    return (x - m) / torch.sqrt(v + eps)
def _scatter_add(tgt, idx, src, axis=0):
    return tgt.clone().index_add_(axis, idx, src)
def _segment_sum(src, seg, n):
    out = torch.zeros((n,) + src.shape[1:], dtype=src.dtype)
    return out.index_add_(0, seg, src)
def _pad(x, pw):
    flat = tuple(v for pair in reversed(pw) for v in pair)
    return torch.nn.functional.pad(x, flat)

kernel_name = 'parallel_sum__softmax_full_mha__glu_gated_reglu__prompt'

def setup_inputs():

    _w = (lambda a: (lambda t: t.to(torch.bfloat16) if t.is_floating_point() else t)(torch.as_tensor(a)))
    def _A_setup():
        B, S, D = 1, 2048, 448
        return {
            "x": _w((lambda *s: torch.randn(*s, dtype=torch.bfloat16) * 0.05)(B, S, D)),
            "wqkv": _w((lambda *s: torch.randn(*s, dtype=torch.bfloat16) * 0.05)(D, 3 * D)),
            "wo": _w((lambda *s: torch.randn(*s, dtype=torch.bfloat16) * 0.05)(D, D)),
        }
    _A_in = _A_setup()

    def _B_setup():
        B, S, D, F = 1, 2048, 448, 1792
        return {
            "x": _w((lambda *s: torch.randn(*s, dtype=torch.bfloat16) * 0.05)(B, S, D)),
            "W_gate": _w((lambda *s: torch.randn(*s, dtype=torch.bfloat16) * 0.4)(D, F) * (2.0 / D) ** 0.5),
            "W_up": _w((lambda *s: torch.randn(*s, dtype=torch.bfloat16) * 0.4)(D, F) * (2.0 / D) ** 0.5),
            "W_down": _w((lambda *s: torch.randn(*s, dtype=torch.bfloat16) * 0.4)(F, D) * (1.0 / F) ** 0.5),
        }
    _B_in = _B_setup()

    return {
        "A_x": _A_in["x"],
        "A_wqkv": _A_in["wqkv"],
        "A_wo": _A_in["wo"],
        "B_x": _B_in["x"],
        "B_W_gate": _B_in["W_gate"],
        "B_W_up": _B_in["W_up"],
        "B_W_down": _B_in["W_down"],
    }

def reference(A_x, A_wqkv, A_wo, B_x, B_W_gate, B_W_up, B_W_down):
    def _A_ref(x, wqkv, wo):
        B, S, D = x.shape
        H = 16; Dh = D // H
        qkv = (lambda x, *d: x.permute(*d))((x @ wqkv).reshape(B, S, 3, H, Dh), 2, 0, 3, 1, 4)
        q, k, v = qkv[0], qkv[1], qkv[2]
        scale = Dh ** -0.5
        scores = torch.einsum("bhqd,bhkd->bhqk", q, k) * scale
        p = _softmax(scores, axis=-1)
        o = torch.einsum("bhqk,bhkd->bhqd", p, v)
        return (lambda x, *d: x.permute(*d))(o, 0, 2, 1, 3).reshape(B, S, D) @ wo

    def _B_ref(x, W_gate, W_up, W_down):
        gate = torch.einsum("bsd,df->bsf", x, W_gate)
        up = torch.einsum("bsd,df->bsf", x, W_up)
        gate = gate * (lambda x, dt: x.to(dt))(gate > 0, gate.dtype)
        h = gate * up
        return torch.einsum("bsf,fd->bsd", h, W_down)

    x = A_x
    xn = _layernorm(x, axis=-1)
    return x + _A_ref(xn, A_wqkv, A_wo) + _B_ref(xn, B_W_gate, B_W_up, B_W_down)
```

```python
class Asm:
    def __init__(self):
        self.L = []
        self.vmq = []
        self.lgq = []
    def __call__(self, s):
        for ln in s.split("\n"):
            ln = ln.strip()
            if ln:
                self.L.append(("" if ln.endswith(":") else "    ") + ln)
    def raw(self, s):
        self.L.append(s)
    def vm(self, s, tag=None):
        self(s); self.vmq.append(tag)
    def lg(self, s, tag=None):
        self(s); self.lgq.append(tag)
    def _cnt(self, q, tag):
        idx = [i for i, t in enumerate(q) if t == tag]
        if not idx:
            return None
        return len(q) - 1 - idx[-1]
    def wait(self, vm=None, lg=None):
        parts = []
        if vm is not None:
            n = 0 if vm == "all" else self._cnt(self.vmq, vm)
            if n is not None and (self.vmq or vm == "all"):
                assert n <= 63, n
                parts.append(f"vmcnt({n})")
                self.vmq = self.vmq[len(self.vmq) - n:] if n else []
        if lg is not None:
            n = 0 if lg == "all" else self._cnt(self.lgq, lg)
            if n is not None and (self.lgq or lg == "all"):
                assert n <= 15, n
                parts.append(f"lgkmcnt({n})")
                self.lgq = self.lgq[len(self.lgq) - n:] if n else []
        if parts:
            self("s_waitcnt " + " ".join(parts))
    def text(self):
        return "\n".join(self.L) + "\n"

def vr(b, n=1):
    return f"v{b}" if n == 1 else f"v[{b}:{b+n-1}]"
def ar(b, n=1):
    return f"a{b}" if n == 1 else f"a[{b}:{b+n-1}]"
def sr(b, n=1):
    return f"s{b}" if n == 1 else f"s[{b}:{b+n-1}]"

def srd(a, d, base, nbytes):
    a(f"s_mov_b32 s{d}, s{base}")
    a(f"s_mov_b32 s{d+1}, s{base+1}")
    a(f"s_mov_b32 s{d+2}, {nbytes}")
    a(f"s_mov_b32 s{d+3}, 0x00020000")

def kernel_head(name):
    return f""".globl {name}
.p2align 8
.type {name},@function
{name}:
"""
def kernel_desc(name, nvgpr, accum, nsgpr=96):
    return f""".p2align 6
.amdhsa_kernel {name}
  .amdhsa_next_free_vgpr {nvgpr}
  .amdhsa_next_free_sgpr {nsgpr}
  .amdhsa_accum_offset {accum}
  .amdhsa_group_segment_fixed_size 0
  .amdhsa_kernarg_size 80
  .amdhsa_user_sgpr_count 2
  .amdhsa_user_sgpr_kernarg_segment_ptr 1
  .amdhsa_system_sgpr_workgroup_id_x 1
.end_amdhsa_kernel
"""
```

```python
from asmlib import *
import math
WS_Q, WS_K, WS_V, WS_A = 0, 2<<20, 4<<20, 6<<20
WS_BYTES = (6<<20) + 64*144*1024
QSCALE = math.log2(math.e) / math.sqrt(28.0)
import struct
def f2u(x): return struct.unpack("<I", struct.pack("<f", x))[0]

for d, m in ((14, 4682), (12, 5462)):
    assert all((c*m) >> 16 == c//d for c in range(448))

SLOT = 41216
OQ, OG, OU = 0, 12288, 12288 + 14336 + 128
K1_LDS = 3*SLOT

def code_prefetch(a, start_label, end_label, sreg, vtmp, vdst, nthreads=256):
    pass

def gen_k1(name="k1_kernel", pf=None):
    a = Asm()
    X0 = 16; AF = 128; T = 240
    vDF = 1; vDQ = 8; vTF = 11; vTQ = 13; vST = 15
    vR, vNB = 240, 241
    WR = 48; RING = 10
    a("s_cmp_ge_u32 s2, 256")
    a(f"s_cbranch_scc1 {name}_end")
    a("s_load_dwordx4 s[4:7], s[0:1], 0")
    a("s_load_dwordx4 s[8:11], s[0:1], 32")
    a("s_load_dwordx2 s[12:13], s[0:1], 72")
    a("v_lshrrev_b32 v15, 6, v0")
    a("v_and_b32 v0, 63, v0")
    a("v_readfirstlane_b32 s32, v15")
    a("s_and_b32 s35, s2, 7")
    a("s_lshr_b32 s36, s2, 3")
    a("s_and_b32 s33, s35, 3")
    a("s_lshl_b32 s33, s33, 2")
    a("s_and_b32 s37, s36, 3")
    a("s_add_u32 s33, s33, s37")
    a("s_lshr_b32 s34, s35, 2")
    a("s_lshl_b32 s34, s34, 3")
    a("s_lshr_b32 s37, s36, 2")
    a("s_add_u32 s34, s34, s37")
    a("s_lshl_b32 s40, s33, 2")
    a("s_add_u32 s40, s40, s32")
    a("v_and_b32 v242, 31, v0")
    a("v_lshrrev_b32 v243, 5, v0")
    a("s_lshl_b32 s35, s40, 5")
    a("v_add_u32 v242, s35, v242")
    a("v_mul_u32_u24 v242, 896, v242")
    a("v_lshl_add_u32 v242, v243, 4, v242")
    a("s_waitcnt lgkmcnt(0)")
    srd(a, 16, 4, 2048*448*2)
    for s in range(28):
        a.vm(f"buffer_load_dwordx4 {vr(X0+4*s,4)}, v242, s[16:19], 0 offen offset:{s*32}", ("x", s))
    srd(a, 20, 6, 448*1344*2)
    a("s_cmp_ge_u32 s32, 2")
    a("s_cselect_b32 s24, s10, s8")
    a("s_cselect_b32 s25, s11, s9")
    a(f"s_mov_b32 s26, {448*1792*2}")
    a("s_mov_b32 s27, 0x00020000")
    a(f"s_cselect_b32 s39, {OU-OG}, 0")
    a(f"s_add_u32 s39, s39, {OG}")
    srd(a, 28, 12, WS_BYTES)
    a("s_mul_i32 s35, s34, 56")
    a("s_and_b32 s41, s35, 8")
    a("s_and_b32 s35, s35, -16")
    for j in range(3):
        a(f"v_add_u32 v244, {64*j}, v0")
        a("v_mul_u32_u24 v245, 5462, v244")
        a("v_lshrrev_b32 v245, 16, v245")
        a("v_mul_u32_u24 v246, 12, v245")
        a("v_sub_u32 v246, v244, v246")
        a("v_lshrrev_b32 v247, 2, v246")
        a("v_and_b32 v246, 3, v246")
        a("v_mul_u32_u24 v245, 2688, v245")
        a("v_mul_u32_u24 v247, 896, v247")
        a("v_lshl_add_u32 v245, v246, 4, v245")
        a(f"v_add3_u32 {vr(vDQ+j)}, v245, v247, s35")
        if j: a(f"v_subrev_u32 {vr(vDQ+j)}, {1024*j}, {vr(vDQ+j)}")
    a(f"s_mul_i32 s36, s32, {16*2688}")
    a(f"s_mul_i32 s38, s32, {16*192}")
    a("s_mul_i32 s35, s34, 224")
    for j in range(7):
        a(f"v_add_u32 v244, {64*j}, v0")
        a("v_mul_u32_u24 v245, 4682, v244")
        a("v_lshrrev_b32 v245, 16, v245")
        a("v_mul_u32_u24 v246, 14, v245")
        a("v_sub_u32 v246, v244, v246")
        a("v_mul_u32_u24 v245, 3584, v245")
        a("v_lshl_add_u32 v245, v246, 4, v245")
        a(f"v_add_u32 {vr(vDF+j)}, s35, v245")
        if j % 4: a(f"v_subrev_u32 {vr(vDF+j)}, {1024*(j%4)}, {vr(vDF+j)}")
    a("s_and_b32 s35, s32, 1")
    a(f"s_mul_i32 s37, s35, {32*3584}")
    a(f"s_mul_i32 s35, s35, {32*224}")
    a("s_add_u32 s39, s39, s35")
    def dma_ops(g):
        sl = (g % 3) * SLOT
        ops = []
        ops.append((f"s_add_u32 m0, s38, {sl}", "s"))
        ops.append((f"s_add_u32 s42, s36, {g*64*2688}", "s"))
        for j in range(3):
            ops.append((f"buffer_load_dwordx4 {vr(vDQ+j)}, s[20:23], s42 offen offset:{1024*j} lds", "vm", ("w", g)))
        ops.append((f"s_add_u32 m0, s39, {sl}", "s"))
        ops.append((f"s_add_u32 s43, s37, {g*64*3584}", "s"))
        for j in range(4):
            ops.append((f"buffer_load_dwordx4 {vr(vDF+j)}, s[24:27], s43 offen offset:{1024*j} lds", "vm", ("w", g)))
        ops.append((f"s_add_u32 m0, s39, {sl+4096}", "s"))
        ops.append((f"s_nop 0", "s"))
        for j in range(4, 7):
            ops.append((f"buffer_load_dwordx4 {vr(vDF+j)}, s[24:27], s43 offen offset:{1024*(j-4)} lds", "vm", ("w", g)))
        return ops
    def emit(op):
        if op[1] == "vm": a.vm(op[0], op[2])
        else: a(op[0])
    for g in range(3):
        for op in dma_ops(g): emit(op)
    if pf: pf(a, 244, 44)
    a("v_lshrrev_b32 v244, 2, v0")
    a("v_and_b32 v244, 3, v244")
    a("v_lshl_add_u32 v244, v243, 3, v244")
    a("v_and_b32 v245, 3, v0")
    a("v_bfe_u32 v246, v0, 4, 1")
    a("v_mul_u32_u24 v247, 224, v244")
    a("v_lshl_add_u32 v247, v245, 3, v247")
    a(f"v_mul_u32_u24 v248, {OU-OG}, v246")
    a(f"v_add_u32 v247, {OG}, v247")
    a(f"v_add_u32 {vr(vTF)}, v247, v248")
    a(f"v_add_u32 {vr(vTF+1)}, {2*SLOT}, {vr(vTF)}")
    a("v_mul_u32_u24 v247, 192, v244")
    a("v_lshl_add_u32 v247, v245, 3, v247")
    a("v_lshl_add_u32 v247, v246, 5, v247")
    a(f"v_add_u32 {vr(vTQ)}, s41, v247")
    a(f"v_add_u32 {vr(vTQ+1)}, {2*SLOT}, {vr(vTQ)}")
    a(f"v_lshlrev_b32 {vr(vST)}, 4, v0")
    a("s_lshl_b32 s44, s34, 17")
    a("s_lshl_b32 s35, s40, 11")
    a("s_add_u32 s44, s44, s35")
    a(f"s_add_u32 s45, s44, {WS_K}")
    a(f"s_add_u32 s46, s44, {WS_V}")
    a(f"s_mul_i32 s47, s40, {144*1024}")
    a(f"s_mul_i32 s35, s34, {7*1024}")
    a("s_add_u32 s47, s47, s35")
    a(f"s_add_u32 s47, s47, {WS_A}")
    a("s_add_u32 s48, s47, 4096")
    a("s_mov_b32 s50, 0")
    a("s_mov_b32 s51, -1")
    a("s_mov_b32 s52, 0x0fffffff")
    a("s_mov_b32 s53, 0x0fffffff")
    a("s_mov_b32 s54, 0xffff0000")
    a(f"s_mov_b32 s55, {f2u(QSCALE):#x}")
    for i in range(4): a(f"v_mov_b32 v{244+i}, 0")
    a("v_mov_b32 v248, 0x3f803f80")
    for s in range(28):
        if s % 2 == 0: a.wait(vm=("x", s+1))
        for i in range(4):
            r = X0 + 4*s + i
            a(f"v_dot2c_f32_bf16 v{244+(i&1)}, v{r}, v248")
            a(f"v_dot2c_f32_bf16 v{246+(i&1)}, v{r}, v{r}")
    a("s_nop 2")
    a("v_add_f32 v244, v244, v245")
    a("v_add_f32 v246, v246, v247")
    a("v_mov_b32 v245, v244")
    a("v_mov_b32 v247, v246")
    a("s_nop 1")
    a("v_permlane32_swap_b32 v245, v244")
    a("v_permlane32_swap_b32 v247, v246")
    a("s_nop 1")
    a("v_add_f32 v244, v244, v245")
    a("v_add_f32 v246, v246, v247")
    a(f"v_mul_f32 v244, {f2u(1/448):#x}, v244")
    a(f"v_mul_f32 v246, {f2u(1/448):#x}, v246")
    a("v_fma_f32 v246, -v244, v244, v246")
    a("v_max_f32 v246, 0, v246")
    a(f"v_add_f32 v246, {f2u(1e-5):#x}, v246")
    a(f"v_rsq_f32 {vr(vR)}, v246")
    a("s_nop 0")
    a(f"v_mul_f32 v244, v244, {vr(vR)}")
    a(f"v_sub_f32 {vr(vNB)}, 0, v244")
    def ln_ops(s):
        ops = []
        for i in range(4):
            r = X0 + 4*s + i
            t = 242 + 2*(i & 1)
            ops += [f"v_lshlrev_b32 v{t}, 16, v{r}", f"v_and_b32 v{t+1}, s54, v{r}",
                    f"v_fma_f32 v{t}, v{t}, {vr(vR)}, {vr(vNB)}", f"v_fma_f32 v{t+1}, v{t+1}, {vr(vR)}, {vr(vNB)}",
                    f"v_cvt_pk_bf16_f32 v{r}, v{t}, v{t+1}"]
        return ops
    NPRE = 2
    for s in range(NPRE):
        for o in ln_ops(s): a(o)
    order = []
    for g in range(7):
        if g < 6:
            for sp in range(4):
                for t in range(10): order.append((g, sp, t))
        else:
            for t in range(10):
                for sp in range(4): order.append((g, sp, t))
    NM = len(order)
    def frag_reads(f):
        g, sp, t = order[f]
        sl = g % 3
        base = (sl % 2) * SLOT if sl < 2 else 0
        hi = 1 if sl == 2 else 0
        reg = WR + 4*(f % RING)
        out = []
        for rd in range(2):
            if t < 3:
                off = base + (16*sp + 4*rd)*192 + t*64
                out.append(f"ds_read_b64_tr_b16 {ar(reg+2*rd,2)}, {vr(vTQ+hi)} offset:{off}")
            else:
                off = base + (16*sp + 4*rd)*224 + (t-3)*32
                out.append(f"ds_read_b64_tr_b16 {ar(reg+2*rd,2)}, {vr(vTF+hi)} offset:{off}")
        return out
    def mfma(f):
        g, sp, t = order[f]
        s = 4*g + sp
        w = ar(WR + 4*(f % RING), 4); x = vr(X0 + 4*s, 4)
        acc = ar(16*t, 16) if t < 3 else vr(AF + 16*(t-3), 16)
        c = "0" if s == 0 else acc
        if t == 2: return f"v_mfma_f32_32x32x16_bf16 {acc}, {x}, {w}, {c}"
        return f"v_mfma_f32_32x32x16_bf16 {acc}, {w}, {x}, {c}"
    E = X0
    def epi_q():
        o = []
        for r in range(16): o.append((f"v_accvgpr_read_b32 v{E+r}, a{r}", "v"))
        for r in range(16): o.append((f"v_mul_f32 v{E+r}, s55, v{E+r}", "v"))
        for r in range(12, 16): o.append((f"v_cndmask_b32 v{E+r}, v{E+r}, 0, s[50:51]", "v"))
        return o
    def epi_k():
        o = []
        K = E + 16
        for r in range(16): o.append((f"v_accvgpr_read_b32 v{K+r}, a{16+r}", "v"))
        for r in range(12, 16): o.append((f"v_cndmask_b32 v{K+r}, v{K+r}, 1.0, s[50:51]", "v"))
        o.append((f"v_mul_f32 v{E+32}, v{E}, v{K}", "v"))
        o.append((f"v_mul_f32 v{E+33}, v{E+1}, v{K+1}", "v"))
        for r in range(2, 16): o.append((f"v_fmac_f32 v{E+32+(r&1)}, v{E+r}, v{K+r}", "v"))
        o.append((f"v_add_f32 v{E+32}, v{E+32}, v{E+33}", "v"))
        o.append((f"v_mov_b32 v{E+33}, v{E+32}", "v"))
        for r in range(8): o.append((f"v_cvt_pk_bf16_f32 v{E+36+r}, v{K+2*r}, v{K+2*r+1}", "v"))
        o.append((f"v_permlane32_swap_b32 v{E+33}, v{E+32}", "v"))
        o.append((f"buffer_store_dwordx4 {vr(E+36,4)}, {vr(vST)}, s[28:31], s45 offen", "vm", "st"))
        o.append((f"buffer_store_dwordx4 {vr(E+40,4)}, {vr(vST)}, s[28:31], s45 offen offset:1024", "vm", "st"))
        o.append((f"v_add_f32 v{E+32}, v{E+32}, v{E+33}", "v"))
        o.append((f"v_cndmask_b32 v{E+12}, v{E+12}, -v{E+32}, s[50:51]", "v"))
        for r in range(8): o.append((f"v_cvt_pk_bf16_f32 v{E+44+r}, v{E+2*r}, v{E+2*r+1}", "v"))
        o.append((f"buffer_store_dwordx4 {vr(E+44,4)}, {vr(vST)}, s[28:31], s44 offen", "vm", "st"))
        o.append((f"buffer_store_dwordx4 {vr(E+48,4)}, {vr(vST)}, s[28:31], s44 offen offset:1024", "vm", "st"))
        return o
    def epi_v():
        o = []
        V = E + 52
        o.append((f"v_and_b32 v{V+24}, 31, v0", "v"))
        o.append((f"v_cmp_eq_u32 vcc, 28, v{V+24}", "v"))
        for r in range(16): o.append((f"v_accvgpr_read_b32 v{V+r}, a{32+r}", "v"))
        o.append((f"v_cndmask_b32 v{V+24}, 0, v248, vcc", "v"))
        for r in range(8): o.append((f"v_cvt_pk_bf16_f32 v{V+16+r}, v{V+2*r}, v{V+2*r+1}", "v"))
        for r in range(8): o.append((f"v_cndmask_b32 v{V+16+r}, v{V+24}, v{V+16+r}, s[52:53]", "v"))
        o.append((f"buffer_store_dwordx4 {vr(V+16,4)}, {vr(vST)}, s[28:31], s46 offen", "vm", "st"))
        o.append((f"buffer_store_dwordx4 {vr(V+20,4)}, {vr(vST)}, s[28:31], s46 offen offset:1024", "vm", "st"))
        return o
    def epi_f(t):
        o = []
        b = AF + 16*t
        for r in range(8): o.append((f"v_max_f32 v{b+r}, 0, v{b+r}", "v"))
        for r in range(8): o.append((f"v_mul_f32 v{b+r}, v{b+r}, v{b+8+r}", "v"))
        for r in range(4): o.append((f"v_cvt_pk_bf16_f32 v{b+8+r}, v{b+2*r}, v{b+2*r+1}", "v"))
        so = "s47" if t < 4 else "s48"
        o.append((f"buffer_store_dwordx4 {vr(b+8,4)}, {vr(vST)}, s[28:31], {so} offen offset:{1024*(t%4)}", "vm", "st"))
        return o
    epis = [epi_q(), epi_k(), epi_v()] + [epi_f(t) for t in range(7)]
    a.wait(vm=("w", 0))
    a("s_barrier")
    for f in range(8):
        for r in frag_reads(f): a.lg(r, ("f", f))
    rp = 8
    lnq = []
    first_use = {}
    for f, (g, sp, t) in enumerate(order): first_use.setdefault(4*g+sp, f)
    for s in range(NPRE, 28):
        dl = first_use[s] if s < 24 else 240
        for o in ln_ops(s): lnq.append((dl, o))
    dmaq = []
    epiq = []
    last_f = {}
    for f, (g, sp, t) in enumerate(order): last_f[t] = f
    tile_at = {f: t for t, f in last_f.items()}
    for f in range(NM):
        g = f // 40; i = f % 40
        while lnq and lnq[0][0] <= f + 1:
            a(lnq.pop(0)[1])
        used = 0
        if f % 4 == 0:
            a.wait(lg=("f", min(f+3, NM-1)));
        a(mfma(f))
        if (f - 3) in tile_at: epiq += epis[tile_at[f-3]]
        if (f+1) % 4 == 0: used += 1
        if i == 35 and g < 6:
            a.wait(vm=("w", g+1), lg="all")
            a("s_barrier"); used += 2
            if g + 3 < 7: dmaq = dma_ops(g+3)
        lim = min(NM, (g+1)*40 if (i < 35 or g == 6) else (g+2)*40)
        n = 0
        while rp < lim and rp <= f + 8 and n < 2:
            for r in frag_reads(rp): a.lg(r, ("f", rp))
            rp += 1; n += 1; used += 2
        if dmaq and n < 2 and i % 3 == 0:
            while dmaq and dmaq[0][1] == "s":
                emit(dmaq.pop(0)); used += 1
            emit(dmaq.pop(0)); used += 4
        while lnq and used < 6 and (lnq[0][0] <= f + 22 or g >= 4):
            a(lnq.pop(0)[1]); used += 1
        while epiq and used < 6:
            op = epiq.pop(0); emit(op); used += 4 if op[1] == "vm" else 1
    assert not lnq and not dmaq
    done = set(tile_at[f] for f in tile_at if f + 3 < NM)
    for op in epiq: emit(op)
    a("s_nop 7"); a("s_nop 3")
    for t in range(10):
        if t not in done:
            for op in epis[t]: emit(op)
    a(f"{name}_end:")
    a("s_endpgm")
    return kernel_head(name) + a.text(), kernel_desc(name, 256 + 48 + 4*RING, 256), f"; @launch kernel={name} grid=(256,1,1) block=(256,1,1) lds={K1_LDS}"
```

```python
from asmlib import *
from k1 import WS_Q, WS_K, WS_V, WS_A, WS_BYTES, f2u
K2_LDS = 12*4096
def gen_k2(name="k2_kernel", pf=None):
    a = Asm()
    O = 16; Q = 80; S = 112; P = 144; KV = 152
    T = 216
    vL = 1
    a("s_cmp_ge_u32 s2, 256")
    a(f"s_cbranch_scc1 {name}_end")
    a("s_load_dwordx2 s[4:5], s[0:1], 72")
    a("v_lshrrev_b32 v2, 6, v0")
    a("v_and_b32 v0, 63, v0")
    a("v_readfirstlane_b32 s32, v2")
    a(f"v_lshlrev_b32 {vr(vL)}, 4, v0")
    a("s_and_b32 s33, s2, 7")
    a("s_lshl_b32 s33, s33, 1")
    a("s_bfe_u32 s35, s2, 0x10003")
    a("s_add_u32 s33, s33, s35")
    a("s_lshr_b32 s34, s2, 4")
    a("s_lshl_b32 s36, s33, 17")
    a("s_lshl_b32 s35, s32, 15")
    a("s_add_u32 s35, s35, s36")
    a("s_waitcnt lgkmcnt(0)")
    srd(a, 8, 4, WS_BYTES)
    for d, base in ((12, WS_K), (16, WS_V)):
        a(f"s_add_u32 s37, s35, {base}")
        a(f"s_add_u32 s{d}, s4, s37")
        a(f"s_addc_u32 s{d+1}, s5, 0")
        a(f"s_mov_b32 s{d+2}, 32768")
        a(f"s_mov_b32 s{d+3}, 0x00020000")
    def kload(slot, j, so): return f"buffer_load_dwordx4 {vr(KV+16*slot+4*j,4)}, {vr(vL)}, s[12:15], {so} offen offset:{1024*j}"
    def vload(slot, j, so): return f"buffer_load_dwordx4 {vr(KV+16*slot+8+4*j,4)}, {vr(vL)}, s[16:19], {so} offen offset:{1024*j}"
    a.vm(kload(0, 0, "0"), "k0"); a.vm(kload(0, 1, "0"), "k0")
    for j in range(4):
        a(f"s_add_u32 s37, s32, {j}")
        a("s_and_b32 s37, s37, 3")
        a("s_lshl_b32 s38, s34, 2")
        a("s_add_u32 s37, s37, s38")
        a("s_lshl_b32 s37, s37, 11")
        a("s_add_u32 s37, s37, s36")
        for ks in range(2):
            a.vm(f"buffer_load_dwordx4 {vr(Q+8*j+4*ks,4)}, {vr(vL)}, s[8:11], s37 offen offset:{1024*ks}", "q")
    a.vm(vload(0, 0, "0"), "v0"); a.vm(vload(0, 1, "0"), "v0")
    for t in (1, 2):
        a(f"s_mov_b32 s37, {2048*t}")
        for j in range(2): a.vm(kload(t, j, "s37"), "p")
        for j in range(2): a.vm(vload(t, j, "s37"), "p")
    if pf: pf(a, T, 44)
    for r in range(64): a(f"v_mov_b32 v{O+r}, 0")
    for r in range(4): a(f"v_mov_b32 v{P+4+r}, 0")
    for r in range(4): a(f"v_mov_b32 v{KV+48+12+r}, 0")
    a(f"s_mov_b32 s40, {3*2048}")
    a("s_mov_b32 s41, 4")
    a.wait(vm="v0")
    def qk(n, ks):
        kt, qt = (n//4) % 4, n % 4
        s = vr(S+16*(n&1), 16)
        return f"v_mfma_f32_32x32x16_bf16 {s}, {vr(KV+16*kt+4*ks,4)}, {vr(Q+8*qt+4*ks,4)}, {'0' if ks==0 else s}"
    def pv(n, ks):
        kt, qt = (n//4) % 4, n % 4
        o = vr(O+16*qt, 16)
        return f"v_mfma_f32_32x32x16_bf16 {o}, {vr(KV+16*kt+8+4*ks,4)}, {vr(P+4*ks,4)}, {o}"
    a(qk(0, 0)); a(qk(0, 1))
    a("s_nop 7"); a("s_nop 3")
    a.raw(".p2align 3")
    a(f"{name}_loop:")
    for n in range(16):
        kt, qt = n//4, n % 4
        sb = S + 16*(n & 1)
        ms = [qk(n+1, 0), qk(n+1, 1), pv(n-1, 1), pv(n, 0)]
        ld = [kload((kt+3) % 4, 0, "s40"), kload((kt+3) % 4, 1, "s40"), vload((kt+3) % 4, 0, "s40"), vload((kt+3) % 4, 1, "s40")][qt]
        if qt == 3: a("s_waitcnt vmcnt(7)")
        for m in range(4):
            a(ms[m])
            if m == 0: a(ld)
            if m == 1 and qt == 3: a("s_add_u32 s40, s40, 2048")
            if m == 2 and n == 15:
                a("s_sub_u32 s41, s41, 1"); a("s_cmp_lg_u32 s41, 0")
            for j in range(4): a(f"v_exp_f32 v{sb+4*m+j}, v{sb+4*m+j}")
            for j in range(2): a(f"v_cvt_pk_bf16_f32 v{P+2*m+j}, v{sb+4*m+2*j}, v{sb+4*m+2*j+1}")
    a(f"s_cbranch_scc1 {name}_loop")
    a("s_nop 1")
    a(pv(15, 1))
    for j in range(1, 4):
        a(f"s_add_u32 s37, s32, {j}")
        a("s_and_b32 s37, s37, 3")
        a(f"s_mul_i32 s37, s37, {3*4096}")
        a(f"v_add_u32 v{T+j}, s37, {vr(vL)}")
    a(f"s_mul_i32 s37, s32, {3*4096}")
    a(f"v_add_u32 v{T}, s37, {vr(vL)}")
    for j in range(1, 4):
        for q in range(4):
            a(f"ds_write_b128 v{T+j}, {vr(O+16*j+4*q,4)} offset:{(j-1)*4096+q*1024}")
    a("s_lshl_b32 s38, s34, 2")
    a("s_add_u32 s38, s38, s32")
    a(f"s_mul_i32 s38, s38, {144*1024}")
    a("s_lshl_b32 s37, s33, 11")
    a("s_add_u32 s38, s38, s37")
    a(f"s_add_u32 s38, s38, {WS_A + 112*1024}")
    a("s_mov_b32 s50, 0"); a("s_mov_b32 s51, -1")
    a("s_waitcnt lgkmcnt(0)")
    a("s_barrier")
    for j in range(3):
        for q in range(4):
            a.lg(f"ds_read_b128 {vr(O+16+16*j+4*q,4)}, v{T} offset:{j*4096+q*1024}", j)
    for j in range(3):
        a.wait(lg=j)
        for r in range(16): a(f"v_add_f32 v{O+r}, v{O+r}, v{O+16+16*j+r}")
    a(f"v_mov_b32 v{T}, v{O+12}")
    a(f"v_mov_b32 v{T+1}, v{O+12}")
    a(f"s_mov_b32 s42, {f2u(2.0**-64):#x}")
    a(f"s_mov_b32 s43, {f2u(2.0**64):#x}")
    a(f"v_permlane32_swap_b32 v{T}, v{T+1}")
    a("s_nop 1")
    a(f"v_cmp_le_f32 vcc, s42, v{T+1}")
    a(f"v_cmp_ge_f32 s[44:45], s43, v{T+1}")
    a("s_nop 3")
    a("s_and_b64 vcc, vcc, s[44:45]")
    a("s_cmp_eq_u64 vcc, -1")
    a(f"s_cbranch_scc0 {name}_slow")
    a(f"{name}_fin:")
    a(f"v_rcp_f32 v{T}, v{T+1}")
    a("s_nop 0")
    for r in range(16): a(f"v_mul_f32 v{O+r}, v{O+r}, v{T}")
    for r in range(8): a(f"v_cvt_pk_bf16_f32 v{P+r}, v{O+2*r}, v{O+2*r+1}")
    a(f"v_cndmask_b32 v{P+6}, v{P+6}, 0, s[50:51]")
    a(f"v_cndmask_b32 v{P+7}, v{P+7}, 0, s[50:51]")
    a(f"buffer_store_dwordx4 {vr(P,4)}, {vr(vL)}, s[8:11], s38 offen")
    a(f"buffer_store_dwordx4 {vr(P+4,4)}, {vr(vL)}, s[8:11], s38 offen offset:1024")
    a(f"{name}_end:")
    a("s_endpgm")
    a(f"{name}_slow:")
    a("s_waitcnt vmcnt(0)")
    a(f"s_add_u32 s46, s36, {WS_K}")
    a("s_mov_b32 s41, 64")
    a(f"v_mov_b32 v{T+2}, 0xff800000")
    a(f"{name}_slow1:")
    for j in range(2): a(f"buffer_load_dwordx4 {vr(KV+4*j,4)}, {vr(vL)}, s[8:11], s46 offen offset:{1024*j}")
    a("s_waitcnt vmcnt(0)")
    a(qk(0, 0)); a(qk(0, 1))
    a("s_nop 7"); a("s_nop 7")
    for r in range(8): a(f"v_max3_f32 v{T+2}, v{S+2*r}, v{S+2*r+1}, v{T+2}")
    a("s_add_u32 s46, s46, 2048")
    a("s_sub_u32 s41, s41, 1"); a("s_cmp_lg_u32 s41, 0")
    a(f"s_cbranch_scc1 {name}_slow1")
    a(f"v_mov_b32 v{T+3}, v{T+2}")
    a("s_nop 1")
    a(f"v_permlane32_swap_b32 v{T+3}, v{T+2}")
    a("s_nop 1")
    a(f"v_max_f32 v{T+2}, v{T+2}, v{T+3}")
    for r in range(16): a(f"v_mov_b32 v{O+r}, 0")
    a(f"s_add_u32 s46, s36, {WS_K}")
    a(f"s_add_u32 s47, s36, {WS_V}")
    a("s_mov_b32 s41, 64")
    a(f"{name}_slow2:")
    for j in range(2): a(f"buffer_load_dwordx4 {vr(KV+4*j,4)}, {vr(vL)}, s[8:11], s46 offen offset:{1024*j}")
    for j in range(2): a(f"buffer_load_dwordx4 {vr(KV+8+4*j,4)}, {vr(vL)}, s[8:11], s47 offen offset:{1024*j}")
    a("s_waitcnt vmcnt(0)")
    a(qk(0, 0)); a(qk(0, 1))
    a("s_nop 7"); a("s_nop 7")
    for r in range(16): a(f"v_sub_f32 v{S+r}, v{S+r}, v{T+2}")
    for r in range(16): a(f"v_exp_f32 v{S+r}, v{S+r}")
    a("s_nop 0")
    for r in range(8): a(f"v_cvt_pk_bf16_f32 v{P+r}, v{S+2*r}, v{S+2*r+1}")
    a("s_nop 1")
    a(pv(0, 0)); a(pv(0, 1))
    a("s_add_u32 s46, s46, 2048")
    a("s_add_u32 s47, s47, 2048")
    a("s_sub_u32 s41, s41, 1"); a("s_cmp_lg_u32 s41, 0")
    a(f"s_cbranch_scc1 {name}_slow2")
    a("s_nop 7"); a("s_nop 7")
    a(f"v_mov_b32 v{T}, v{O+12}")
    a(f"v_mov_b32 v{T+1}, v{O+12}")
    a("s_nop 1")
    a(f"v_permlane32_swap_b32 v{T}, v{T+1}")
    a("s_nop 1")
    a(f"s_branch {name}_fin")
    return kernel_head(name) + a.text(), kernel_desc(name, 224, 224), f"; @launch kernel={name} grid=(256,1,1) block=(256,1,1) lds={K2_LDS}"
```

```python
from asmlib import *
from k1 import WS_Q, WS_K, WS_V, WS_A, WS_BYTES, f2u
D = 12
NS = D + 1
K3_LDS = max(4*NS*2048, 12*4096)
def gen_k3(name="k3_kernel", pf=None):
    a = Asm()
    ACC = 16; H = 80; W = H + 8*NS; T = W + 16; XR = T + 8
    vL = 1; vD = 2; vT0 = 3; vT1 = 4; vO = 5
    a("s_cmp_ge_u32 s2, 224")
    a(f"s_cbranch_scc1 {name}_end")
    a("s_load_dwordx2 s[4:5], s[0:1], 0")
    a("s_load_dwordx2 s[6:7], s[0:1], 16")
    a("s_load_dwordx4 s[8:11], s[0:1], 48")
    a("s_load_dwordx2 s[12:13], s[0:1], 72")
    a("v_lshrrev_b32 v2, 6, v0")
    a("v_and_b32 v0, 63, v0")
    a("v_readfirstlane_b32 s40, v2")
    a(f"v_lshlrev_b32 {vr(vL)}, 4, v0")
    a("s_and_b32 s41, s2, 7")
    a("s_lshl_b32 s41, s41, 2")
    a("s_bfe_u32 s43, s2, 0x20003")
    a("s_add_u32 s41, s41, s43")
    a("s_lshr_b32 s42, s2, 5")
    a("v_lshrrev_b32 v6, 3, v0")
    a("v_bfe_u32 v7, v0, 4, 1")
    a("v_lshlrev_b32 v7, 2, v7")
    a("v_and_b32 v8, 7, v0")
    a("v_xor_b32 v8, v8, v7")
    a("v_mul_u32_u24 v6, 896, v6")
    a("v_lshl_add_u32 v6, v8, 4, v6")
    a("s_lshl_b32 s43, s42, 7")
    a(f"v_add_u32 {vr(vD)}, s43, v6")
    a(f"v_add_u32 v9, {8*896-1024}, {vr(vD)}")
    a("s_lshr_b32 s43, s40, 1")
    a("s_lshl_b32 s44, s41, 1")
    a("s_add_u32 s45, s44, s43")
    a("s_xor_b32 s46, s45, 1")
    a("s_mov_b32 s54, s45")
    a(f"s_mul_i32 s45, s45, {144*1024}")
    a(f"s_mul_i32 s46, s46, {144*1024}")
    a(f"s_mul_i32 s43, s40, {28*1024}")
    a(f"s_add_u32 s43, s43, {WS_A}")
    a("s_add_u32 s47, s45, s43")
    a("s_add_u32 s48, s46, s43")
    a(f"s_mul_i32 s43, s40, {8*1024}")
    a(f"s_add_u32 s43, s43, {WS_A+112*1024}")
    a("s_add_u32 s49, s45, s43")
    a("s_add_u32 s50, s46, s43")
    a(f"s_mul_i32 s51, s40, {448*896}")
    a(f"s_mul_i32 s52, s40, {112*896}")
    a(f"s_mul_i32 s53, s40, {NS*2048}")
    a("s_waitcnt lgkmcnt(0)")
    srd(a, 16, 4, 2048*448*2)
    srd(a, 20, 6, 448*448*2)
    srd(a, 24, 8, 1792*448*2)
    srd(a, 28, 10, 2048*448*2)
    srd(a, 32, 12, WS_BYTES)
    def loads(i):
        sl = i % NS
        a(f"s_add_u32 m0, s53, {sl*2048}")
        if i < 28:
            a(f"s_add_u32 s56, s51, {16*i*896}"); w = "s[24:27]"
            a(f"s_add_u32 s57, s47, {1024*i}"); a(f"s_add_u32 s58, s48, {1024*i}")
        else:
            j = i - 28
            a(f"s_add_u32 s56, s52, {(28*(j//2)+16*(j%2))*896}"); w = "s[20:23]"
            a(f"s_add_u32 s57, s49, {1024*j}"); a(f"s_add_u32 s58, s50, {1024*j}")
        a.vm(f"buffer_load_dwordx4 {vr(vD)}, {w}, s56 offen lds", i)
        a.vm(f"buffer_load_dwordx4 v9, {w}, s56 offen offset:1024 lds", i)
        a.vm(f"buffer_load_dwordx4 {vr(H+8*sl,4)}, {vr(vL)}, s[32:35], s57 offen", i)
        a.vm(f"buffer_load_dwordx4 {vr(H+8*sl+4,4)}, {vr(vL)}, s[32:35], s58 offen", i)
    for i in range(D): loads(i)
    a("v_and_b32 v6, 31, v0")
    a("v_lshrrev_b32 v7, 5, v0")
    a("s_lshl_b32 s43, s54, 5")
    a("v_add_u32 v6, s43, v6")
    a("v_mul_u32_u24 v6, 896, v6")
    a("s_and_b32 s55, s40, 1")
    a("s_lshl_b32 s43, s55, 6")
    a("s_lshl_b32 s44, s42, 7")
    a("s_add_u32 s43, s43, s44")
    a("v_add_u32 v6, s43, v6")
    a(f"v_lshl_add_u32 {vr(vO)}, v7, 4, v6")
    a("v_lshl_add_u32 v6, v7, 3, v6")
    for i in range(4):
        a.vm(f"buffer_load_dwordx2 {vr(XR+2*i,2)}, v6, s[16:19], 0 offen offset:{16*i}", "x")
    if pf: pf(a, T, 60)
    a("v_bfe_u32 v6, v0, 2, 2")
    a("v_lshl_add_u32 v7, v7, 2, v6")
    a("v_lshlrev_b32 v7, 7, v7")
    a("v_and_b32 v8, 3, v0")
    a("v_lshl_add_u32 v7, v8, 3, v7")
    a("v_bfe_u32 v8, v0, 4, 1")
    a("v_lshl_add_u32 v7, v8, 5, v7")
    a("v_lshrrev_b32 v6, 1, v6")
    a("v_xor_b32 v6, s55, v6")
    a("v_lshl_add_u32 v7, v6, 6, v7")
    a(f"v_add_u32 {vr(vT0)}, s53, v7")
    a(f"v_xor_b32 {vr(vT1)}, 64, {vr(vT0)}")
    def reads(i):
        sl = i % NS
        for ct in range(2):
            for rd in range(2):
                a.lg(f"ds_read_b64_tr_b16 {vr(W+8*(i&1)+4*ct+2*rd,2)}, {vr(vT0+ct)} offset:{sl*2048+rd*1024}", i)
    a.wait(vm=0)
    reads(0)
    for i in range(36):
        if i + 1 < 36:
            a.wait(vm=i+1)
            reads(i+1)
        a.wait(lg=i)
        sl = i % NS
        for tt in range(2):
            for ct in range(2):
                acc = vr(ACC+16*(ct+2*tt), 16)
                a(f"v_mfma_f32_32x32x16_bf16 {acc}, {vr(W+8*(i&1)+4*ct,4)}, {vr(H+8*sl+4*tt,4)}, {'0' if i==0 else acc}")
            if tt == 0 and i + D < 36: loads(i + D)
    a("s_barrier")
    for j in range(1, 4):
        a(f"s_xor_b32 s43, s40, {j}")
        a(f"s_mul_i32 s43, s43, {3*4096}")
        a(f"v_add_u32 v{T+j}, s43, {vr(vL)}")
    a(f"s_mul_i32 s43, s40, {3*4096}")
    a(f"v_add_u32 v{T}, s43, {vr(vL)}")
    a("s_nop 3")
    for j in range(1, 4):
        for q in range(4):
            a(f"ds_write_b128 v{T+j}, {vr(ACC+16*j+4*q,4)} offset:{(j-1)*4096+q*1024}")
    a("s_mov_b32 s43, 0xffff0000")
    for i in range(8):
        a(f"v_lshlrev_b32 v6, 16, v{XR+i}")
        a(f"v_and_b32 v7, s43, v{XR+i}")
        a(f"v_add_f32 v{ACC+2*i}, v{ACC+2*i}, v6")
        a(f"v_add_f32 v{ACC+2*i+1}, v{ACC+2*i+1}, v7")
    a("s_waitcnt lgkmcnt(0)")
    a("s_barrier")
    a.lgq = []
    for j in range(3):
        for q in range(4):
            a.lg(f"ds_read_b128 {vr(ACC+16+16*j+4*q,4)}, v{T} offset:{j*4096+q*1024}", ("c", j))
    for j in range(3):
        a.wait(lg=("c", j))
        for r in range(16): a(f"v_add_f32 v{ACC+r}, v{ACC+r}, v{ACC+16+16*j+r}")
    for r in range(8): a(f"v_cvt_pk_bf16_f32 v{H+r}, v{ACC+2*r}, v{ACC+2*r+1}")
    a("s_nop 1")
    for b in (0, 4):
        a(f"v_permlane32_swap_b32 v{H+b}, v{H+b+2}")
        a(f"v_permlane32_swap_b32 v{H+b+1}, v{H+b+3}")
    a(f"buffer_store_dwordx4 {vr(H,4)}, {vr(vO)}, s[28:31], 0 offen")
    a(f"buffer_store_dwordx4 {vr(H+4,4)}, {vr(vO)}, s[28:31], 0 offen offset:32")
    a(f"{name}_end:")
    a("s_endpgm")
    nv = (XR + 8 + 7)//8*8
    return kernel_head(name) + a.text(), kernel_desc(name, nv, nv), f"; @launch kernel={name} grid=(224,1,1) block=(256,1,1) lds={K3_LDS}"
```

```python
import sys
from k1 import gen_k1
from k2 import gen_k2
from k3 import gen_k3
def assemble(parts):
    s = "".join(p[2] + "\n" for p in parts)
    s += '.amdgcn_target "amdgcn-amd-amdhsa--gfx950"\n.text\n'
    seen = set()
    for p in parts:
        if p[0] in seen: continue
        seen.add(p[0]); s += p[0]
    s += '.section .rodata,"a"\n'
    seen = set()
    for p in parts:
        if p[1] in seen: continue
        seen.add(p[1]); s += p[1]
    return s
if __name__ == "__main__":
    out = sys.argv[1] if len(sys.argv) > 1 else "parallel_sum__softmax_full_mha__glu_gated_reglu__prompt.s"
    open(out, "w").write(assemble([gen_k1(), gen_k2(), gen_k3()]))
```

```python
class Asm:
    def __init__(self):
        self.L = []
        self.vmq = []
        self.lgq = []
    def __call__(self, s):
        for ln in s.split("\n"):
            ln = ln.strip()
            if ln:
                self.L.append(("" if ln.endswith(":") else "    ") + ln)
    def raw(self, s):
        self.L.append(s)
    def vm(self, s, tag=None):
        self(s); self.vmq.append(tag)
    def lg(self, s, tag=None):
        self(s); self.lgq.append(tag)
    def _cnt(self, q, tag):
        idx = [i for i, t in enumerate(q) if t == tag]
        if not idx:
            return None
        return len(q) - 1 - idx[-1]
    def wait(self, vm=None, lg=None):
        parts = []
        if vm is not None:
            n = 0 if vm == "all" else self._cnt(self.vmq, vm)
            if n is not None and (self.vmq or vm == "all"):
                assert n <= 63, n
                parts.append(f"vmcnt({n})")
                self.vmq = self.vmq[len(self.vmq) - n:] if n else []
        if lg is not None:
            n = 0 if lg == "all" else self._cnt(self.lgq, lg)
            if n is not None and (self.lgq or lg == "all"):
                assert n <= 15, n
                parts.append(f"lgkmcnt({n})")
                self.lgq = self.lgq[len(self.lgq) - n:] if n else []
        if parts:
            self("s_waitcnt " + " ".join(parts))
    def text(self):
        return "\n".join(self.L) + "\n"

def vr(b, n=1):
    return f"v{b}" if n == 1 else f"v[{b}:{b+n-1}]"
def ar(b, n=1):
    return f"a{b}" if n == 1 else f"a[{b}:{b+n-1}]"
def sr(b, n=1):
    return f"s{b}" if n == 1 else f"s[{b}:{b+n-1}]"

def srd(a, d, base, nbytes):
    a(f"s_mov_b32 s{d}, s{base}")
    a(f"s_mov_b32 s{d+1}, s{base+1}")
    a(f"s_mov_b32 s{d+2}, {nbytes}")
    a(f"s_mov_b32 s{d+3}, 0x00020000")

def kernel_head(name):
    return f""".globl {name}
.p2align 8
.type {name},@function
{name}:
"""
def kernel_desc(name, nvgpr, accum, nsgpr=96):
    return f""".p2align 6
.amdhsa_kernel {name}
  .amdhsa_next_free_vgpr {nvgpr}
  .amdhsa_next_free_sgpr {nsgpr}
  .amdhsa_accum_offset {accum}
  .amdhsa_group_segment_fixed_size 0
  .amdhsa_kernarg_size 80
  .amdhsa_user_sgpr_count 2
  .amdhsa_user_sgpr_kernarg_segment_ptr 1
  .amdhsa_system_sgpr_workgroup_id_x 1
.end_amdhsa_kernel
"""

STAMP = False
STAMP_BASE = 64
class Stamps:
    def __init__(self, a, kidx, wsreg):
        self.a = a; self.n = 0; self.kidx = kidx; self.ws = wsreg
    def __call__(self, wait=True, real=False):
        if not STAMP: return
        r = STAMP_BASE + 2*self.n; self.n += 1
        assert r + 1 < 96
        self.a(f"{'s_memrealtime' if real else 's_memtime'} s[{r}:{r+1}]")
        if wait:
            self.a("s_waitcnt lgkmcnt(0)"); self.a.lgq = []
    def flush(self, wave_sreg, nw=4):
        if not STAMP: return
        a = self.a
        a("s_waitcnt vmcnt(0) lgkmcnt(0)")
        self(real=False); self(real=True)
        a(f"s_mul_i32 s3, s2, {nw}")
        a(f"s_add_u32 s3, s3, s{wave_sreg}")
        a("s_lshl_b32 s3, s3, 6")
        a(f"s_add_u32 s3, s3, {(64<<20) + self.kidx*(1<<20)}")
        a("v_mov_b32 v2, s3")
        a("s_mov_b64 exec, 1")
        for i in range(self.n):
            a(f"v_mov_b32 v3, s{STAMP_BASE+2*i}")
            a(f"global_store_dword v2, v3, s[{self.ws}:{self.ws+1}] offset:{4*i}")
        a("s_waitcnt vmcnt(0)")
```

```python
import sys, math, struct
import asmlib
from asmlib import *
def f2u(x): return struct.unpack("<I", struct.pack("<f", x))[0]
NAME = "parallel_sum__softmax_full_mha__glu_gated_reglu__prompt_kernel"
WS_KV, WS_A, WS_F = 2<<20, 6<<20, 16<<20
WS_BYTES = WS_F + 3*32768
QSCALE = math.log2(math.e) / math.sqrt(28.0)
LDS = 163840
XS = 49152
FS = 28800
OU = 14336 + 128
FSLOT = [86400, 0, 28800, 57600, 86400, 0, 28800]
XN = 115200
XN6 = 57600
KVR = 73984; WOS = 65536; EXB = 139520
class P: pass
cfg = P()
cfg.H_START = 6
cfg.STEPS = {8:2, 9:2, 10:2, 11:2, 12:2, 13:2, 14:2, 15:2}
cfg.PF = True
cfg.SPIN = 1 << 16
SC1 = "sc1"

def poll(a, lab, vdst, voff, srd_, soff, want_ge, cnt="s62"):
    a(f"s_mov_b32 {cnt}, 0")
    a(f"{lab}:")
    a(f"buffer_load_dword {vdst}, {voff}, {srd_}, {soff} offen sc1")
    a(f"s_add_u32 {cnt}, {cnt}, 1")
    a(f"s_waitcnt vmcnt(0)")
    a(f"v_cmp_le_u32 vcc, {want_ge}, {vdst}")
    a(f"s_cmp_gt_u32 {cnt}, {cfg.SPIN}")
    a(f"s_cbranch_scc1 {lab}_x")
    a(f"s_nop 1")
    a(f"s_cmp_eq_u64 vcc, -1")
    a(f"s_cbranch_scc1 {lab}_x")
    a(f"s_sleep 2")
    a(f"s_branch {lab}")
    a(f"{lab}_x:")
    a.vmq = []

def common(a, st):
    a("s_cmp_ge_u32 s2, 256")
    a("s_cbranch_scc1 L_end")
    st(wait=False, real=True); st(wait=False)
    a("s_load_dwordx8 s[4:11], s[0:1], 0")
    a("s_load_dwordx8 s[12:19], s[0:1], 32")
    a("s_load_dwordx4 s[20:23], s[0:1], 64")
    a("v_lshrrev_b32 v1, 6, v0")
    a("v_and_b32 v0, 63, v0")
    a("v_readfirstlane_b32 s63, v1")
    a("s_and_b32 s48, s2, 7")
    a("s_lshr_b32 s47, s2, 3")
    a("s_and_b32 s46, s48, 3")
    a("s_lshl_b32 s46, s46, 2")
    a("s_and_b32 s51, s47, 3")
    a("s_add_u32 s46, s46, s51")
    a("s_lshr_b32 s45, s48, 2")
    a("s_lshl_b32 s45, s45, 3")
    a("s_lshr_b32 s50, s47, 2")
    a("s_add_u32 s45, s45, s50")
    a("s_lshl_b32 s49, s48, 2")
    a("s_add_u32 s49, s49, s51")
    a("s_and_b32 s44, s63, 3")
    a("s_lshl_b32 s52, s45, 2")
    a("s_add_u32 s52, s52, s44")
    a("s_waitcnt lgkmcnt(0)")
    srd(a, 24, 22, WS_BYTES)
    srd(a, 28, 4, 2048*448*2)
    a("s_cmp_ge_u32 s44, 2")
    a("s_cselect_b32 s32, s14, s12")
    a("s_cselect_b32 s33, s15, s13")
    a(f"s_mov_b32 s34, {448*1792*2}")
    a("s_mov_b32 s35, 0x00020000")
    a(f"s_cselect_b32 s53, {OU}, 0")
    a("s_and_b32 s51, s44, 1")
    a(f"s_mul_i32 s54, s51, {32*3584}")
    a(f"s_mul_i32 s51, s51, {32*224}")
    a("s_add_u32 s53, s53, s51")
    a("s_cmp_ge_u32 s63, 4")
    a("s_cbranch_scc1 L_helper")

def ffn_dma_addr(a, vDF, t):
    a("s_mul_i32 s51, s46, 224")
    for j in range(7):
        a(f"v_add_u32 v{t}, {64*j}, v0")
        a(f"v_mul_u32_u24 v{t+1}, 4682, v{t}")
        a(f"v_lshrrev_b32 v{t+1}, 16, v{t+1}")
        a(f"v_mul_u32_u24 v{t+2}, {3584-14*16}, v{t+1}")
        a(f"v_lshl_add_u32 v{t+2}, v{t}, 4, v{t+2}")
        if j % 4: a(f"v_subrev_u32 v{t+2}, {1024*(j%4)}, v{t+2}")
        a(f"v_add_u32 {vr(vDF+j)}, s51, v{t+2}")
def ffn_dma_ops(g, vDF):
    sl = FSLOT[g]
    ops = [(f"s_add_u32 m0, s53, {sl}", "s"), (f"s_add_u32 s55, s54, {g*64*3584}", "s")]
    for j in range(7):
        if j == 4: ops += [(f"s_add_u32 m0, s53, {sl+4096}", "s"), ("s_nop 0", "s")]
        ops.append((f"buffer_load_dwordx4 {vr(vDF+j)}, s[32:35], s55 offen offset:{1024*(j%4)} lds", "vm", ("F", g)))
    return ops
def emit(a, op):
    if op[1] == "vm": a.vm(op[0], op[2])
    elif op[1] == "lg": a.lg(op[0], op[2])
    elif op[1] == "call": op[0]()
    else: a(op[0])

def gen_c(a, st):
    vDF = 1; vDQ = 8; vTF = 11; vTQ = 13; vL = 15
    ACCF = 16; AQ = 128; AK = 144; AV = 160; WR = 176; RING = 10; XR = 216; QF = 248
    t = 216
    SINK = 255
    srd(a, 36, 6, 448*1344*2)
    if cfg.PF:
        a("s_and_b32 s51, s47, 3")
        a("s_lshl_b32 s55, s45, 2")
        a("s_add_u32 s51, s51, s55")
        a("s_lshl_b32 s51, s51, 2")
        a("s_add_u32 s51, s51, s44")
        a(f"s_mul_i32 s51, s51, {8*896}")
        a(f"v_min_u32 v{t}, 55, v0")
        a(f"v_lshlrev_b32 v{t}, 7, v{t}")
        a.vm(f"buffer_load_dword v{SINK}, v{t}, s[28:31], s51 offen", "pf")
        a("s_cmp_eq_u32 s44, 3")
        a("s_cbranch_scc1 L_pfcode")
        a(f"v_lshrrev_b32 v{t+1}, 2, v0")
        a(f"v_min_u32 v{t+1}, 13, v{t+1}")
        a(f"v_mul_u32_u24 v{t+1}, 2688, v{t+1}")
        a(f"v_and_b32 v{t+2}, 3, v0")
        a(f"v_lshl_add_u32 v{t+1}, v{t+2}, 6, v{t+1}")
        a(f"s_mul_i32 s51, s47, {14*2688}")
        a("s_mul_i32 s55, s44, 896")
        a("s_add_u32 s51, s51, s55")
        a("s_and_b32 s55, s48, 3")
        a("s_mul_i32 s55, s55, 224")
        a("s_add_u32 s51, s51, s55")
        a(f"buffer_load_dword v{SINK}, v{t+1}, s[36:39], s51 offen")
        a("s_branch L_pfcode_x")
        a("L_pfcode:")
        a("s_getpc_b64 s[56:57]")
        a("L_pc:")
        a(f"v_and_b32 v{t+1}, 7, v0")
        a("s_lshl_b32 s51, s47, 3")
        a(f"v_add_u32 v{t+1}, s51, v{t+1}")
        a(f"v_lshlrev_b32 v{t+1}, 7, v{t+1}")
        a(f"v_min_u32 v{t+1}, L_code_end-L_pc-4, v{t+1}")
        a(f"global_load_dword v{SINK}, v{t+1}, s[56:57]")
        a("L_pfcode_x:")
        a.vmq.append("pf")
    a("s_mul_i32 s51, s46, 56")
    a("s_and_b32 s58, s51, 8")
    a("s_and_b32 s51, s51, -16")
    for j in range(3):
        a(f"v_add_u32 v{t}, {64*j}, v0")
        a(f"v_mul_u32_u24 v{t+1}, 5462, v{t}")
        a(f"v_lshrrev_b32 v{t+1}, 16, v{t+1}")
        a(f"v_mul_u32_u24 v{t+2}, 12, v{t+1}")
        a(f"v_sub_u32 v{t+2}, v{t}, v{t+2}")
        a(f"v_lshrrev_b32 v{t+3}, 2, v{t+2}")
        a(f"v_and_b32 v{t+2}, 3, v{t+2}")
        a(f"v_mul_u32_u24 v{t+1}, 2688, v{t+1}")
        a(f"v_mul_u32_u24 v{t+3}, 896, v{t+3}")
        a(f"v_lshl_add_u32 v{t+1}, v{t+2}, 4, v{t+1}")
        a(f"v_add3_u32 {vr(vDQ+j)}, v{t+1}, v{t+3}, s51")
        if j: a(f"v_subrev_u32 {vr(vDQ+j)}, {1024*j}, {vr(vDQ+j)}")
    a(f"s_mul_i32 s56, s44, {16*2688}")
    a(f"s_mul_i32 s57, s44, {16*192}")
    def qkv_dma(g):
        a(f"s_add_u32 m0, s57, {g*12288}")
        a(f"s_add_u32 s55, s56, {g*64*2688}")
        for j in range(3):
            a.vm(f"buffer_load_dwordx4 {vr(vDQ+j)}, s[36:39], s55 offen offset:{1024*j} lds", ("Q", g))
    if cfg.PF:
        a(f"v_lshrrev_b32 v{t}, 3, v0")
        a(f"v_min_u32 v{t}, 6, v{t}")
        a(f"v_mul_u32_u24 v{t}, 3584, v{t}")
        a(f"v_and_b32 v{t+1}, 7, v0")
        a(f"v_min_u32 v{t+1}, 6, v{t+1}")
        a(f"v_lshl_add_u32 v{t}, v{t+1}, 7, v{t}")
        a("s_lshl_b32 s51, s47, 1")
        a("s_and_b32 s55, s44, 1")
        a("s_add_u32 s51, s51, s55")
        a(f"s_mul_i32 s51, s51, {7*3584}")
        a("s_and_b32 s55, s48, 3")
        a("s_mul_i32 s55, s55, 896")
        a("s_add_u32 s59, s51, s55")
    for g in range(4): qkv_dma(g)
    if cfg.PF:
        a.vm(f"buffer_load_dword v{SINK}, v{t}, s[32:35], s59 offen", "pf")
    ffn_dma_addr(a, vDF, t+1)
    a(f"v_lshrrev_b32 v{t+1}, 5, v0")
    a(f"v_bfe_u32 v{t+2}, v0, 2, 2")
    a(f"v_lshl_add_u32 v{t+2}, v{t+1}, 3, v{t+2}")
    a(f"v_and_b32 v{t+3}, 3, v0")
    a(f"v_bfe_u32 v{t+4}, v0, 4, 1")
    a(f"v_mul_u32_u24 v{t+5}, 224, v{t+2}")
    a(f"v_lshl_add_u32 v{t+5}, v{t+3}, 3, v{t+5}")
    a(f"v_mul_u32_u24 v{t+6}, {OU}, v{t+4}")
    a(f"v_add_u32 {vr(vTF)}, v{t+5}, v{t+6}")
    a(f"v_add_u32 {vr(vTF+1)}, 57600, {vr(vTF)}")
    a(f"v_mul_u32_u24 v{t+5}, 192, v{t+2}")
    a(f"v_lshl_add_u32 v{t+5}, v{t+3}, 3, v{t+5}")
    a(f"v_lshl_add_u32 v{t+5}, v{t+4}, 5, v{t+5}")
    a(f"v_add_u32 {vr(vTQ)}, s58, v{t+5}")
    a(f"v_add_u32 {vr(vTQ+1)}, 49152, {vr(vTQ)}")
    a(f"v_lshlrev_b32 {vr(vL)}, 4, v0")
    st()
    a("s_barrier")
    st()
    for g in range(4, 7): qkv_dma(g)
    for op in ffn_dma_ops(0, vDF): emit(a, op)
    vXN = 8; vT = 9
    a("s_lshl_b32 s51, s44, 12")
    a(f"s_add_u32 s51, s51, {XN}")
    a(f"v_add_u32 {vr(vXN)}, s51, {vr(vL)}")
    a("s_lshl_b32 s56, s46, 18")
    a("s_lshl_b32 s51, s52, 12")
    a("s_add_u32 s56, s56, s51")
    a(f"s_add_u32 s56, s56, {WS_KV}")
    a(f"s_mul_i32 s57, s52, {144*1024}")
    a(f"s_add_u32 s57, s57, {WS_A}")
    a("s_lshl_b32 s51, s46, 11")
    a("s_add_u32 s60, s57, s51")
    a(f"s_add_u32 s60, s60, {112*1024}")
    a(f"s_mul_i32 s51, s46, {7*1024}")
    a("s_add_u32 s57, s57, s51")
    a("s_add_u32 s58, s57, 4096")
    a("s_lshl_b32 s59, s45, 4")
    a("s_add_u32 s59, s59, s46")
    a("s_lshl_b32 s59, s59, 7")
    a("s_lshl_b32 s51, s44, 2")
    a("s_add_u32 s59, s59, s51")
    a(f"s_add_u32 s59, s59, {WS_F}")
    a("s_mov_b32 s40, 0"); a("s_mov_b32 s41, -1")
    a("s_mov_b32 s42, 0x0fffffff"); a("s_mov_b32 s43, 0x0fffffff")
    a(f"s_mov_b32 s61, {f2u(QSCALE):#x}")
    order = []
    chunks = []
    for g in range(7):
        chunks.append((len(order), 12))
        for sp in range(4):
            for tl in (1, 2, 0): order.append((0, g, sp, tl))
    for g in range(5):
        chunks.append((len(order), 28))
        for sp in range(4):
            for tl in range(7): order.append((1, g, sp, tl))
    chunks.append((len(order), 56))
    for tl in range(7):
        for g in (5, 6):
            for sp in range(4): order.append((1, g, sp, tl))
    NM = len(order)
    def xidx(p, g, sp): return (28*p + 4*g + sp)
    def frag_reads(f):
        p, g, sp, tl = order[f]
        reg = WR + 4*(f % RING); out = []
        for rd in range(2):
            if p == 0:
                off = g*12288 + (16*sp + 4*rd)*192 + tl*64; hi = 0
                if g >= 4: off -= 49152; hi = 1
                out.append(f"ds_read_b64_tr_b16 {vr(reg+2*rd,2)}, {vr(vTQ+hi)} offset:{off}")
            else:
                off = FSLOT[g] + (16*sp + 4*rd)*224 + tl*32; hi = 0
                if FSLOT[g] >= 57600: off -= 57600; hi = 1
                out.append(f"ds_read_b64_tr_b16 {vr(reg+2*rd,2)}, {vr(vTF+hi)} offset:{off}")
        return out
    def xn_read(p, g, sp):
        n = xidx(p, g, sp)
        if p == 1 and g == 6:
            return f"ds_read_b128 {vr(XR+4*(n%8),4)}, {vr(vT)} offset:{sp*1024}"
        sl = (g+1) % 2 if p == 0 else g % 2
        return f"ds_read_b128 {vr(XR+4*(n%8),4)}, {vr(vXN)} offset:{sl*16384+sp*1024}"
    def mfma(f):
        p, g, sp, tl = order[f]
        w = vr(WR + 4*(f % RING), 4); x = vr(XR + 4*(xidx(p, g, sp) % 8), 4)
        acc = vr(AQ + 16*tl, 16) if p == 0 else vr(ACCF + 16*tl, 16)
        c = "0" if (g == 0 and sp == 0) else acc
        if p == 0 and tl == 2: return f"v_mfma_f32_32x32x16_bf16 {acc}, {x}, {w}, {c}"
        return f"v_mfma_f32_32x32x16_bf16 {acc}, {w}, {x}, {c}"
    V = lambda s: (s, "v")
    def epi_qkv():
        o = []
        o.append(V(f"v_and_b32 v{vT}, 31, v0"))
        o.append(V(f"v_cmp_eq_u32 vcc, 28, v{vT}"))
        o.append(V(f"v_mov_b32 v{vT+1}, 0x3f803f80"))
        for r in range(8): o.append(V(f"v_cvt_pk_bf16_f32 v{AV+r}, v{AV+2*r}, v{AV+2*r+1}"))
        o.append(V(f"v_cndmask_b32 v{vT}, 0, v{vT+1}, vcc"))
        for r in range(8): o.append(V(f"v_cndmask_b32 v{AV+r}, v{vT}, v{AV+r}, s[42:43]"))
        o.append((f"buffer_store_dwordx4 {vr(AV,4)}, {vr(vL)}, s[24:27], s56 offen offset:2048 {SC1}", "vm", "st"))
        o.append((f"buffer_store_dwordx4 {vr(AV+4,4)}, {vr(vL)}, s[24:27], s56 offen offset:3072 {SC1}", "vm", "st"))
        for r in range(12, 16): o.append(V(f"v_cndmask_b32 v{AK+r}, v{AK+r}, 1.0, s[40:41]"))
        for r in range(8): o.append(V(f"v_cvt_pk_bf16_f32 v{AV+8+r}, v{AK+2*r}, v{AK+2*r+1}"))
        o.append((f"buffer_store_dwordx4 {vr(AV+8,4)}, {vr(vL)}, s[24:27], s56 offen {SC1}", "vm", "st"))
        o.append((f"buffer_store_dwordx4 {vr(AV+12,4)}, {vr(vL)}, s[24:27], s56 offen offset:1024 {SC1}", "vm", "st"))
        for r in range(16): o.append(V(f"v_mul_f32 v{AQ+r}, s61, v{AQ+r}"))
        for r in range(12, 16): o.append(V(f"v_cndmask_b32 v{AQ+r}, v{AQ+r}, 0, s[40:41]"))
        o.append(V(f"v_mul_f32 v{vT}, v{AQ}, v{AK}"))
        o.append(V(f"v_mul_f32 v{vT+1}, v{AQ+1}, v{AK+1}"))
        for r in range(2, 16): o.append(V(f"v_fmac_f32 v{vT+(r&1)}, v{AQ+r}, v{AK+r}"))
        o.append(V(f"v_add_f32 v{vT}, v{vT}, v{vT+1}"))
        o.append(V(f"v_mov_b32 v{vT+1}, v{vT}"))
        for r in range(4): o.append(V(f"v_cvt_pk_bf16_f32 v{QF+r}, v{AQ+2*r}, v{AQ+2*r+1}"))
        o.append(V(f"v_permlane32_swap_b32 v{vT+1}, v{vT}"))
        for r in (4, 5, 7): o.append(V(f"v_cvt_pk_bf16_f32 v{QF+r}, v{AQ+2*r}, v{AQ+2*r+1}"))
        o.append(V(f"v_add_f32 v{vT}, v{vT}, v{vT+1}"))
        o.append(V(f"v_cndmask_b32 v{AQ+12}, v{AQ+12}, -v{vT}, s[40:41]"))
        o.append(V(f"v_cvt_pk_bf16_f32 v{QF+6}, v{AQ+12}, v{AQ+13}"))
        o.append(V(f"v_cmp_eq_u32 vcc, 0, v0"))
        o.append(V(f"v_mov_b32 v13, 0x40000000"))
        o.append(V(f"v_mov_b32 v14, 1"))
        o.append(V(f"v_subrev_u32 v{vT}, {XN-XN6}, {vr(vXN)}"))
        o.append(V(f"v_cndmask_b32 v13, v13, 0, vcc"))
        return o
    def epi_f(tl):
        o = []; b = ACCF + 16*tl
        for r in range(8): o.append(V(f"v_max_f32 v{b+r}, 0, v{b+r}"))
        for r in range(8): o.append(V(f"v_mul_f32 v{b+r}, v{b+r}, v{b+8+r}"))
        for r in range(4): o.append(V(f"v_cvt_pk_bf16_f32 v{b+8+r}, v{b+2*r}, v{b+2*r+1}"))
        so = "s57" if tl < 4 else "s58"
        o.append((f"buffer_store_dwordx4 {vr(b+8,4)}, {vr(vL)}, s[24:27], {so} offen offset:{1024*(tl%4)} {SC1}", "vm", "st"))
        return o
    def flag_store(p):
        a.wait(vm="all")
        if p: a(f"s_add_u32 s59, s59, 32768")
        a.vm(f"buffer_store_dword v14, v13, s[24:27], s59 offen {SC1}", "fl")
    def need(ci): return ("Q", ci) if ci < 7 else (("F", ci-7) if ci-7 <= 2 else None)
    def xn_list(ci):
        if ci < 7: return [(0, ci, sp) for sp in range(4)]
        if ci < 12: return [(1, ci-7, sp) for sp in range(4)]
        return [(1, g, sp) for g in (5, 6) for sp in range(4)]
    a.wait(vm=need(0))
    a("s_barrier")
    st()
    xq = xn_list(0)
    xdone = set()
    def issue_x():
        x = xq.pop(0); a.lg(xn_read(*x), ("x",) + x); xdone.add(x)
    issue_x()
    for f in range(3):
        for r in frag_reads(f): a.lg(r, ("f", f))
    issue_x()
    for f in range(3, 6):
        for r in frag_reads(f): a.lg(r, ("f", f))
    rp = 6
    dmaq = []; epiq = []
    chunk_of = {}
    for ci, (s0, ln) in enumerate(chunks):
        for f in range(s0, s0+ln): chunk_of[f] = ci
    epi_at = {84 + 2: epi_qkv()}
    for tl in range(7): epi_at[chunks[12][0] + 8*tl + 7 + 3] = epi_f(tl)
    opened = 0
    WG = 3
    for f in range(NM):
        ci = chunk_of[f]; s0, ln = chunks[ci]; i = f - s0
        used = 0
        if f % WG == 0:
            last = min(f+WG-1, NM-1)
            tags = [("f", last)] + [("x",) + order[k][:3] for k in range(f, last+1)]
            for k in range(f, last+1): assert order[k][:3] in xdone, (f, k)
            assert rp > last
            n = min([c for c in (a._cnt(a.lgq, tg) for tg in tags) if c is not None], default=None)
            if n is not None:
                a(f"s_waitcnt lgkmcnt({n})"); assert n <= 15
                a.lgq = a.lgq[len(a.lgq)-n:] if n else []
        a(mfma(f))
        if (f+1) % WG == 0: used += 1
        if f in epi_at: epiq += epi_at.pop(f)
        if i == ln - 5 and ci + 1 < len(chunks):
            assert rp == s0 + ln and not xq and not dmaq
            a.wait(vm=need(ci+1), lg="all")
            a("s_barrier"); used += 2
            if ci in (6, 8, 11): st()
            opened = ci + 1
            xq = xn_list(opened)
            if opened == 3: dmaq = ffn_dma_ops(1, vDF)
            if opened == 5: dmaq = ffn_dma_ops(2, vDF)
            if opened == 7: a("s_setprio 1")
        lim = chunks[opened][0] + chunks[opened][1]
        def x_ok():
            if not xq: return False
            n = xidx(*xq[0])
            return all(xidx(*order[k][:3]) != n - 8 for k in range(f+1, min(NM, f+40)))
        nx = 0
        while x_ok() and nx < (2 if opened == 12 else 1):
            issue_x(); used += 1; nx += 1
        n = 0
        while rp < lim and rp <= f + 8 and n < 2:
            for r in frag_reads(rp): a.lg(r, ("f", rp))
            rp += 1; n += 1; used += 2
        if dmaq and n < 2:
            while dmaq[0][1] == "s":
                emit(a, dmaq.pop(0)); used += 1
            emit(a, dmaq.pop(0)); used += 4
        while epiq and used < 6:
            op = epiq.pop(0); emit(a, op); used += 4 if op[1] == "vm" else 1
        if f == chunks[9][0] + 8:
            assert not epiq
            flag_store(0)
    for op in epiq: emit(a, op)
    O = 128; S = 144; PP = 176; KV = 184; vKV = 8; T = 200
    for r in range(16): a(f"v_mov_b32 v{O+r}, 0")
    for k in sorted(epi_at):
        for op in epi_at[k]: emit(a, op)
    for r in range(4): a(f"v_mov_b32 v{PP+4+r}, 0")
    for r in range(4): a(f"v_mov_b32 v{KV+12+r}, 0")
    a(f"v_add_u32 {vr(vKV)}, {KVR}, {vr(vL)}")
    a(f"v_add_u32 {vr(vKV+1)}, {KVR+16384}, {vr(vL)}")
    a(f"v_mov_b32 v10, {vr(vKV)}")
    a("s_mov_b32 s55, 0")
    st()
    a("s_barrier")
    st()
    def rd(which, n):
        return f"ds_read_b128 {vr(KV+4*which,4)}, {vr(vKV + (1 if n >= 4 else 0))} offset:{(n%4)*4096+which*1024}"
    def qk(n, ks):
        s = vr(S+16*(n&1), 16)
        return f"v_mfma_f32_32x32x16_bf16 {s}, {vr(KV+4*ks,4)}, {vr(QF+4*ks,4)}, {'0' if ks==0 else s}"
    def pv(ks):
        return f"v_mfma_f32_32x32x16_bf16 {vr(O,16)}, {vr(KV+8+4*ks,4)}, {vr(PP+4*ks,4)}, {vr(O,16)}"
    a(rd(0, 0)); a(rd(1, 0))
    a("s_waitcnt lgkmcnt(0)")
    a(qk(0, 0)); a(rd(0, 1)); a(qk(0, 1)); a(rd(1, 1)); a(rd(2, 0))
    a("s_waitcnt lgkmcnt(0)")
    a("s_nop 7")
    a.raw(".p2align 3")
    a("L_att:")
    for n in range(4):
        sb = S + 16*(n & 1)
        ms = [qk(n+1, 0), qk(n+1, 1), pv(1), pv(0)]
        rs = [rd(0, n+2), rd(1, n+2), rd(3, n), rd(2, n+1)]
        for m in range(4):
            if m in (0, 2): a("s_waitcnt lgkmcnt(2)")
            if n == 2 and m == 0: a("s_barrier")
            elif m in (0, 2):
                fill = {(0,0): "s_add_u32 s55, s55, 1", (0,2): "s_add_u32 s51, s55, 1", (1,0): "s_and_b32 s51, s51, 3", (1,2): "s_lshl_b32 s51, s51, 14",
                        (2,2): "s_cmp_eq_u32 s55, 2", (3,0): "s_cbranch_scc1 L_hflag\nL_hflag_x:", (3,2): "s_cmp_lg_u32 s55, 16"}[(n, m)]
                a(fill)
            a(ms[m]); a(rs[m])
            if n == 3 and m == 3:
                a(f"v_mov_b32 {vr(vKV)}, {vr(vKV+1)}")
                a(f"v_add_u32 {vr(vKV+1)}, s51, v10")
            for j in range(4): a(f"v_exp_f32 v{sb+4*m+j}, v{sb+4*m+j}")
            for j in range(2): a(f"v_cvt_pk_bf16_f32 v{PP+2*m+j}, v{sb+4*m+2*j}, v{sb+4*m+2*j+1}")
    a("s_cbranch_scc1 L_att")
    a("s_waitcnt lgkmcnt(0)")
    a("s_nop 0")
    a(pv(1))
    st()
    a(f"s_mov_b32 s40, 0"); a("s_mov_b32 s41, -1")
    a(f"s_mov_b32 s42, {f2u(2.0**-64):#x}")
    a(f"s_mov_b32 s43, {f2u(2.0**64):#x}")
    a("s_nop 7")
    a(f"v_mov_b32 v{T}, v{O+12}")
    a(f"v_mov_b32 v{T+1}, v{O+12}")
    a("s_nop 1")
    a(f"v_permlane32_swap_b32 v{T}, v{T+1}")
    a("s_nop 1")
    a(f"v_cmp_le_f32 vcc, s42, v{T+1}")
    a(f"v_cmp_ge_f32 s[56:57], s43, v{T+1}")
    a(f"v_rcp_f32 v{T}, v{T+1}")
    a("s_nop 2")
    a("s_and_b64 vcc, vcc, s[56:57]")
    a("s_cmp_eq_u64 vcc, -1")
    a("s_cbranch_scc0 L_slow")
    a("L_fin:")
    for r in range(16): a(f"v_mul_f32 v{O+r}, v{O+r}, v{T}")
    for r in range(8): a(f"v_cvt_pk_bf16_f32 v{PP+r}, v{O+2*r}, v{O+2*r+1}")
    a(f"v_cndmask_b32 v{PP+6}, v{PP+6}, 0, s[40:41]")
    a(f"v_cndmask_b32 v{PP+7}, v{PP+7}, 0, s[40:41]")
    a.vm(f"buffer_store_dwordx4 {vr(PP,4)}, {vr(vL)}, s[24:27], s60 offen {SC1}", "st")
    a.vm(f"buffer_store_dwordx4 {vr(PP+4,4)}, {vr(vL)}, s[24:27], s60 offen offset:1024 {SC1}", "st")
    ACC = 16; OF = 48; WF = 112; XRS = 160; TP = 200; vO = 1; vT0 = 2; vT1 = 3; vP = 4; vH = 5; vE = 6
    a("s_lshr_b32 s51, s44, 1")
    a("s_and_b32 s55, s44, 1")
    a("s_lshl_b32 s56, s49, 1")
    a("s_add_u32 s56, s56, s51")
    a(f"v_and_b32 v{TP}, 31, v0")
    a(f"v_lshrrev_b32 v{TP+1}, 5, v0")
    a("s_lshl_b32 s57, s56, 5")
    a(f"v_add_u32 v{TP}, s57, v{TP}")
    a(f"v_mul_u32_u24 v{TP}, 896, v{TP}")
    a("s_lshl_b32 s57, s55, 6")
    a("s_lshl_b32 s58, s50, 7")
    a("s_add_u32 s57, s57, s58")
    a(f"v_add_u32 v{TP}, s57, v{TP}")
    a(f"v_lshl_add_u32 {vr(vO)}, v{TP+1}, 4, v{TP}")
    a(f"v_lshl_add_u32 v7, v{TP+1}, 3, v{TP}")
    a(f"v_bfe_u32 v{TP}, v0, 2, 2")
    a(f"v_lshl_add_u32 v{TP+1}, v{TP+1}, 2, v{TP}")
    a(f"v_lshlrev_b32 v{TP+1}, 7, v{TP+1}")
    a(f"v_and_b32 v{TP+2}, 3, v0")
    a(f"v_lshl_add_u32 v{TP+1}, v{TP+2}, 3, v{TP+1}")
    a(f"v_bfe_u32 v{TP+2}, v0, 4, 1")
    a(f"v_lshl_add_u32 v{TP+1}, v{TP+2}, 5, v{TP+1}")
    a(f"v_lshrrev_b32 v{TP}, 1, v{TP}")
    a(f"v_xor_b32 v{TP}, s55, v{TP}")
    a(f"v_lshl_add_u32 v{TP+1}, v{TP}, 6, v{TP+1}")
    a(f"s_mul_i32 s57, s55, {8*28*128}")
    a(f"s_add_u32 s57, s57, {WOS}")
    a(f"v_add_u32 {vr(vT0)}, s57, v{TP+1}")
    a(f"v_xor_b32 {vr(vT1)}, 64, {vr(vT0)}")
    a(f"v_and_b32 {vr(vP)}, 7, v0")
    a(f"v_lshlrev_b32 {vr(vP)}, 7, {vr(vP)}")
    a("s_lshl_b32 s57, s44, 12")
    a(f"v_add_u32 {vr(vH)}, s57, {vr(vL)}")
    a(f"v_add_u32 {vr(vE)}, {EXB}, {vr(vH)}")
    a("s_lshr_b32 s57, s49, 1")
    a("s_lshl_b32 s57, s57, 11")
    a("s_lshl_b32 s58, s55, 10")
    a("s_add_u32 s57, s57, s58")
    a("s_and_b32 s58, s56, 3")
    a("s_lshl_b32 s58, s58, 2")
    a("s_add_u32 s57, s57, s58")
    a(f"s_add_u32 s57, s57, {WS_F+65536}")
    a(f"s_mul_i32 s56, s56, {144*1024}")
    a("s_lshl_b32 s58, s55, 14")
    a("s_add_u32 s56, s56, s58")
    a(f"s_add_u32 s56, s56, {WS_A+112*1024}")
    srd(a, 36, 18, 2048*448*2)
    flag_store(2)
    st()
    a("s_cmp_ge_u32 s50, 7")
    a("s_cbranch_scc1 L_c_end")
    for i in range(4):
        a.vm(f"buffer_load_dwordx2 {vr(XRS+2*i,2)}, v7, s[28:31], 0 offen offset:{16*i}", "x")
    a("s_barrier")
    def wrd(k):
        stp, ct = k//2, k % 2
        row = 28*(stp//2) + 16*(stp % 2)
        for r_ in range(2):
            a.lg(f"ds_read_b64_tr_b16 {vr(WF+4*(k%10)+2*r_,2)}, {vr(vT0+ct)} offset:{(row+8*r_)*128}", ("w", k))
    for k in range(7): wrd(k)
    poll(a, "L_p3", f"v{TP}", vr(vP), "s[24:27]", "s57", 1)
    st()
    for i in range(16):
        if i and i % 4 == 0: a("s_add_u32 s56, s56, 4096")
        a.vm(f"buffer_load_dwordx4 {vr(OF+4*i,4)}, {vr(vL)}, s[24:27], s56 offen offset:{1024*(i%4)} {SC1}", ("o", i))
    a("s_mov_b32 s51, 0xffff0000")
    for i in range(8):
        a(f"v_lshlrev_b32 v{ACC+2*i}, 16, v{XRS+i}")
        a(f"v_and_b32 v{ACC+2*i+1}, s51, v{XRS+i}")
    a.wait(lg="all")
    a("s_barrier")
    PT = 168
    for u in range(4):
        if u == 3:
            a.wait(lg=("p", 0))
            for r in range(16): a(f"v_add_f32 v{ACC+r}, v{ACC+r}, v{PT+r}")
        for q in range(4):
            a.lg(f"ds_read_b128 {vr(PT+16*u+4*q,4)}, {vr(vH)} offset:{u*16384+q*1024}", ("p", u))
    for u in range(1, 4):
        a.wait(lg=("p", u))
        for r in range(16): a(f"v_add_f32 v{ACC+r}, v{ACC+r}, v{PT+16*u+r}")
    st()
    for k in range(32):
        stp, ct = k//2, k % 2
        if ct == 0: a.wait(vm=("o", stp), lg=("w", k+1))
        acc = vr(ACC+16*ct, 16)
        if k == 0: a("s_nop 0")
        a(f"v_mfma_f32_32x32x16_bf16 {acc}, {vr(WF+4*(k%10),4)}, {vr(OF+4*stp,4)}, {'0' if k==1 else acc}")
        if k + 7 < 32: wrd(k+7)
    a(f"v_xor_b32 v7, 4096, {vr(vE)}")
    a("s_nop 7"); a("s_nop 3")
    for q in range(4): a(f"ds_write_b128 v7, {vr(ACC+16+4*q,4)} offset:{q*1024}")
    a("s_waitcnt lgkmcnt(0)")
    a("s_barrier")
    for q in range(4): a.lg(f"ds_read_b128 {vr(PT+4*q,4)}, {vr(vE)} offset:{q*1024}", ("e", q))
    for hq in range(2):
        a.wait(lg=("e", 2*hq+1))
        for r in range(8*hq, 8*hq+8): a(f"v_add_f32 v{ACC+r}, v{ACC+r}, v{PT+r}")
        for r in range(4*hq, 4*hq+4): a(f"v_cvt_pk_bf16_f32 v{OF+r}, v{ACC+2*r}, v{ACC+2*r+1}")
        a("s_nop 1")
        b = 4*hq
        a(f"v_permlane32_swap_b32 v{OF+b}, v{OF+b+2}")
        a(f"v_permlane32_swap_b32 v{OF+b+1}, v{OF+b+3}")
        a(f"buffer_store_dwordx4 {vr(OF+b,4)}, {vr(vO)}, s[36:39], 0 offen offset:{32*hq}")
    a("L_c_end:")
    st.flush(63, 8)
    a("L_end:")
    a("s_endpgm")
    a("L_hflag:")
    a.vmq = ["st"]
    flag_store(1)
    a("s_branch L_hflag_x")
    a("L_slow:")
    a("s_lshl_b32 s56, s46, 18")
    a(f"s_add_u32 s56, s56, {WS_KV}")
    a("s_mov_b32 s57, s56")
    a("s_mov_b32 s55, 64")
    a(f"v_mov_b32 v{T+2}, 0xff800000")
    a("L_slow1:")
    for j in range(2): a(f"buffer_load_dwordx4 {vr(KV+4*j,4)}, {vr(vL)}, s[24:27], s57 offen offset:{1024*j} {SC1}")
    a("s_waitcnt vmcnt(0)")
    a(qk(0, 0)); a(qk(0, 1))
    a("s_nop 7"); a("s_nop 7")
    for r in range(8): a(f"v_max3_f32 v{T+2}, v{S+2*r}, v{S+2*r+1}, v{T+2}")
    a("s_add_u32 s57, s57, 4096")
    a("s_sub_u32 s55, s55, 1"); a("s_cmp_lg_u32 s55, 0")
    a("s_cbranch_scc1 L_slow1")
    a(f"v_mov_b32 v{T+3}, v{T+2}")
    a("s_nop 1")
    a(f"v_permlane32_swap_b32 v{T+3}, v{T+2}")
    a("s_nop 1")
    a(f"v_max_f32 v{T+2}, v{T+2}, v{T+3}")
    for r in range(16): a(f"v_mov_b32 v{O+r}, 0")
    a("s_mov_b32 s55, 64")
    a("L_slow2:")
    for j in range(4): a(f"buffer_load_dwordx4 {vr(KV+4*j,4)}, {vr(vL)}, s[24:27], s56 offen offset:{1024*j} {SC1}")
    a("s_waitcnt vmcnt(0)")
    a(qk(0, 0)); a(qk(0, 1))
    a("s_nop 7"); a("s_nop 7")
    for r in range(16): a(f"v_sub_f32 v{S+r}, v{S+r}, v{T+2}")
    for r in range(16): a(f"v_exp_f32 v{S+r}, v{S+r}")
    a("s_nop 0")
    for r in range(8): a(f"v_cvt_pk_bf16_f32 v{PP+r}, v{S+2*r}, v{S+2*r+1}")
    a("s_nop 1")
    a(pv(0)); a(pv(1))
    a("s_add_u32 s56, s56, 4096")
    a("s_sub_u32 s55, s55, 1"); a("s_cmp_lg_u32 s55, 0")
    a("s_cbranch_scc1 L_slow2")
    a("s_nop 7"); a("s_nop 7")
    a(f"v_mov_b32 v{T}, v{O+12}")
    a(f"v_mov_b32 v{T+1}, v{O+12}")
    a("s_nop 1")
    a(f"v_permlane32_swap_b32 v{T}, v{T+1}")
    a("s_nop 1")
    a(f"v_rcp_f32 v{T}, v{T+1}")
    a("s_nop 0")
    a("s_branch L_fin")

def gen_h(a, st):
    a.vmq = []; a.lgq = []
    a("L_helper:")
    X0 = 16; vDF = 1; vX = 8; vXW = 12; vL = 13; vR = 14; vNB = 15; t = 128; SINK = 255
    a("s_setprio 1")
    a(f"v_lshrrev_b32 v{t}, 2, v0")
    a(f"v_lshlrev_b32 v{t}, 15, v{t}")
    a(f"v_and_b32 v{t+1}, 3, v0")
    a(f"v_lshl_add_u32 v{t}, v{t+1}, 2, v{t}")
    a("s_lshl_b32 s51, s44, 20")
    a(f"v_add_u32 v{t}, s51, v{t}")
    a("s_lshl_b32 s59, s45, 4")
    a("s_add_u32 s59, s59, s46")
    a("s_lshl_b32 s59, s59, 7")
    a(f"s_add_u32 s59, s59, {WS_F}")
    a(f"v_mov_b32 v{t+1}, 0")
    a.vm(f"buffer_store_dword v{t+1}, v{t}, s[24:27], s59 offen {SC1}", "z")
    a(f"v_lshrrev_b32 v{t+2}, 3, v0")
    a("s_lshl_b32 s51, s52, 5")
    a(f"v_add_u32 v{t+2}, s51, v{t+2}")
    a(f"v_mul_u32_u24 v{t+2}, 896, v{t+2}")
    a(f"v_lshrrev_b32 v{t+3}, 4, v0")
    a(f"v_and_b32 v{t+4}, 7, v0")
    a(f"v_xor_b32 v{t+3}, v{t+3}, v{t+4}")
    a(f"v_lshl_add_u32 {vr(vX)}, v{t+3}, 4, v{t+2}")
    a(f"v_xor_b32 v{t+3}, 64, {vr(vX)}")
    a(f"v_add_u32 {vr(vX+1)}, {6144}, v{t+3}")
    a(f"v_add_u32 {vr(vX+2)}, {2*6144}, {vr(vX)}")
    a(f"v_add_u32 {vr(vX+3)}, {3*6144}, v{t+3}")
    a(f"s_mul_i32 s56, s44, 28672")
    a(f"s_add_u32 s56, s56, {XS}")
    for cb in range(7):
        a(f"s_add_u32 m0, s56, {cb*4096}")
        a(f"s_movk_i32 s55, {cb*128}")
        for rg in range(4):
            a.vm(f"buffer_load_dwordx4 {vr(vX+rg)}, s[28:31], s55 offen offset:{rg*1024} lds", ("x", cb))
    a(f"v_and_b32 v{t+2}, 31, v0")
    a(f"v_lshlrev_b32 v{t+3}, 7, v{t+2}")
    a(f"v_add_u32 v{t+3}, s56, v{t+3}")
    a(f"v_bfe_u32 v{t+2}, v0, 1, 3")
    a(f"v_lshrrev_b32 v{t+4}, 5, v0")
    a(f"v_xor_b32 v{t+2}, v{t+2}, v{t+4}")
    a(f"v_lshl_add_u32 {vr(vX)}, v{t+2}, 4, v{t+3}")
    for sp in range(1, 4): a(f"v_xor_b32 {vr(vX+sp)}, {32*sp}, {vr(vX)}")
    a(f"v_lshlrev_b32 {vr(vL)}, 4, v0")
    a("s_lshl_b32 s51, s44, 12")
    a(f"s_add_u32 s51, s51, {XN}")
    a(f"v_add_u32 {vr(vXW)}, s51, {vr(vL)}")
    for i in range(4): a(f"v_mov_b32 v{t+4+i}, 0")
    a(f"v_mov_b32 v{t+8}, 0x3f803f80")
    a("s_mov_b32 s61, 0xffff0000")
    srd(a, 36, 20, 256)
    st()
    def dots(cb):
        for r in range(X0+16*cb, X0+16*cb+16):
            a(f"v_dot2c_f32_bf16 v{t+4+(r&1)}, v{r}, v{t+8}")
            a(f"v_dot2c_f32_bf16 v{t+6+(r&1)}, v{r}, v{r}")
    for cb in range(7):
        a.wait(vm=("x", cb))
        for sp in range(4):
            a.lg(f"ds_read_b128 {vr(X0+16*cb+4*sp,4)}, {vr(vX+sp)} offset:{cb*4096}", cb)
        if cb:
            a.wait(lg=cb-1); dots(cb-1)
    a.wait(lg="all")
    a("s_barrier")
    st()
    dots(6)
    a("s_lshl_b32 s51, s44, 6")
    a(f"v_add_u32 v{t}, s51, v0")
    a(f"v_lshlrev_b32 v{t}, 8, v{t}")
    a(f"v_mov_b32 v{t+1}, 1")
    a("s_lshl_b32 s51, s45, 4")
    a(f"v_add_f32 v{t+4}, v{t+4}, v{t+5}")
    a(f"v_add_f32 v{t+6}, v{t+6}, v{t+7}")
    a(f"v_mov_b32 v{t+5}, v{t+4}")
    a(f"v_mov_b32 v{t+7}, v{t+6}")
    a.vm(f"buffer_atomic_add v{t+1}, v{t}, s[36:39], s51 offen {SC1}", "at")
    a("s_nop 0")
    a(f"v_permlane32_swap_b32 v{t+5}, v{t+4}")
    a(f"v_permlane32_swap_b32 v{t+7}, v{t+6}")
    a("s_nop 1")
    a(f"v_add_f32 v{t+4}, v{t+4}, v{t+5}")
    a(f"v_add_f32 v{t+6}, v{t+6}, v{t+7}")
    a(f"v_mul_f32 v{t+4}, {f2u(1/448):#x}, v{t+4}")
    a(f"v_mul_f32 v{t+6}, {f2u(1/448):#x}, v{t+6}")
    a(f"v_fma_f32 v{t+6}, -v{t+4}, v{t+4}, v{t+6}")
    a(f"v_max_f32 v{t+6}, 0, v{t+6}")
    a(f"v_add_f32 v{t+6}, {f2u(1e-5):#x}, v{t+6}")
    a(f"v_rsq_f32 {vr(vR)}, v{t+6}")
    a("s_nop 0")
    a(f"v_mul_f32 v{t+4}, v{t+4}, {vr(vR)}")
    a(f"v_sub_f32 {vr(vNB)}, 0, v{t+4}")
    def xn_write(g, sp, addr, off):
        a(f"ds_write_b128 {addr}, {vr(X0+16*g+4*sp,4)} offset:{off+sp*1024}")
    for g in range(7):
        for sp in range(4):
            for i in range(4):
                r = X0 + 16*g + 4*sp + i; q = t + 10 + 2*i
                a(f"v_lshlrev_b32 v{q}, 16, v{r}"); a(f"v_and_b32 v{q+1}, s61, v{r}")
            for i in range(8): a(f"v_fma_f32 v{t+10+i}, v{t+10+i}, {vr(vR)}, {vr(vNB)}")
            for i in range(4): a(f"v_cvt_pk_bf16_f32 v{X0+16*g+4*sp+i}, v{t+10+2*i}, v{t+11+2*i}")
            xn_write(g, sp, vr(vXW), ((g+1) % 2)*16384)
        a("s_waitcnt lgkmcnt(0)")
        a("s_barrier")
        if g in (0, 6): st()
    a("s_setprio 0")
    for sp in range(4): xn_write(0, sp, vr(vXW), 0)
    ffn_dma_addr(a, vDF, t)
    a("s_waitcnt lgkmcnt(0)")
    a("s_barrier")
    srd(a, 28, 16, 1792*448*2)
    srd(a, 40, 8, 448*448*2)
    for g in range(5):
        for sp in range(4): xn_write(g+1, sp, vr(vXW), ((g+1) % 2)*16384)
        if g == 4:
            a(f"v_subrev_u32 v{t}, {XN-XN6}, {vr(vXW)}")
            for sp in range(4): xn_write(6, sp, f"v{t}", 0)
        if g <= 3:
            for op in ffn_dma_ops(g+3, vDF): emit(a, op)
        if g == 0 and cfg.PF:
            a(f"v_lshlrev_b32 v{t}, 7, v0")
            a(f"v_min_u32 v{t+1}, 33, v0")
            a(f"v_lshlrev_b32 v{t+1}, 7, v{t+1}")
            a(f"v_min_u32 v{t+2}, 24, v0")
            a(f"v_lshlrev_b32 v{t+2}, 7, v{t+2}")
            a("s_lshl_b32 s51, s47, 2")
            a("s_add_u32 s51, s51, s44")
            a(f"s_mul_i32 s51, s51, {98*128}")
            a.vm(f"buffer_load_dword v{SINK}, v{t}, s[28:31], s51 offen", "pf")
            a(f"s_add_u32 s51, s51, {64*128}")
            a.vm(f"buffer_load_dword v{SINK}, v{t+1}, s[28:31], s51 offen", "pf")
            a(f"s_mul_i32 s51, s47, {98*128}")
            a(f"s_mul_i32 s55, s44, {25*128}")
            a("s_add_u32 s51, s51, s55")
            a.vm(f"buffer_load_dword v{SINK}, v{t+2}, s[40:43], s51 offen", "pf")
        if g == 4:
            a(f"v_and_b32 v{t+1}, 15, v0")
            a(f"v_lshlrev_b32 v{t+1}, 4, v{t+1}")
            poll(a, "L_p0", f"v{t+2}", f"v{t+1}", "s[36:39]", "0", 16)
        if g + 1 >= 3: a.wait(vm=("F", g+1))
        a("s_waitcnt lgkmcnt(0)")
        a("s_barrier")
    st()
    ACC = 16; HR = 80; W = 144; NS = 8
    vD = 1; vD2 = 2; vT0 = 3; vT1 = 4; vP = 5
    a(f"v_lshrrev_b32 {vr(vP)}, 2, v0")
    a(f"v_lshlrev_b32 {vr(vP)}, 11, {vr(vP)}")
    a(f"v_and_b32 v{t+40}, 3, v0")
    a(f"v_lshl_add_u32 {vr(vP)}, v{t+40}, 2, {vr(vP)}")
    a("s_lshl_b32 s51, s46, 7")
    a(f"s_add_u32 s51, s51, {WS_F}")
    a("s_lshl_b32 s56, s46, 18")
    a("s_lshl_b32 s57, s44, 12")
    a("s_add_u32 s56, s56, s57")
    a(f"s_add_u32 s56, s56, {WS_KV}")
    a(f"s_add_u32 s57, s57, {KVR}")
    a("s_and_b32 s58, s45, 7")
    a("s_lshl_b32 s58, s58, 15")
    poll(a, "L_p1", f"v{t+40}", vr(vP), "s[24:27]", "s51", 1)
    st()
    def kv_dma(G):
        a(f"s_add_u32 m0, s57, {(G%4)*16384}")
        a("s_add_u32 s55, s56, s58")
        for j in range(4):
            a.vm(f"buffer_load_dwordx4 {vr(vL)}, s[24:27], s55 offen offset:{1024*j} {SC1} lds", ("kv", G))
        a("s_add_u32 s58, s58, 16384")
        a("s_and_b32 s58, s58, 0x3ffff")
    for G in range(3): kv_dma(G)
    u = t + 40
    a(f"v_lshrrev_b32 v{u}, 3, v0")
    a(f"v_bfe_u32 v{u+1}, v0, 4, 1")
    a(f"v_lshlrev_b32 v{u+1}, 2, v{u+1}")
    a(f"v_and_b32 v{u+2}, 7, v0")
    a(f"v_xor_b32 v{u+2}, v{u+2}, v{u+1}")
    a(f"v_mul_u32_u24 v{u}, 896, v{u}")
    a(f"v_lshl_add_u32 v{u}, v{u+2}, 4, v{u}")
    a("s_lshl_b32 s51, s50, 7")
    a(f"v_add_u32 {vr(vD)}, s51, v{u}")
    a(f"v_add_u32 {vr(vD2)}, {8*896-1024}, {vr(vD)}")
    a(f"v_bfe_u32 v{u}, v0, 2, 2")
    a(f"v_lshrrev_b32 v{u+1}, 5, v0")
    a(f"v_lshl_add_u32 v{u+1}, v{u+1}, 2, v{u}")
    a(f"v_lshlrev_b32 v{u+1}, 7, v{u+1}")
    a(f"v_and_b32 v{u+2}, 3, v0")
    a(f"v_lshl_add_u32 v{u+1}, v{u+2}, 3, v{u+1}")
    a(f"v_bfe_u32 v{u+2}, v0, 4, 1")
    a(f"v_lshl_add_u32 v{u+1}, v{u+2}, 5, v{u+1}")
    a(f"v_lshrrev_b32 v{u}, 1, v{u}")
    a(f"v_lshl_add_u32 v{u+1}, v{u}, 6, v{u+1}")
    a("s_lshl_b32 s53, s44, 14")
    a(f"v_add_u32 {vr(vT0)}, s53, v{u+1}")
    a(f"v_xor_b32 {vr(vT1)}, 64, {vr(vT0)}")
    a(f"v_lshrrev_b32 {vr(vP)}, 2, v0")
    a(f"v_lshlrev_b32 {vr(vP)}, 7, {vr(vP)}")
    a(f"v_and_b32 v{u}, 1, v0")
    a(f"v_lshl_add_u32 {vr(vP)}, v{u}, 2, {vr(vP)}")
    a("s_lshr_b32 s59, s49, 1")
    a("s_lshl_b32 s59, s59, 11")
    a("s_and_b32 s51, s49, 1")
    a("s_lshl_b32 s51, s51, 3")
    a("s_add_u32 s59, s59, s51")
    a(f"s_add_u32 s59, s59, {WS_F+32768}")
    a(f"s_mul_i32 s60, s49, {2*144*1024}")
    a(f"s_mul_i32 s51, s44, {28*1024}")
    a("s_add_u32 s60, s60, s51")
    a(f"s_add_u32 s60, s60, {WS_A}")
    a(f"s_mul_i32 s61, s44, {448*896}")
    a("s_lshl_b32 s54, s50, 2")
    a(f"v_add_u32 v6, {144*1024}, {vr(vL)}")
    a.wait(vm=("kv", 0))
    a("s_barrier")
    a("s_cmp_ge_u32 s50, 7")
    a("s_cbranch_scc1 L_h_idle")
    saved_vm = list(a.vmq)
    def loads(i):
        sl = i % NS
        if i % 4 == 0:
            if i:
                a("s_add_u32 s54, s54, 4")
                a("s_cmp_ge_u32 s54, 28")
                a("s_cselect_b32 s54, 0, s54")
            a(f"s_mul_i32 s4, s54, {16*896}")
            a("s_add_u32 s4, s4, s61")
            a("s_lshl_b32 s5, s54, 10")
            a("s_add_u32 s5, s5, s60")
        else:
            a(f"s_add_u32 s4, s4, {16*896}")
        a(f"s_add_u32 m0, s53, {sl*2048}")
        a.vm(f"buffer_load_dwordx4 {vr(HR+8*sl,4)}, {vr(vL)}, s[24:27], s5 offen offset:{1024*(i%4)} {SC1}", ("d", i))
        a.vm(f"buffer_load_dwordx4 {vr(vD)}, s[28:31], s4 offen lds", ("d", i))
        a.vm(f"buffer_load_dwordx4 {vr(HR+8*sl+4,4)}, v6, s[24:27], s5 offen offset:{1024*(i%4)} {SC1}", ("d", i))
        a.vm(f"buffer_load_dwordx4 {vr(vD2)}, s[28:31], s4 offen offset:1024 lds", ("d", i))
    def reads(i):
        sl = i % NS
        for ct in range(2):
            for r_ in range(2):
                a.lg(f"ds_read_b64_tr_b16 {vr(W+8*(i&1)+4*ct+2*r_,2)}, {vr(vT0+ct)} offset:{sl*2048+r_*1024}", i)
    state = {"rd": 0}
    def step(i, ahead):
        if state["rd"] == i:
            a.wait(vm=("d", i)); reads(i); state["rd"] = i+1
        if ahead and i + 1 < 28:
            a.wait(vm=("d", i+1)); reads(i+1); state["rd"] = i+2
        a.wait(lg=i)
        sl = i % NS
        for tt in range(2):
            for ct in range(2):
                acc = vr(ACC+16*(ct+2*tt), 16)
                a(f"v_mfma_f32_32x32x16_bf16 {acc}, {vr(W+8*(i&1)+4*ct,4)}, {vr(HR+8*sl+4*tt,4)}, {'0' if i==0 else acc}")
            if tt == 0 and i + NS - 1 < 28: loads(i + NS - 1)
    def wo_dma(lo, n):
        a(f"s_mul_i32 s51, s44, {n*1024}")
        a(f"s_mul_i32 s55, s44, {n*8*896}")
        for k in range(0, n, 2):
            a(f"s_add_u32 m0, s51, {WOS+(lo+k)*1024}")
            a(f"s_add_u32 s6, s55, {(lo+k)*8*896}")
            a.vm(f"buffer_load_dwordx4 {vr(vD)}, s[40:43], s6 offen lds", "wo")
            a.vm(f"buffer_load_dwordx4 {vr(vD2)}, s[40:43], s6 offen offset:1024 lds", "wo")
    i = 0
    for G in range(16):
        if G < 15: a.wait(vm=("kv", G+1))
        a("s_barrier")
        if G + 3 < 16: kv_dma(G+3)
        if G == 13: wo_dma(0, 6)
        if G == 14: wo_dma(24, 4)
        if G == 15: wo_dma(40, 4)
        if G == cfg.H_START:
            st()
            poll(a, "L_p2", f"v{u}", vr(vP), "s[24:27]", "s59", 1)
            st()
            for k in range(NS-1): loads(k)
        n = cfg.STEPS.get(G, 0)
        for k in range(n):
            step(i, ahead=(k + 1 < n or G == 15)); i += 1
    st()
    for k in range(getattr(cfg, "PRE_T0", 4)):
        if i < 28:
            step(i, True); i += 1
    a.wait(vm="wo")
    a("s_barrier")
    while i < 28:
        step(i, True); i += 1
    a(f"v_add_u32 v6, s53, {vr(vL)}")
    st()
    a("s_nop 7"); a("s_nop 3")
    for tl in range(4):
        for q in range(4):
            a(f"ds_write_b128 v6, {vr(ACC+16*tl+4*q,4)} offset:{tl*4096+q*1024}")
    a("s_waitcnt lgkmcnt(0)")
    a("s_barrier")
    a("L_h_end:")
    st.flush(63, 8)
    a("s_endpgm")
    a("L_h_idle:")
    a.vmq = saved_vm
    for G in range(16):
        if G < 15: a.wait(vm=("kv", G+1))
        a("s_barrier")
        if G + 3 < 16: kv_dma(G+3)
    a("s_branch L_h_end")
    a("L_code_end:")

def build():
    a = Asm()
    st = Stamps(a, 0, 22)
    common(a, st)
    n0 = st.n
    gen_c(a, st)
    st.n = n0
    gen_h(a, st)
    s = f"; @launch grid=(256,1,1) block=(512,1,1) lds={LDS}\n"
    s += '.amdgcn_target "amdgcn-amd-amdhsa--gfx950"\n.text\n' + kernel_head(NAME) + a.text()
    s += '.section .rodata,"a"\n' + kernel_desc(NAME, 256, 256)
    return s
if __name__ == "__main__":
    asmlib.STAMP = "--stamp" in sys.argv
    open(sys.argv[1], "w").write(build())
```

```python
class Asm:
    def __init__(self):
        self.L = []
        self.vmq = []
        self.lgq = []
    def __call__(self, s):
        for ln in s.split("\n"):
            ln = ln.strip()
            if ln:
                self.L.append(("" if ln.endswith(":") else "    ") + ln)
    def raw(self, s):
        self.L.append(s)
    def vm(self, s, tag=None):
        self(s); self.vmq.append(tag)
    def lg(self, s, tag=None):
        self(s); self.lgq.append(tag)
    def _cnt(self, q, tag):
        idx = [i for i, t in enumerate(q) if t == tag]
        if not idx:
            return None
        return len(q) - 1 - idx[-1]
    def wait(self, vm=None, lg=None):
        parts = []
        if vm is not None:
            n = 0 if vm == "all" else self._cnt(self.vmq, vm)
            if n is not None and (self.vmq or vm == "all"):
                assert n <= 63, n
                parts.append(f"vmcnt({n})")
                self.vmq = self.vmq[len(self.vmq) - n:] if n else []
        if lg is not None:
            n = 0 if lg == "all" else self._cnt(self.lgq, lg)
            if n is not None and (self.lgq or lg == "all"):
                n = min(n, 14)
                parts.append(f"lgkmcnt({n})")
                self.lgq = self.lgq[len(self.lgq) - n:] if n else []
        if parts:
            self("s_waitcnt " + " ".join(parts))
    def text(self):
        return "\n".join(self.L) + "\n"

def vr(b, n=1):
    return f"v{b}" if n == 1 else f"v[{b}:{b+n-1}]"
def ar(b, n=1):
    return f"a{b}" if n == 1 else f"a[{b}:{b+n-1}]"
def sr(b, n=1):
    return f"s{b}" if n == 1 else f"s[{b}:{b+n-1}]"

def srd(a, d, base, nbytes):
    a(f"s_mov_b32 s{d}, s{base}")
    a(f"s_mov_b32 s{d+1}, s{base+1}")
    a(f"s_mov_b32 s{d+2}, {nbytes}")
    a(f"s_mov_b32 s{d+3}, 0x00020000")

def kernel_head(name):
    return f""".globl {name}
.p2align 8
.type {name},@function
{name}:
"""
def kernel_desc(name, nvgpr, accum, nsgpr=96):
    return f""".p2align 6
.amdhsa_kernel {name}
  .amdhsa_next_free_vgpr {nvgpr}
  .amdhsa_next_free_sgpr {nsgpr}
  .amdhsa_accum_offset {accum}
  .amdhsa_group_segment_fixed_size 0
  .amdhsa_kernarg_size 80
  .amdhsa_user_sgpr_count 2
  .amdhsa_user_sgpr_kernarg_segment_ptr 1
  .amdhsa_system_sgpr_workgroup_id_x 1
.end_amdhsa_kernel
"""

STAMP = False
STAMP_REAL = False
STAMP_SEL = None
STAMP_WAIT = False
STAMP_BASE = 78
class Stamps:
    def __init__(self, a, kidx, wsreg):
        self.a = a; self.n = 0; self.names = []; self.kidx = kidx; self.ws = wsreg
    def __call__(self, wait=True, real=False, name=None):
        if not STAMP: return
        if name is not None and STAMP_SEL is not None and name not in STAMP_SEL: return
        if name is not None and STAMP_SEL is None and name.startswith("_"): return
        self.names.append(name)
        r = STAMP_BASE + 2*self.n; self.n += 1
        assert r + 1 < 102
        self.a(f"{'s_memrealtime' if (real or STAMP_REAL) else 's_memtime'} s[{r}:{r+1}]")
        if wait and (name is None or STAMP_WAIT):
            self.a("s_waitcnt lgkmcnt(0)"); self.a.lgq = []
    def flush(self, wave_sreg, nw=4):
        if not STAMP: return
        a = self.a
        a("s_waitcnt vmcnt(0) lgkmcnt(0)")
        self(real=False); self(real=True)
        a(f"s_mul_i32 s3, s2, {nw}")
        a(f"s_add_u32 s3, s3, s{wave_sreg}")
        a("s_lshl_b32 s3, s3, 6")
        a(f"s_add_u32 s3, s3, {(64<<20) + self.kidx*(1<<20)}")
        a("v_mov_b32 v2, s3")
        a("s_mov_b64 exec, 1")
        for i in range(self.n):
            a(f"v_mov_b32 v3, s{STAMP_BASE+2*i}")
            a(f"global_store_dword v2, v3, s[{self.ws}:{self.ws+1}] offset:{4*i}")
        a("s_waitcnt vmcnt(0)")
```

```python
import sys, math, struct
import asmlib
from asmlib import *
def f2u(x): return struct.unpack("<I", struct.pack("<f", x))[0]
NAME = "parallel_sum__softmax_full_mha__glu_gated_reglu__prompt_kernel"
WS_KV, WS_A, WS_F = 2<<20, 6<<20, 16<<20
WS_BYTES = WS_F + 3*32768
QSCALE = math.log2(math.e) / math.sqrt(28.0)
LDS = 163840
XS = 49152; AR = 28672
OU = 14336 + 128
FA = {"A": 9216, "B": 16512, "C": 0}
FSLOT = ["A", "B", "D", "C", "A", "B", "D"]
STO = 24576
CNT = 163776
GATE = lambda g: 4*g
CONS = lambda g: 32 + 4*g
HD = CNT + 48; HA = CNT + 52
GQ1 = 56; GQ2 = 60; CQ = 28; CQ2 = 0; HX = 44
VS0 = 32768; VS2 = 25600
WOS = 98304; NS = 6; RNG = NS*2048
CB1 = 49152; EXB = 65536
WS_Q = 0
class P: pass
cfg = P()
cfg.N1 = 16
cfg.N2 = 4
cfg.SPIN = 1 << 16
cfg.ROT = 2
cfg.V1 = 4; cfg.V2 = 5; cfg.V3 = 12
cfg.XA = 4; cfg.BX = 2
cfg.Q0 = 2; cfg.Q1 = 0
cfg.LPRE = 8
cfg.HPRE = 4
cfg.HSI = 2; cfg.PE = 2; cfg.WDP = [4, 5, 5]; cfg.F3 = 1
cfg.SLOTS = 6
cfg.W2 = 1
cfg.K0 = 24; cfg.LNG = 3
cfg.ALIGN = 5
cfg.PC = 0; cfg.PH2 = 1; cfg.PAD = 0
cfg.SIG = 1
SC1 = "sc1"

def poll(a, lab, vdst, voff, srd_, soff, want_ge, cnt="s62", sleep=2):
    a(f"s_mov_b32 {cnt}, 0")
    a(f"{lab}:")
    a(f"buffer_load_dword {vdst}, {voff}, {srd_}, {soff} offen sc1")
    a(f"s_add_u32 {cnt}, {cnt}, 1")
    a(f"s_waitcnt vmcnt(0)")
    a(f"v_cmp_le_u32 vcc, {want_ge}, {vdst}")
    a(f"s_cmp_gt_u32 {cnt}, {cfg.SPIN}")
    a(f"s_cbranch_scc1 {lab}_x")
    a(f"s_nop 1")
    a(f"s_cmp_eq_u64 vcc, -1")
    a(f"s_cbranch_scc1 {lab}_x")
    a(f"s_sleep {sleep}")
    a(f"s_branch {lab}")
    a(f"{lab}_x:")
    a.vmq = []
def lds_wait(a, lab, vaddr, vdst, n, sleep=0, off=0):
    a(f"{lab}:")
    if sleep: a(f"s_sleep {sleep}")
    a(f"ds_read_b32 {vdst}, {vaddr} offset:{off}")
    a("s_waitcnt lgkmcnt(0)")
    a(f"v_cmp_gt_u32 vcc, {n}, {vdst}")
    a("s_nop 3")
    a(f"s_cbranch_vccnz {lab}")
    a.lgq = []

def common(a, st):
    a("s_cmp_ge_u32 s2, 256")
    a("s_cbranch_scc1 L_end")
    st(wait=False, real=True); st(wait=False)
    a("s_load_dwordx8 s[4:11], s[0:1], 0")
    a("s_load_dwordx8 s[12:19], s[0:1], 32")
    a("s_load_dwordx4 s[20:23], s[0:1], 64")
    a("v_lshrrev_b32 v1, 6, v0")
    a("v_and_b32 v0, 63, v0")
    a("v_readfirstlane_b32 s63, v1")
    a("s_and_b32 s48, s2, 7")
    a("s_lshr_b32 s47, s2, 3")
    a("s_lshr_b32 s50, s47, 2")
    a("s_and_b32 s51, s47, 3")
    a("s_and_b32 s44, s63, 3")
    a("s_cmp_ge_u32 s63, 4")
    a("s_cbranch_scc1 L_helper")
def mapping(a):
    a("s_and_b32 s46, s48, 3")
    a("s_lshl_b32 s46, s46, 2")
    a("s_add_u32 s46, s46, s51")
    a("s_lshr_b32 s45, s48, 2")
    a("s_lshl_b32 s45, s45, 3")
    a("s_add_u32 s45, s45, s50")
    a("s_lshl_b32 s49, s48, 2")
    a("s_add_u32 s49, s49, s51")
    a("s_lshl_b32 s3, s51, 1")
    a("s_add_u32 s64, s3, s50")
    a("s_cmp_ge_u32 s64, 7")
    a("s_cselect_b32 s62, 7, 0")
    a("s_sub_u32 s64, s64, s62")
    if cfg.ROT == 2: a("s_mov_b32 s3, s64")
    if cfg.ROT == 0: a("s_mov_b32 s3, 0")
    a("s_lshl_b32 s52, s45, 2")
    a("s_add_u32 s52, s52, s44")
def emit(a, op):
    if op[1] == "vm": a.vm(op[0], op[2])
    elif op[1] == "lg": a.lg(op[0], op[2])
    else: a(op[0])
def wait_lg_tags(a, tags):
    n = min([c for c in (a._cnt(a.lgq, tg) for tg in tags) if c is not None], default=None)
    if n is not None:
        assert n <= 15
        a(f"s_waitcnt lgkmcnt({n})")
        a.lgq = a.lgq[len(a.lgq)-n:] if n else []
V = lambda s: (s, "v")

def lds_add(a, vaddr, vone, off, tag=None):
    a("s_mov_b64 exec, 1")
    a.lg(f"ds_add_u32 {vaddr}, {vone} offset:{off}", tag)
    a("s_mov_b64 exec, -1")
def ffn_setup(a, vDF, t):
    a("s_cmp_ge_u32 s44, 2")
    a("s_cselect_b32 s32, s14, s12")
    a("s_cselect_b32 s33, s15, s13")
    a(f"s_mov_b32 s34, {448*1792*2}")
    a("s_mov_b32 s35, 0x00020000")
    a("s_cselect_b32 s51, 128, 0")
    a(f"s_mul_i32 s53, s44, {AR}")
    a("s_add_u32 s53, s53, s51")
    a(f"s_add_u32 s53, s53, {XS}")
    a("s_mul_i32 s42, s44, 7168")
    a("s_add_u32 s42, s42, s51")
    a("s_and_b32 s51, s44, 1")
    a(f"s_mul_i32 s54, s51, {32*3584}")
    a("s_mul_i32 s51, s46, 224")
    for j in range(7):
        a(f"v_add_u32 v{t}, {64*j}, v0")
        a(f"v_mul_u32_u24 v{t+1}, 4682, v{t}")
        a(f"v_lshrrev_b32 v{t+1}, 16, v{t+1}")
        a(f"v_mul_u32_u24 v{t+2}, {3584-14*16}, v{t+1}")
        a(f"v_lshl_add_u32 v{t+2}, v{t}, 4, v{t+2}")
        if j % 4: a(f"v_subrev_u32 v{t+2}, {1024*(j%4)}, v{t+2}")
        a(f"v_add_u32 {vr(vDF+j)}, s51, v{t+2}")
def ffn_dma(a, g, vDF, lo=0, hi=7):
    if lo:
        base, off = ("s42", 0) if FSLOT[g] == "D" else ("s53", FA[FSLOT[g]])
        assert lo == 4
        a(f"s_add_u32 m0, {base}, {off+4096}")
        a(f"s_add_u32 s43, s3, {g}")
        a("s_cmp_ge_u32 s43, 7")
        a("s_cselect_b32 s62, 7, 0")
        a("s_sub_u32 s43, s43, s62")
        a(f"s_mul_i32 s43, s43, {64*3584}")
        a("s_add_u32 s43, s43, s54")
        for j in range(4, 7): a.vm(f"buffer_load_dwordx4 {vr(vDF+j)}, s[32:35], s43 offen offset:{1024*(j%4)} lds", ("F", g))
        return
    base, off = ("s42", 0) if FSLOT[g] == "D" else ("s53", FA[FSLOT[g]])
    a(f"s_add_u32 m0, {base}, {off}")
    a(f"s_add_u32 s43, s3, {g}")
    a("s_cmp_ge_u32 s43, 7")
    a("s_cselect_b32 s62, 7, 0")
    a("s_sub_u32 s43, s43, s62")
    a(f"s_mul_i32 s43, s43, {64*3584}")
    a("s_add_u32 s43, s43, s54")
    for j in range(hi):
        if j == 4:
            a(f"s_add_u32 m0, {base}, {off+4096}"); a("s_nop 0")
        a.vm(f"buffer_load_dwordx4 {vr(vDF+j)}, s[32:35], s43 offen offset:{1024*(j%4)} lds", ("F", g))
def xread_addr(a, vX, t):
    a(f"s_mul_i32 s56, s44, {AR}")
    a(f"s_add_u32 s56, s56, {XS}")
    a(f"v_and_b32 v{t}, 31, v0")
    a(f"v_lshlrev_b32 v{t+1}, 7, v{t}")
    a(f"v_add_u32 v{t+1}, s56, v{t+1}")
    a(f"v_bfe_u32 v{t}, v0, 1, 3")
    a(f"v_lshrrev_b32 v{t+2}, 5, v0")
    a(f"v_xor_b32 v{t}, v{t}, v{t+2}")
    a(f"v_lshl_add_u32 {vr(vX)}, v{t}, 4, v{t+1}")
    for sp in range(1, 4): a(f"v_xor_b32 {vr(vX+sp)}, {32*sp}, {vr(vX)}")
def ln_ops(X0, k, LT, vR, nt=2):
    ops = []
    for b in range(0, 4, nt):
        for i in range(nt):
            r = X0 + 4*k + b + i
            ops += [f"v_lshlrev_b32 v{LT+2*i}, 16, v{r}", f"v_and_b32 v{LT+2*i+1}, s61, v{r}"]
        ops += [f"v_fma_f32 v{LT+i}, v{LT+i}, v{vR}, v{vR+1}" for i in range(2*nt)]
        ops += [f"v_cvt_pk_bf16_f32 v{X0+4*k+b+i}, v{LT+2*i}, v{LT+2*i+1}" for i in range(nt)]
    return ops
def sigma(a, dst, src):
    if cfg.SIG:
        a(f"s_add_u32 s62, {src}, 4")
        a("s_bfe_u32 s62, s62, 0x10003")
        a(f"s_xor_b32 {dst}, {src}, s62")
    else:
        a(f"s_mov_b32 {dst}, {src}")

def gen_c(a, st):
    X0 = 16; AQ = 128; WR = 176; RING = 10
    AS = 216; vR = 220; vXD = 224; vX = 228; LT = 232; t = 240
    vTQ = 2; vL = 15; vDF = 249
    a("s_setprio 2")
    mapping(a)
    a(f"v_lshrrev_b32 v{t+2}, 3, v0")
    a("s_lshl_b32 s51, s52, 5")
    a(f"v_add_u32 v{t+2}, s51, v{t+2}")
    a(f"v_mul_u32_u24 v{t+2}, 896, v{t+2}")
    a(f"v_lshrrev_b32 v{t+3}, 4, v0")
    a(f"v_and_b32 v{t+4}, 7, v0")
    a(f"v_xor_b32 v{t+3}, v{t+3}, v{t+4}")
    a(f"v_lshl_add_u32 {vr(vXD)}, v{t+3}, 4, v{t+2}")
    a(f"v_xor_b32 v{t+3}, 64, {vr(vXD)}")
    a(f"v_add_u32 {vr(vXD+1)}, 6144, v{t+3}")
    a(f"v_add_u32 {vr(vXD+2)}, {2*6144}, {vr(vXD)}")
    a(f"v_add_u32 {vr(vXD+3)}, {3*6144}, v{t+3}")
    a(f"s_mul_i32 s64, s44, {AR}")
    a(f"s_add_u32 s64, s64, {XS}")
    a("s_lshl_b32 s55, s3, 7")
    a(f"s_mov_b32 s30, {2048*448*2}")
    a("s_mov_b32 s31, 0x00020000")
    a("s_mov_b32 m0, s64")
    a("s_waitcnt lgkmcnt(0)")
    a("s_mov_b32 s28, s4"); a("s_mov_b32 s29, s5")
    st(name="_c0")
    def xload(cb):
        for rg in range(4):
            a.vm(f"buffer_load_dwordx4 {vr(vXD+rg)}, s[28:31], s55 offen offset:{rg*1024} lds", ("x", cb))
        if cb < 6:
            a(f"s_add_u32 m0, s64, {(cb+1)*4096}")
            a("s_add_u32 s55, s55, 128"); a("s_cmp_ge_u32 s55, 896"); a("s_cselect_b32 s55, 0, s55")
    for cb in range(cfg.XA - 1): xload(cb)
    srd(a, 24, 22, WS_BYTES)
    ffn_setup(a, vDF, t)
    srd(a, 12, 20, 256)
    xread_addr(a, vX, t)
    a(f"v_lshlrev_b32 {vr(vL)}, 4, v0")
    a(f"v_lshrrev_b32 v{t+5}, 5, v0")
    sigma(a, "s60", "s46")
    a(f"v_bfe_u32 v{t+2}, v0, 2, 2")
    a(f"v_and_b32 v{t+3}, 3, v0")
    a(f"v_bfe_u32 v{t+4}, v0, 4, 1")
    a(f"v_lshlrev_b32 v{t+3}, 3, v{t+3}")
    a(f"v_lshl_add_u32 v{t+3}, v{t+4}, 5, v{t+3}")
    a(f"v_lshl_add_u32 v{t+6}, v{t+5}, 3, v{t+2}")
    a(f"v_mul_u32_u24 v{t+6}, 192, v{t+6}")
    a("s_and_b32 s51, s60, 1")
    a("s_lshl_b32 s51, s51, 3")
    a(f"v_add3_u32 {vr(vTQ)}, v{t+6}, v{t+3}, s51")
    a(f"v_add_u32 {vr(vTQ+1)}, {XS}, {vr(vTQ)}")
    a(f"v_add_u32 {vr(vTQ+2)}, {XS+2*AR}, {vr(vTQ)}")
    a(f"v_and_b32 v5, 31, v0")
    a(f"v_lshlrev_b32 v5, 6, v5")
    a(f"v_lshl_add_u32 v5, v{t+5}, 3, v5")
    a(f"v_bfe_u32 v6, v0, 1, 2")
    a(f"v_lshl_add_u32 v5, v6, 4, v5")
    a("s_lshl_b32 s51, s44, 12")
    a(f"s_add_u32 s51, s51, {VS0}")
    a("s_sub_u32 s65, s64, s51")
    a(f"s_add_u32 s65, s65, {VS2}")
    a(f"v_add_u32 v5, s51, v5")
    a(f"v_lshl_add_u32 v6, v{t+5}, 2, v{t+2}")
    a(f"v_lshrrev_b32 v7, 1, v6")
    a(f"v_lshlrev_b32 v7, 4, v7")
    a(f"v_xor_b32 v7, v7, v{t+3}")
    a(f"v_lshlrev_b32 v6, 6, v6")
    a(f"v_add3_u32 v6, v6, v7, s51")
    TY = [0, 1, 11]
    a("s_mov_b32 s20, s8"); a("s_mov_b32 s21, s9")
    a("s_mul_i32 s60, s60, 3")
    for i in range(3):
        a(f"s_add_u32 s51, s60, {i}")
        a(f"s_lshr_b32 s{TY[i]}, s51, 4")
        a("s_and_b32 s51, s51, 15")
        a("s_lshl_b32 s51, s51, 6")
        a("s_add_u32 s51, s51, s52")
        a("s_lshl_b32 s56, s51, 11")
        a("s_lshl_b32 s57, s51, 12")
        a(f"s_lshl_b32 s58, s{TY[i]}, 11")
        a("s_add_u32 s57, s57, s58")
        a(f"s_add_u32 s57, s57, {WS_KV-2048}")
        a(f"s_cmp_eq_u32 s{TY[i]}, 0")
        a(f"s_cselect_b32 s{8+i}, s56, s57")
        a(f"s_cselect_b32 s{36+i}, 0, 1.0")
    a("s_mov_b32 s40, 0"); a("s_mov_b32 s41, -1")
    for s_ in ("s_lshl_b32 s59, s45, 4", "s_add_u32 s59, s59, s46", "s_lshl_b32 s59, s59, 7", "s_lshl_b32 s51, s44, 2", "s_add_u32 s59, s59, s51", f"s_add_u32 s59, s59, {WS_F}",
               "v_lshlrev_b32 v13, 25, v0", "v_mov_b32 v14, 1", f"v_mov_b32 v12, {CNT}", f"s_mov_b32 s39, {f2u(QSCALE):#x}",
               "v_and_b32 v222, 15, v0", "v_lshlrev_b32 v222, 4, v222"): a(s_)
    for i in range(4): a(f"v_mov_b32 v{AS+i}, 0")
    a(f"v_mov_b32 v{t+8}, 0x3f803f80")
    a("s_mov_b32 s61, 0xffff0000")
    a(f"v_lshlrev_b32 v11, 3, v0")
    a(f"v_add_u32 v11, s64, v11")
    st(name="setup")
    xload(cfg.XA - 1)
    def dots(cb):
        for r in range(X0+16*cb, X0+16*cb+16):
            a(f"v_dot2c_f32_bf16 v{AS+(r&1)}, v{r}, v{t+8}")
            a(f"v_dot2c_f32_bf16 v{AS+2+(r&1)}, v{r}, v{r}")
    for cb in range(7):
        a.wait(vm=("x", cb))
        st(name=("" if cb == 6 else "_") + f"x{cb}")
        for sp in range(4): a.lg(f"ds_read_b128 {vr(X0+16*cb+4*sp,4)}, {vr(vX+sp)} offset:{cb*4096}", ("x", cb))
        if cb + cfg.XA < 7: xload(cb + cfg.XA)
        if cb == cfg.BX: a("s_barrier")
        if cb:
            a.wait(lg=("x", cb-1)); dots(cb-1)
    a.wait(lg="all")
    a("s_barrier")
    dots(6)
    a(f"s_mov_b32 s51, {f2u(1/448):#x}")
    a(f"s_mov_b32 s55, {f2u(1e-5):#x}")
    a("s_nop 0")
    a(f"v_add_f32 v{AS}, v{AS}, v{AS+1}")
    a(f"v_add_f32 v{AS+2}, v{AS+2}, v{AS+3}")
    a(f"v_mov_b32 v{AS+1}, v{AS}")
    a(f"v_mov_b32 v{AS+3}, v{AS+2}")
    a("s_nop 1")
    a(f"v_permlane32_swap_b32 v{AS+1}, v{AS}")
    a(f"v_permlane32_swap_b32 v{AS+3}, v{AS+2}")
    a("s_nop 1")
    a(f"v_add_f32 v{AS}, v{AS}, v{AS+1}")
    a(f"v_add_f32 v{AS+2}, v{AS+2}, v{AS+3}")
    a(f"v_mul_f32 v{AS}, s51, v{AS}")
    a(f"v_mul_f32 v{AS+2}, s51, v{AS+2}")
    a(f"v_fma_f32 v{AS+2}, -v{AS}, v{AS}, v{AS+2}")
    a(f"v_max_f32 v{AS+2}, 0, v{AS+2}")
    a(f"v_add_f32 v{AS+2}, s55, v{AS+2}")
    a(f"v_rsq_f32 v{vR}, v{AS+2}")
    a("s_nop 0")
    a(f"v_mul_f32 v{vR+1}, -v{AS}, v{vR}")
    st(name="_t0")
    def frag(f):
        g, sp, tl = f // 12, (f % 12) // 3, f % 3
        reg = WR + 4*(f % RING)
        for rd in range(2):
            if g < 4: ad, off = vTQ, g*12288 + 16*sp*192
            else: ad, off = vTQ + 1 + sp//2, (sp % 2)*AR + (g-4)*3072
            a.lg(f"ds_read_b64_tr_b16 {vr(reg+2*rd,2)}, {vr(ad)} offset:{off + 4*rd*192 + tl*56}", ("f", f))
    a.raw(".p2align 3")
    for k in range(cfg.LPRE - 1):
        for i in range(4):
            r = X0 + 4*k + i
            a(f"v_lshlrev_b32 v{LT+2*i}, 16, v{r}"); a(f"v_and_b32 v{LT+2*i+1}, s61, v{r}")
        for i in range(4): a(f"v_pk_fma_f32 {vr(LT+2*i,2)}, {vr(LT+2*i,2)}, {vr(vR,2)}, {vr(vR,2)} op_sel:[0,0,1] op_sel_hi:[1,0,1]")
        for i in range(4): a(f"v_cvt_pk_bf16_f32 v{X0+4*k+i}, v{LT+2*i}, v{LT+2*i+1}")
    st(name="_p0")
    a("s_barrier")
    st(name="b0")
    rp = 0
    a.lg(f"ds_write_b64 v11, {vr(vR,2)} offset:{STO}", "sto")
    for k in range(6): frag(rp); rp += 1
    for op in ln_ops(X0, cfg.LPRE - 1, LT, vR, 4): a(op)
    lq = []
    for k in range(cfg.LPRE, 28): lq += [(k, o) for o in ln_ops(X0, k, LT, vR, 4)]
    lim = 24
    for f in range(84):
        k, tl = f // 3, f % 3
        if tl == 0:
            assert not lq or lq[0][0] > k
            wait_lg_tags(a, [("f", f+2)])
        acc = vr(AQ + 16*tl, 16)
        a(f"v_mfma_f32_32x32x16_bf16 {acc}, {vr(WR+4*(f%RING),4)}, {vr(X0+4*k,4)}, {'0' if f < 3 else acc}")
        if f == 3:
            assert a._cnt(a.lgq, "sto") is None
            lds_add(a, "v12", "v14", CQ, "c")
        if f == 33: lds_add(a, "v12", "v14", CQ2, "c")
        for b, off, nl_ in ((24, GQ1, 48), (48, GQ2, 84)):
            if f == b - 10: a.lg(f"ds_read_b32 v1, v12 offset:{off}", "g")
            if f == b - 8:
                a.wait(lg="g"); a("v_cmp_gt_u32 vcc, 4, v1")
            if f == b - 7:
                st(name=f"_w{b//12}", wait=False) if False else None
                a(f"s_cbranch_vccnz L_gq{b}"); a(f"L_gq{b}_x:")
                st(name=("_" if b == 24 else "") + f"b{b//12}")
                lim = nl_
        if f == 79:
            assert rp == 84
            st(name="_w7")
            a.wait(lg="all")
            a("s_barrier")
            st(name="b7")
            a.vm(f"buffer_load_dword v223, v222, s[12:15], 0 offen {SC1}", "go")
        if f == 80: ffn_dma(a, 2, vDF, 4)
        n = 0
        while rp < lim and rp <= f + 8 and n < 2:
            frag(rp); rp += 1; n += 1
        take = -(-len(lq) // max(1, 79 - f)); take += take & 1
        for q in range(min(take, len(lq))): a(lq.pop(0)[1])
    assert not lq
    a(f"s_setprio {cfg.PE}")
    O = 16; S = 80; PP = 192; KV = 128; T = 200
    QL = [248, 224, 232, 240]
    for i in range(1, 4): a(f"v_xor_b32 v{7+i}, {16*i}, v5")
    a("s_nop 4")
    for tl in range(3):
        b = AQ + 16*tl; d = S + 8*tl
        a(f"v_mov_b32 v7, s{36+tl}")
        a(f"s_cmp_lg_u32 s{TY[tl]}, 0")
        a(f"s_cbranch_scc1 L_nq{tl}")
        for r in range(16): a(f"v_mul_f32 v{b+r}, s39, v{b+r}")
        a(f"L_nq{tl}:")
        a(f"v_cndmask_b32 v{b+12}, v{b+12}, v7, s[40:41]")
        a(f"v_cndmask_b32 v{b+13}, v{b+13}, 0, s[40:41]")
        for r in range(8): a(f"v_cvt_pk_bf16_f32 v{d+r}, v{b+2*r}, v{b+2*r+1}")
        a(f"s_cmp_eq_u32 s{TY[tl]}, 2")
        a(f"v_cndmask_b32 v{d+7}, v{d+7}, 0, s[40:41]")
        a(f"s_cbranch_scc0 L_vx{tl}")
        if tl == 2:
            for r in (5, 8, 9, 10, 6): a(f"v_add_u32 v{r}, s65, v{r}")
        off = 2048 if tl == 1 else 0
        for i in range(4): a(f"ds_write_b64 v{[5,8,9,10][i]}, {vr(d+2*i,2)} offset:{off}")
        for i in range(4): a(f"ds_read_b64_tr_b16 {vr(d+2*i,2)}, v6 offset:{off+512*i}")
        a(f"L_vx{tl}:")
        if tl == 0 and cfg.F3: ffn_dma(a, 3, vDF, 0, 4)
        if tl == 2 and cfg.F3: ffn_dma(a, 3, vDF, 4)
    a("s_waitcnt lgkmcnt(0)")
    for tl in range(3):
        d = S + 8*tl
        a.vm(f"buffer_store_dwordx4 {vr(d,4)}, {vr(vL)}, s[24:27], s{8+tl} offen {SC1}", "st")
        a.vm(f"buffer_store_dwordx4 {vr(d+4,4)}, {vr(vL)}, s[24:27], s{8+tl} offen offset:1024 {SC1}", "st")
    st(name="_st0")
    if not cfg.F3: ffn_dma(a, 3, vDF)
    def wd_touch(pos):
        for k, p in enumerate(cfg.WDP):
            if p != pos: continue
            if k < 2:
                srd(a, 36, 16, 1792*448*2)
                a(f"v_min_u32 v3, 48, v0")
                a(f"v_lshlrev_b32 v3, 7, v3")
                a("s_lshl_b32 s51, s47, 3")
                a("s_add_u32 s51, s51, s44")
                a(f"s_add_u32 s51, s51, {4*k}")
                a(f"s_mul_i32 s51, s51, {49*128}")
                a.vm(f"buffer_load_dword v7, v3, s[36:39], s51 offen", "pf")
            else:
                srd(a, 36, 20, 448*448*2)
                a(f"v_min_u32 v4, 24, v0")
                a(f"v_lshlrev_b32 v4, 7, v4")
                a("s_lshl_b32 s51, s47, 2")
                a("s_add_u32 s51, s51, s44")
                a(f"s_mul_i32 s51, s51, 3136")
                a.vm(f"buffer_load_dword v7, v4, s[36:39], s51 offen", "pf")
    wd_touch(3)
    a.wait(vm=("F", 2))
    lds_add(a, "v12", "v14", GATE(2))
    st(name="_g2")
    lds_wait(a, f"L_cons4", "v12", "v2", 4, sleep=1, off=CONS(0))
    st(name="_c4")
    ffn_dma(a, 4, vDF)
    st(name="_i4")
    wd_touch(4)
    if cfg.F3:
        a.wait(vm=("F", 3))
        lds_add(a, "v12", "v14", GATE(3))
    a("v_cmp_gt_u32 vcc, 1, v223")
    a("s_nop 3")
    a("s_cbranch_vccnz L_go"); a("L_go_x:")
    a.wait(vm="st")
    a.vm(f"buffer_store_dword v14, v13, s[24:27], s59 offen {SC1}", "fl")
    st(name="fl0")
    if not cfg.F3:
        a.wait(vm=("F", 3))
        lds_add(a, "v12", "v14", GATE(3))
    lds_wait(a, f"L_cons5", "v12", "v2", 4, sleep=1, off=CONS(1))
    st(name="_c5")
    ffn_dma(a, 5, vDF)
    wd_touch(5)
    a.wait(vm=("F", 4))
    lds_add(a, "v12", "v14", GATE(4))
    st(name="_g4")
    lds_wait(a, f"L_cons6", "v12", "v2", 4, sleep=1, off=CONS(2))
    st(name="_c6")
    ffn_dma(a, 6, vDF)
    wd_touch(6)
    if cfg.K0 == 24:
        a.wait(vm=("F", 5))
        lds_add(a, "v12", "v14", GATE(5))
    a("s_lshl_b32 s65, s48, 1")
    a("s_and_b32 s51, s47, 1")
    a("s_add_u32 s65, s65, s51")
    a("s_lshr_b32 s66, s47, 1")
    a(f"v_bfe_u32 v{t+2}, v0, 2, 2")
    a(f"v_bfe_u32 v{t+4}, v0, 4, 1")
    for s_ in ("s_lshl_b32 s51, s66, 2", "s_add_u32 s51, s51, s44", f"s_mul_i32 s67, s51, {144*1024}", "s_lshl_b32 s51, s65, 11", "s_add_u32 s67, s67, s51",
               f"s_add_u32 s67, s67, {WS_A+112*1024}",
               "s_lshl_b32 s51, s44, 2",
               "s_lshl_b32 s60, s66, 4", "s_add_u32 s60, s60, s65", "s_lshl_b32 s60, s60, 7", "s_add_u32 s60, s60, s51", f"s_add_u32 s60, s60, {WS_F+65536}",
               "s_lshl_b32 s51, s65, 18", "s_lshl_b32 s58, s44, 16", "s_add_u32 s51, s51, s58", f"s_add_u32 s51, s51, {WS_KV}",
               "s_add_u32 s4, s22, s51", "s_addc_u32 s5, s23, 0", "s_mov_b32 s6, 0x10000", "s_mov_b32 s7, 0x00020000",
               "s_lshl_b32 s69, s66, 12"): a(s_)
    for k, (add, dst) in enumerate(((0, "s56"), (16, "s57"), (32, "s58"))):
        a(f"s_add_u32 s51, s65, {add}")
        a("s_mul_i32 s51, s51, 43")
        a("s_lshr_b32 s51, s51, 7")
        sigma(a, "s51", "s51")
        a(f"s_lshl_b32 {dst}, s51, 7")
    a("s_lshl_b32 s51, s66, 11")
    a("s_add_u32 s56, s56, s51")
    a("s_lshl_b32 s51, s44, 13")
    a("s_add_u32 s57, s57, s51")
    a("s_add_u32 s58, s58, s51")
    a(f"v_lshlrev_b32 v1, 11, v{t+2}")
    a(f"v_add_u32 v{t+6}, s58, v1")
    a(f"v_add_u32 v1, s57, v1")
    a(f"v_cmp_eq_u32 vcc, 1, v{t+4}")
    a(f"v_mov_b32 v{t+7}, s56")
    a(f"v_and_b32 v{t+3}, 3, v0")
    a(f"v_cndmask_b32 v1, v1, v{t+6}, vcc")
    a(f"v_cndmask_b32 v1, v1, v{t+7}, s[40:41]")
    a(f"v_lshl_add_u32 v1, v{t+3}, 2, v1")
    a(f"s_mov_b32 s68, {WS_F}")
    a.vm(f"buffer_load_dword v2, v1, s[24:27], s68 offen {SC1}", "p1")
    a.wait(vm=("F", 6))
    lds_add(a, "v12", "v14", GATE(5 if cfg.K0 == 20 else 6))
    st(name="_f6")
    for j in range(4):
        for s_ in (f"s_add_u32 s51, s44, {j}", "s_and_b32 s51, s51, 3", f"s_mul_i32 s55, s51, 12288", f"s_add_u32 s55, s55, {CB1}", f"v_add_u32 v{T+4+j}, s55, {vr(vL)}",
                   "s_lshl_b32 s55, s65, 4", "s_add_u32 s55, s55, s66", "s_lshl_b32 s55, s55, 2", "s_add_u32 s55, s55, s51", f"s_lshl_b32 s{8+j}, s55, 11"): a(s_)
    a("s_mov_b32 s55, 0")
    a.wait(vm="p1")
    a("v_cmp_gt_u32 vcc, 1, v2")
    a("s_nop 3")
    a("s_cbranch_vccz L_p1_x")
    def kvload(slot, j): return f"buffer_load_dwordx4 {vr(KV+16*slot+4*j,4)}, {vr(vL)}, s[4:7], s69 offen offset:{1024*j} {SC1}"
    kvadv = ["s_add_u32 s69, s69, 4096", "s_and_b32 s69, s69, 0xffff"]
    poll(a, "L_p1", "v2", "v1", "s[24:27]", "s68", 1, sleep=4)
    st(name="poll1")
    for j in (1, 2, 3, 0):
        for ks in range(2): a.vm(f"buffer_load_dwordx4 {vr(QL[j]+4*ks,4)}, {vr(vL)}, s[24:27], s{8+j} offen offset:{1024*ks} {SC1}", "q")
    for sl in range(3):
        for j in range(4): a.vm(kvload(sl, j), ("kv", sl))
        for x in kvadv: a(x)
    a(f"s_setprio {cfg.PC}")
    for r in range(64): a(f"v_mov_b32 v{O+r}, 0")
    for r in range(4): a(f"v_mov_b32 v{PP+4+r}, 0")
    for r in range(4): a(f"v_mov_b32 v{KV+48+12+r}, 0")
    QO = [1, 2, 3, 0]
    def qk(n, ks):
        kt, qt = (n//4) % 4, n % 4
        s = vr(S+16*(n&1), 16)
        return f"v_mfma_f32_32x32x16_bf16 {s}, {vr(KV+16*kt+4*ks,4)}, {vr(QL[QO[qt]]+4*ks,4)}, {'0' if ks==0 else s}"
    def pv(n, ks):
        kt, qt = (n//4) % 4, n % 4
        o = vr(O+16*QO[qt], 16)
        return f"v_mfma_f32_32x32x16_bf16 {o}, {vr(KV+16*kt+8+4*ks,4)}, {vr(PP+4*ks,4)}, {o}"
    a.wait(vm=("kv", 0))
    lds_add(a, "v12", "v14", HA-CNT)
    st(name="att0")
    a(qk(0, 0)); a(qk(0, 1))
    a("s_nop 7"); a("s_nop 3")
    a.raw(".p2align 3")
    a("L_att:")
    for n in range(16):
        kt, qt = n//4, n % 4
        sb = S + 16*(n & 1)
        ms = [qk(n+1, 0), qk(n+1, 1), pv(n-1, 1), pv(n, 0)]
        for m in range(4):
            a(ms[m])
            if m == 0: a(kvload((kt+3) % 4, qt))
            if qt == 2 and m == 2 and kt == 0: a("s_add_u32 s55, s55, 1")
            if qt == 2 and m == 3: a(f"s_waitcnt vmcnt({9 if cfg.W2 else 7})")
            if qt == 0 and m == 2 and cfg.W2: a("s_waitcnt vmcnt(9)")
            if qt == 3 and m == 1: a(kvadv[0])
            if qt == 3 and m == 2: a(kvadv[1])
            if qt == 3 and m == 3 and kt == 0:
                a("s_cmp_eq_u32 s55, 4"); a("s_cselect_b32 s6, 0, s6")
            if qt == 3 and m == 3 and kt == 3: a("s_cmp_lg_u32 s55, 4")
            odd = (qt == 0 and m == 2 and cfg.W2) or (qt == 2 and m == 3) or (qt == 2 and m == 2 and kt == 0) or (qt == 3 and m == 3 and kt == 3)
            for j in range(4):
                a(f"v_exp_f32{'_e64' if (odd and j == 1) else ''} v{sb+4*m+j}, v{sb+4*m+j}")
            for j in range(2): a(f"v_cvt_pk_bf16_f32 v{PP+2*m+j}, v{sb+4*m+2*j}, v{sb+4*m+2*j+1}")
    a("s_cbranch_scc1 L_att")
    a(f"ds_read_b32 v{T}, v12 offset:{HX}")
    a("s_setprio 2")
    a(pv(15, 1))
    st(name="attend")
    a(f"s_mov_b32 s42, {f2u(2.0**-64):#x}")
    a(f"s_mov_b32 s43, {f2u(2.0**64):#x}")
    a("s_waitcnt lgkmcnt(0)")
    a(f"v_cmp_gt_u32 vcc, 4, v{T}")
    a("s_nop 3")
    a("s_cbranch_vccnz L_hd")
    a("L_hd_x:")
    for j in range(1, 4):
        for q in range(4):
            a(f"ds_write_b128 v{T+4+j}, {vr(O+16*j+4*q,4)} offset:{(j-1)*4096+q*1024}")
    a("s_waitcnt lgkmcnt(0)")
    st(name="_preTc")
    a("s_barrier")
    st(name="_Tc")
    a.lgq = []
    for q in (3, 0, 1, 2):
        for j in range(3):
            a.lg(f"ds_read_b128 {vr(O+16+16*j+4*q,4)}, v{T+4} offset:{j*4096+q*1024}", q)
    def add3(q):
        a.wait(lg=q)
        for r in range(4*q, 4*q+4): a(f"v_add_f32 v{O+r}, v{O+r}, v{O+16+r}")
        for r in range(4*q, 4*q+4): a(f"v_add_f32 v{O+32+r}, v{O+32+r}, v{O+48+r}")
        for r in range(4*q, 4*q+4): a(f"v_add_f32 v{O+r}, v{O+r}, v{O+32+r}")
    add3(3)
    a(f"v_mov_b32 v{T}, v{O+12}")
    a(f"v_mov_b32 v{T+1}, v{O+12}")
    add3(0)
    a(f"v_permlane32_swap_b32 v{T}, v{T+1}")
    add3(1)
    a(f"v_cmp_le_f32 vcc, s42, v{T+1}")
    a(f"v_cmp_ge_f32 s[56:57], s43, v{T+1}")
    a(f"v_rcp_f32 v{T}, v{T+1}")
    add3(2)
    a("s_and_b64 vcc, vcc, s[56:57]")
    a("s_cmp_eq_u64 vcc, -1")
    a("s_cbranch_scc0 L_slow")
    a("L_fin:")
    for r in range(8): a(f"v_mul_f32 v{O+r}, v{O+r}, v{T}")
    for r in range(4): a(f"v_cvt_pk_bf16_f32 v{PP+r}, v{O+2*r}, v{O+2*r+1}")
    a.vm(f"buffer_store_dwordx4 {vr(PP,4)}, {vr(vL)}, s[24:27], s67 offen {SC1}", "st")
    for r in range(8, 16): a(f"v_mul_f32 v{O+r}, v{O+r}, v{T}")
    for r in range(4, 8): a(f"v_cvt_pk_bf16_f32 v{PP+r}, v{O+2*r}, v{O+2*r+1}")
    a(f"v_cndmask_b32 v{PP+6}, v{PP+6}, 0, s[40:41]")
    a(f"v_cndmask_b32 v{PP+7}, v{PP+7}, 0, s[40:41]")
    a.vm(f"buffer_store_dwordx4 {vr(PP+4,4)}, {vr(vL)}, s[24:27], s67 offen offset:1024 {SC1}", "st")
    ACC = 16; OF = 48; WF = 112; XRS = 160; PT = 168; TP = 240; vO = 1; vT0 = 2; vT1 = 3; vP = 4; vE = 6; vH = 8
    a("s_lshr_b32 s51, s44, 1")
    a("s_and_b32 s55, s44, 1")
    a("s_lshl_b32 s56, s49, 1")
    a("s_add_u32 s56, s56, s51")
    a(f"v_and_b32 v{TP}, 31, v0")
    a(f"v_lshrrev_b32 v{TP+1}, 5, v0")
    a("s_lshl_b32 s57, s56, 5")
    a(f"v_add_u32 v{TP}, s57, v{TP}")
    a(f"v_mul_u32_u24 v{TP}, 896, v{TP}")
    a("s_lshl_b32 s57, s55, 6")
    a("s_lshl_b32 s58, s50, 7")
    a("s_add_u32 s57, s57, s58")
    a(f"v_add_u32 v{TP}, s57, v{TP}")
    a(f"v_lshl_add_u32 {vr(vO)}, v{TP+1}, 4, v{TP}")
    a(f"v_lshl_add_u32 v7, v{TP+1}, 3, v{TP}")
    a(f"v_bfe_u32 v{TP}, v0, 2, 2")
    a(f"v_lshl_add_u32 v{TP+1}, v{TP+1}, 2, v{TP}")
    a(f"v_lshlrev_b32 v{TP+1}, 7, v{TP+1}")
    a(f"v_and_b32 v{TP+2}, 3, v0")
    a(f"v_lshl_add_u32 v{TP+1}, v{TP+2}, 3, v{TP+1}")
    a(f"v_bfe_u32 v{TP+2}, v0, 4, 1")
    a(f"v_lshl_add_u32 v{TP+1}, v{TP+2}, 5, v{TP+1}")
    a(f"v_lshrrev_b32 v{TP}, 1, v{TP}")
    a(f"v_xor_b32 v{TP}, s55, v{TP}")
    a(f"v_lshl_add_u32 v{TP+1}, v{TP}, 6, v{TP+1}")
    a(f"s_mul_i32 s57, s55, {8*28*128}")
    a(f"s_add_u32 s57, s57, {WOS}")
    a(f"v_add_u32 {vr(vT0)}, s57, v{TP+1}")
    a(f"v_xor_b32 {vr(vT1)}, 64, {vr(vT0)}")
    a(f"v_and_b32 {vr(vP)}, 7, v0")
    a(f"v_lshlrev_b32 {vr(vP)}, 7, {vr(vP)}")
    a("s_lshl_b32 s57, s44, 12")
    a(f"s_add_u32 s58, s57, {EXB}")
    a(f"v_add_u32 {vr(vE)}, s58, {vr(vL)}")
    a("s_cmp_eq_u32 s44, 3")
    a(f"s_cselect_b32 s57, {CB1}, s57")
    a(f"s_cselect_b32 s58, 1, 3")
    a("s_lshl_b32 s58, s58, 12")
    a(f"v_add_u32 {vr(vH)}, s57, {vr(vL)}")
    for u in range(1, 4): a(f"v_add_u32 {vr(vH+u)}, s58, {vr(vH+u-1)}")
    a("s_lshr_b32 s57, s49, 1")
    a("s_lshl_b32 s57, s57, 11")
    a("s_lshl_b32 s58, s55, 10")
    a("s_add_u32 s57, s57, s58")
    a("s_and_b32 s58, s56, 3")
    a("s_lshl_b32 s58, s58, 2")
    a("s_add_u32 s57, s57, s58")
    a(f"s_add_u32 s57, s57, {WS_F+65536}")
    a(f"s_mul_i32 s56, s56, {144*1024}")
    a("s_lshl_b32 s58, s55, 14")
    a("s_add_u32 s56, s56, s58")
    a(f"s_add_u32 s56, s56, {WS_A+112*1024}")
    srd(a, 36, 18, 2048*448*2)
    st(name="_prefl2")
    a.wait(vm="all")
    a.vm(f"buffer_store_dword v14, v13, s[24:27], s60 offen {SC1}", "fl")
    st(name="fl2")
    a("s_cmp_ge_u32 s50, 7")
    a("s_cbranch_scc1 L_c_end")
    for i in range(4):
        a.vm(f"buffer_load_dwordx2 {vr(XRS+2*i,2)}, v7, s[28:31], 0 offen offset:{16*i}", "x")
    a("s_barrier")
    st(name="_T0")
    def wrd(k):
        stp, ct = k//2, k % 2
        row = 28*(stp//2) + 16*(stp % 2)
        for r_ in range(2):
            a.lg(f"ds_read_b64_tr_b16 {vr(WF+4*(k%10)+2*r_,2)}, {vr(vT0+ct)} offset:{(row+8*r_)*128}", ("w", k))
    for k in range(7): wrd(k)
    poll(a, "L_p3", f"v{TP}", vr(vP), "s[24:27]", "s57", 1, sleep=1)
    st(name="poll3")
    for i in range(16):
        if i and i % 4 == 0: a("s_add_u32 s56, s56, 4096")
        a.vm(f"buffer_load_dwordx4 {vr(OF+4*i,4)}, {vr(vL)}, s[24:27], s56 offen offset:{1024*(i%4)} {SC1}", ("o", i))
    a("s_mov_b32 s51, 0xffff0000")
    for i in range(8):
        a(f"v_lshlrev_b32 v{ACC+2*i}, 16, v{XRS+i}")
        a(f"v_and_b32 v{ACC+2*i+1}, s51, v{XRS+i}")
    a.wait(lg="all")
    st(name="_preT1")
    a("s_barrier")
    st(name="_T1")
    for u in range(4):
        if u == 3:
            a.wait(lg=("p", 0))
            for r in range(16): a(f"v_add_f32 v{ACC+r}, v{ACC+r}, v{PT+r}")
        for q in range(4):
            a.lg(f"ds_read_b128 {vr(PT+16*u+4*q,4)}, {vr(vH+u)} offset:{q*1024}", ("p", u))
    for u in range(1, 4):
        a.wait(lg=("p", u))
        for r in range(16): a(f"v_add_f32 v{ACC+r}, v{ACC+r}, v{PT+16*u+r}")
    st(name="part")
    for k in range(32):
        stp, ct = k//2, k % 2
        if ct == 0: a.wait(vm=("o", stp), lg=("w", k+1))
        acc = vr(ACC+16*ct, 16)
        if k == 0: a("s_nop 0")
        a(f"v_mfma_f32_32x32x16_bf16 {acc}, {vr(WF+4*(k%10),4)}, {vr(OF+4*stp,4)}, {'0' if k==1 else acc}")
        if k + 7 < 32: wrd(k+7)
    st(name="_omf")
    a(f"v_xor_b32 v7, 4096, {vr(vE)}")
    a("s_nop 7"); a("s_nop 3")
    for q in range(4): a(f"ds_write_b128 v7, {vr(ACC+16+4*q,4)} offset:{q*1024}")
    a("s_waitcnt lgkmcnt(0)")
    a("s_barrier")
    for q in range(4): a.lg(f"ds_read_b128 {vr(PT+4*q,4)}, {vr(vE)} offset:{q*1024}", ("e", q))
    for hq in range(2):
        a.wait(lg=("e", 2*hq+1))
        for r in range(8*hq, 8*hq+8): a(f"v_add_f32 v{ACC+r}, v{ACC+r}, v{PT+r}")
        for r in range(4*hq, 4*hq+4): a(f"v_cvt_pk_bf16_f32 v{OF+r}, v{ACC+2*r}, v{ACC+2*r+1}")
        a("s_nop 1")
        b = 4*hq
        a(f"v_permlane32_swap_b32 v{OF+b}, v{OF+b+2}")
        a(f"v_permlane32_swap_b32 v{OF+b+1}, v{OF+b+3}")
        a(f"buffer_store_dwordx4 {vr(OF+b,4)}, {vr(vO)}, s[36:39], 0 offen offset:{32*hq}")
    a("L_c_end:")
    st.flush(63, 8)
    a("L_end:")
    a("s_endpgm")
    for b, off in ((24, GQ1), (48, GQ2)):
        lds_wait(a, f"L_gq{b}", "v12", "v1", 4, off=off)
        a(f"s_branch L_gq{b}_x")
    a("L_go:")
    poll(a, "L_p0", "v223", "v222", "s[12:15]", "0", 1)
    a("s_branch L_go_x")
    lds_wait(a, "L_hd", "v12", f"v{T}", 4, off=HX)
    a("s_branch L_hd_x")
    S1 = S + 16
    a("L_slow:")
    a("s_lshl_b32 s56, s65, 18")
    a(f"s_add_u32 s56, s56, {WS_KV}")
    a("s_mov_b32 s57, s56")
    a("s_mov_b32 s55, 64")
    a(f"v_mov_b32 v{T+2}, 0xff800000")
    a("s_waitcnt vmcnt(0)")
    a("L_slow1:")
    for j in range(2): a(f"buffer_load_dwordx4 {vr(KV+4*j,4)}, {vr(vL)}, s[24:27], s57 offen offset:{1024*j} {SC1}")
    a("s_waitcnt vmcnt(0)")
    a(qk(3, 0)); a(qk(3, 1))
    a("s_nop 7"); a("s_nop 7")
    for r in range(8): a(f"v_max3_f32 v{T+2}, v{S1+2*r}, v{S1+2*r+1}, v{T+2}")
    a("s_add_u32 s57, s57, 4096")
    a("s_sub_u32 s55, s55, 1"); a("s_cmp_lg_u32 s55, 0")
    a("s_cbranch_scc1 L_slow1")
    a(f"v_mov_b32 v{T+3}, v{T+2}")
    a("s_nop 1")
    a(f"v_permlane32_swap_b32 v{T+3}, v{T+2}")
    a("s_nop 1")
    a(f"v_max_f32 v{T+2}, v{T+2}, v{T+3}")
    for r in range(16): a(f"v_mov_b32 v{O+r}, 0")
    a("s_mov_b32 s55, 64")
    a("L_slow2:")
    for j in range(4): a(f"buffer_load_dwordx4 {vr(KV+4*j,4)}, {vr(vL)}, s[24:27], s56 offen offset:{1024*j} {SC1}")
    a("s_waitcnt vmcnt(0)")
    a(qk(3, 0)); a(qk(3, 1))
    a("s_nop 7"); a("s_nop 7")
    for r in range(16): a(f"v_sub_f32 v{S1+r}, v{S1+r}, v{T+2}")
    for r in range(16): a(f"v_exp_f32 v{S1+r}, v{S1+r}")
    a("s_nop 0")
    for r in range(8): a(f"v_cvt_pk_bf16_f32 v{PP+r}, v{S1+2*r}, v{S1+2*r+1}")
    a("s_nop 1")
    a(pv(3, 0)); a(pv(3, 1))
    a("s_add_u32 s56, s56, 4096")
    a("s_sub_u32 s55, s55, 1"); a("s_cmp_lg_u32 s55, 0")
    a("s_cbranch_scc1 L_slow2")
    a("s_nop 7"); a("s_nop 7")
    a(f"v_mov_b32 v{T}, v{O+12}")
    a(f"v_mov_b32 v{T+1}, v{O+12}")
    a("s_nop 1")
    a(f"v_permlane32_swap_b32 v{T}, v{T+1}")
    a("s_nop 1")
    a(f"v_rcp_f32 v{T}, v{T+1}")
    a("s_nop 0")
    a("s_branch L_fin")

def gen_h(a, st):
    a.vmq = []; a.lgq = []
    X0 = 16; ACCF = 128; vDF = 128; vDQ = 136; vX = 140; t = 144; SINK = 160
    vTF = 1; vC = 3; vOne = 4; vG = 5; vR = 6; LT = 8
    a("L_helper:")
    a("s_getpc_b64 s[56:57]")
    a("L_pc:")
    a(f"s_sub_u32 s56, s56, L_pc-{NAME}")
    a("s_subb_u32 s57, s57, 0")
    a(f"v_min_u32 v{t+1}, 2, v0")
    a("s_lshl_b32 s55, s47, 2")
    a("s_add_u32 s55, s55, s44")
    a("s_mul_i32 s55, s55, 3")
    a(f"v_add_u32 v{t+1}, s55, v{t+1}")
    a(f"v_lshlrev_b32 v{t+1}, 7, v{t+1}")
    a(f"v_min_u32 v{t+1}, L_code_end-{NAME}-4, v{t+1}")
    a.vm(f"global_load_dword v{SINK}, v{t+1}, s[56:57]", "pf")
    a("s_setprio 1")
    mapping(a)
    for i in range(4): a(f"v_mov_b32 v{t+12+i}, 0")
    a(f"v_mov_b32 {vr(vOne)}, 1")
    a(f"v_lshlrev_b32 v{t+11}, 25, v0")
    a(f"v_mov_b32 {vr(vC)}, {CNT}")
    a("s_xor_b32 s67, s45, s46")
    a("s_or_b32 s67, s67, s44")
    a("s_lshl_b32 s58, s45, 11")
    a(f"s_add_u32 s58, s58, {WS_F}")
    a("s_waitcnt lgkmcnt(0)")
    srd(a, 24, 22, WS_BYTES)
    srd(a, 28, 20, 256)
    a("s_cmp_lg_u32 s67, 0")
    a("s_cbranch_scc1 L_noclr")
    a(f"v_lshrrev_b32 v{t}, 4, v0")
    a(f"v_min_u32 v{t}, 2, v{t}")
    a(f"v_lshlrev_b32 v{t}, 15, v{t}")
    a(f"v_and_b32 v{t+1}, 15, v0")
    a(f"v_lshl_add_u32 v{t}, v{t+1}, 7, v{t}")
    a(f"buffer_store_dwordx4 {vr(t+12,4)}, v{t}, s[24:27], s58 offen {SC1}")
    a("L_noclr:")
    a("s_lshl_b32 s59, s46, 7")
    a("s_add_u32 s59, s59, s58")
    a("s_lshl_b32 s51, s44, 2")
    a("s_add_u32 s59, s59, s51")
    a("s_add_u32 s59, s59, 32768")
    srd(a, 36, 6, 448*1344*2)
    sigma(a, "s51", "s46")
    a("s_mul_i32 s51, s51, 168")
    a("s_and_b32 s51, s51, -16")
    for j in range(3):
        a(f"v_add_u32 v{t}, {64*j}, v0")
        a(f"v_mul_u32_u24 v{t+1}, 5462, v{t}")
        a(f"v_lshrrev_b32 v{t+1}, 16, v{t+1}")
        a(f"v_mul_u32_u24 v{t+2}, 12, v{t+1}")
        a(f"v_sub_u32 v{t+2}, v{t}, v{t+2}")
        a(f"v_min_u32 v{t+2}, 10, v{t+2}")
        a(f"v_mul_u32_u24 v{t+1}, 2688, v{t+1}")
        a(f"v_lshl_add_u32 v{t+1}, v{t+2}, 4, v{t+1}")
        if j: a(f"v_subrev_u32 v{t+1}, {1024*j}, v{t+1}")
        a(f"v_add_u32 {vr(vDQ+j)}, s51, v{t+1}")
    xread_addr(a, vX, t)
    a(f"s_mul_i32 s60, s44, {16*2688}")
    a(f"s_mul_i32 s57, s44, {16*192}")
    a(f"s_mul_i32 s55, s3, {64*2688}")
    def qkv_dma(g):
        a(f"s_add_u32 m0, s57, {g*12288}" if g < 4 else f"s_add_u32 m0, s56, {(g-4)*3072}")
        a("s_add_u32 s51, s55, s60")
        for j in range(3):
            a.vm(f"buffer_load_dwordx4 {vr(vDQ+j)}, s[36:39], s51 offen offset:{1024*j} lds", ("Q", g))
        if g < 6:
            a(f"s_add_u32 s55, s55, {64*2688}"); a(f"s_cmp_ge_u32 s55, {448*2688}"); a("s_cselect_b32 s55, 0, s55")
    ffn_setup(a, vDF, t)
    a(f"v_lshrrev_b32 v{t+5}, 5, v0")
    a(f"v_bfe_u32 v{t+2}, v0, 2, 2")
    a(f"v_lshl_add_u32 v{t+2}, v{t+5}, 3, v{t+2}")
    a(f"v_and_b32 v{t+3}, 3, v0")
    a(f"v_bfe_u32 v{t+4}, v0, 4, 1")
    a(f"v_mul_u32_u24 v{t+5}, 224, v{t+2}")
    a(f"v_lshl_add_u32 v{t+5}, v{t+3}, 3, v{t+5}")
    a(f"v_mul_u32_u24 v{t+6}, {OU}, v{t+4}")
    a(f"v_add_u32 {vr(vTF)}, v{t+5}, v{t+6}")
    a(f"v_mul_u32_u24 v{t+6}, {2*AR+128}, v{t+4}")
    a(f"v_add_u32 v{t+5}, {XS}, v{t+5}")
    a(f"v_add_u32 {vr(vTF+1)}, v{t+5}, v{t+6}")
    a(f"s_mul_i32 s65, s52, {144*1024}")
    a(f"s_mul_i32 s51, s46, {7*1024}")
    a("s_add_u32 s65, s65, s51")
    a(f"s_add_u32 s65, s65, {WS_A}")
    a("s_add_u32 s66, s65, 4096")
    a(f"v_and_b32 v{t+10}, 15, v0")
    a(f"v_lshlrev_b32 v{t+10}, 4, v{t+10}")
    a(f"v_lshlrev_b32 v{t+9}, 3, v0")
    a(f"v_add_u32 v{t+9}, s56, v{t+9}")
    a("s_lshl_b32 s58, s45, 4")
    a("s_mov_b32 s61, 0xffff0000")
    def xread(cb):
        for sp in range(4): a(f"ds_read_b128 {vr(X0+16*cb+4*sp,4)}, {vr(vX+sp)} offset:{cb*4096}")
    st(name="_hsetup")
    a("s_barrier")
    st(name="hBx")
    for g in range(cfg.Q0): qkv_dma(g)
    for cb in range(cfg.BX + 1): xread(cb)
    st(name="_hq")
    a("s_barrier")
    for cb in range(cfg.BX + 1, 7): xread(cb)
    for g in range(cfg.Q0, 4): qkv_dma(g)
    a("s_waitcnt lgkmcnt(0)")
    a("s_cmp_lg_u32 s44, 3")
    a("s_cbranch_scc1 L_nocnt")
    for i in range(4): a(f"ds_write_b128 {vr(vC)}, {vr(t+12,4)} offset:{16*i}")
    a("L_nocnt:")
    for g in range(4, 4 + cfg.Q1): qkv_dma(g)
    st(name="_hw0")
    a.wait(vm=("Q", 1))
    a("s_waitcnt lgkmcnt(0)")
    st(name="_hp0")
    a("s_barrier")
    st(name="hb0")
    for g in range(4 + cfg.Q1, 7): qkv_dma(g)
    a("s_cmp_lg_u32 s67, 0")
    a("s_cbranch_scc1 L_nogo")
    a(f"buffer_store_dword {vr(vOne)}, v{t+11}, s[28:31], s58 offen {SC1}")
    a("L_nogo:")
    a.wait(vm=("Q", 3))
    lds_add(a, vr(vC), vr(vOne), GQ1)
    st(name="_hq3")
    ffn_dma(a, 0, vDF)
    a.wait(vm=("Q", 6))
    lds_add(a, vr(vC), vr(vOne), GQ2)
    st(name="hq6")
    ffn_dma(a, 1, vDF, 0, 4)
    lds_wait(a, "L_cq", vr(vC), vr(vG), 4, off=CQ)
    a(f"ds_read_b64 {vr(vR,2)}, v{t+9} offset:{STO}")
    a("s_waitcnt lgkmcnt(0)")
    for k in range(cfg.HPRE):
        for op in ln_ops(X0, k, LT, vR): a(op)
    st(name="_hw7")
    ffn_dma(a, 1, vDF, 4)
    lds_wait(a, "L_cq2", vr(vC), vr(vG), 4, off=CQ2)
    ffn_dma(a, 2, vDF, 0, 4)
    a.wait(vm=("F", 0))
    st(name="_hp7")
    a("s_barrier")
    st(name="hb7")
    K0 = cfg.K0; KT = 28 - K0
    order = [(k, tl) for k in range(K0) for tl in range(7)] + [(k, tl) for tl in range(7) for k in range(K0, 28)]
    NM = len(order); SC = 7*K0
    GL = [1, 2, 3, 4, 5] + ([6] if K0 == 24 else [])
    pool = [240, 244, 248, 252, 12]
    HP = 40
    freg = {}
    def frag(f):
        k, tl = order[f]; g, sp = k // 4, k % 4
        reg = pool.pop(0); freg[f] = reg
        for rd in range(2):
            if FSLOT[g] == "D": ad, off = vTF, 16*sp*224
            else: ad, off = vTF+1, FA[FSLOT[g]] + (sp//2)*AR + 16*(sp % 2)*224
            a.lg(f"ds_read_b64_tr_b16 {vr(reg+2*rd,2)}, {vr(ad)} offset:{off + 4*rd*224 + tl*32}", ("f", f))
    def epi_f(tl):
        b = ACCF + 16*tl
        return [f"v_max_f32 v{b+r}, 0, v{b+r}" for r in range(8)] + [f"v_mul_f32 v{b+r}, v{b+r}, v{b+8+r}" for r in range(8)] + \
               [f"v_cvt_pk_bf16_f32 v{HP+4*tl+r}, v{b+2*r}, v{b+2*r+1}" for r in range(4)]
    epi_at = {SC + KT*tl + KT - 1 + 3: epi_f(tl) for tl in range(7)}
    epiq = []
    lq = []
    for k in range(cfg.HPRE, 28): lq += [(k, o) for o in ln_ops(X0, k, LT, vR)]
    for f in range(5): frag(f)
    rp = 5; waited = -1; lim = 28
    gates = []
    for f in range(NM):
        k, tl = order[f]
        used = 0
        if f > waited:
            waited = min(NM-1, f + (1 if f < 21 else 3), rp-1)
            assert waited >= f
            wait_lg_tags(a, [("f", waited)])
        assert not lq or lq[0][0] > (k if f < SC else 27)
        acc = vr(ACCF + 16*tl, 16)
        a(f"v_mfma_f32_32x32x16_bf16 {acc}, {vr(freg[f],4)}, {vr(X0+4*k,4)}, {'0' if k == 0 else acc}")
        if f == waited: used += 1
        if f >= 1: pool.append(freg[f-1])
        if 7 <= f <= 35 and f % 7 == 0: pool.append(X0 + 4*(f//7 - 1))
        if f in epi_at: epiq += epi_at.pop(f)
        if f in (27, 55, 83):
            lds_add(a, vr(vC), vr(vOne), CONS(f // 28), "c"); used += 3
        if f == 28 - 15:
            a.wait(vm=("F", 1)); lds_add(a, vr(vC), vr(vOne), GATE(1), "c"); used += 4
        if f == 34:
            a.wait(vm=("F", 2)); lds_add(a, vr(vC), vr(vOne), GATE(2), "c"); used += 4
        for g in GL:
            if f == 28*g - 12:
                a.lg(f"ds_read_b32 {vr(vG)}, {vr(vC)} offset:{GATE(g)}", "g"); used += 1
            if f == 28*g - 9:
                a.wait(lg="g"); a(f"v_cmp_gt_u32 vcc, {8 if g == 2 else 4}, {vr(vG)}"); used += 2
            if f == 28*g - 8:
                st(name=f"_hpre{g}")
                a(f"s_cbranch_vccnz L_gate{g}"); a(f"L_gate{g}_x:"); used += 1
                lim = 28*(g+1) if g < GL[-1] else NM
                st(name=("" if g == 5 else "_") + f"hgate{g}")
        n = 0
        while rp < lim and rp <= f + 8 and n < 2 and pool:
            frag(rp); rp += 1; n += 1; used += 2
        need = -(-len(lq) // max(1, SC - 2 - f))
        n = 0
        while lq and ((used < cfg.SLOTS and n < max(need, cfg.LNG)) or n < need - 1):
            a(lq.pop(0)[1]); used += 1; n += 1
        while epiq and used < cfg.SLOTS:
            a(epiq.pop(0)); used += 1
    lds_add(a, vr(vC), vr(vOne), HD-CNT)
    for op in epiq: a(op)
    a("s_nop 7")
    for k in sorted(epi_at):
        for op in epi_at[k]: a(op)
    st(name="hg1")
    vL = 12
    a(f"v_lshlrev_b32 {vr(vL)}, 4, v0")
    a("v_lshlrev_b32 v5, 25, v0")
    srd(a, 28, 16, 1792*448*2)
    srd(a, 12, 8, 448*448*2)
    ACC = 16; HR = 80; W = 112; WREG = 128
    vD = 1; vD2 = 2; vT0 = 8; vT1 = 9; vP = 10; vL1 = 11
    u = 16
    a(f"v_lshrrev_b32 v{u}, 3, v0")
    a(f"v_bfe_u32 v{u+1}, v0, 4, 1")
    a(f"v_lshlrev_b32 v{u+1}, 2, v{u+1}")
    a(f"v_and_b32 v{u+2}, 7, v0")
    a(f"v_xor_b32 v{u+2}, v{u+2}, v{u+1}")
    a(f"v_mul_u32_u24 v{u}, 896, v{u}")
    a(f"v_lshl_add_u32 v{u}, v{u+2}, 4, v{u}")
    a("s_lshl_b32 s51, s50, 7")
    a(f"v_add_u32 {vr(vD)}, s51, v{u}")
    a(f"v_add_u32 {vr(vD2)}, {8*896-1024}, {vr(vD)}")
    a(f"v_bfe_u32 v{u}, v0, 2, 2")
    a(f"v_lshrrev_b32 v{u+1}, 5, v0")
    a(f"v_lshl_add_u32 v{u+1}, v{u+1}, 2, v{u}")
    a(f"v_lshlrev_b32 v{u+1}, 7, v{u+1}")
    a(f"v_and_b32 v{u+2}, 3, v0")
    a(f"v_lshl_add_u32 v{u+1}, v{u+2}, 3, v{u+1}")
    a(f"v_bfe_u32 v{u+2}, v0, 4, 1")
    a(f"v_lshl_add_u32 v{u+1}, v{u+2}, 5, v{u+1}")
    a(f"v_lshrrev_b32 v{u}, 1, v{u}")
    a(f"v_lshl_add_u32 v{u+1}, v{u}, 6, v{u+1}")
    a(f"s_mul_i32 s53, s44, {RNG}")
    a(f"v_add_u32 {vr(vT0)}, s53, v{u+1}")
    a(f"v_xor_b32 {vr(vT1)}, 64, {vr(vT0)}")
    a(f"v_bfe_u32 {vr(vP)}, v0, 1, 2")
    a(f"v_lshlrev_b32 {vr(vP)}, 7, {vr(vP)}")
    a(f"v_and_b32 v{u}, 1, v0")
    a(f"v_lshl_add_u32 {vr(vP)}, v{u}, 2, {vr(vP)}")
    a("s_lshr_b32 s58, s49, 1")
    a("s_lshl_b32 s58, s58, 11")
    a("s_and_b32 s51, s49, 1")
    a("s_lshl_b32 s51, s51, 3")
    a("s_add_u32 s58, s58, s51")
    a("s_lshl_b32 s51, s44, 9")
    a("s_add_u32 s58, s58, s51")
    a(f"s_add_u32 s58, s58, {WS_F+32768}")
    a(f"s_mul_i32 s60, s49, {2*144*1024}")
    a(f"s_mul_i32 s51, s44, {28*1024}")
    a("s_add_u32 s60, s60, s51")
    a(f"s_add_u32 s60, s60, {WS_A}")
    a(f"s_mul_i32 s61, s44, {448*896}")
    a(f"v_add_u32 {vr(vL1)}, {144*1024}, {vr(vL)}")
    a(f"s_mul_i32 s7, s44, {14*1024}")
    a(f"s_mul_i32 s6, s44, {14*8*896}")
    SW = [32, 33, 34, 35, 36, 37, 38]; SH = [39, 40, 41, 42, 43, 54, 55]
    for g in range(7):
        a(f"s_add_u32 s51, s64, {g}")
        a("s_cmp_ge_u32 s51, 7")
        a("s_cselect_b32 s62, 7, 0")
        a("s_sub_u32 s51, s51, s62")
        a(f"s_mul_i32 s{SW[g]}, s51, {64*896}")
        a(f"s_add_u32 s{SW[g]}, s{SW[g]}, s61")
        a(f"s_lshl_b32 s{SH[g]}, s51, 12")
        a(f"s_add_u32 s{SH[g]}, s{SH[g]}, s60")
    def pace(n):
        if len(a.vmq) > n:
            a(f"s_waitcnt vmcnt({n})"); a.vmq = a.vmq[len(a.vmq)-n:]
    def hstore(tl): a.vm(f"buffer_store_dwordx4 {vr(HP+4*tl,4)}, {vr(vL)}, s[24:27], {'s65' if tl < 4 else 's66'} offen offset:{1024*(tl%4)} {SC1}", "st")
    def hflag(): a.vm(f"buffer_store_dword {vr(vOne)}, v5, s[24:27], s59 offen {SC1}", "fl")
    lds_wait(a, "L_ha", vr(vC), f"v{u}", 4, sleep=2, off=HA-CNT)
    st(name="_ha")
    a("s_cmp_lt_u32 s50, 7")
    a("s_cbranch_scc1 L_htile")
    lds_add(a, vr(vC), vr(vOne), HX)
    for tl in range(7):
        pace(1); hstore(tl)
    a.wait(vm="all"); hflag()
    a("s_branch L_h_end")
    a("L_htile:")
    a.vmq = []
    a(f"s_setprio {cfg.PH2}")
    lds_wait(a, "L_hdh", vr(vC), f"v{u}", 4, off=HD-CNT)
    def slot(i): return (CB1 + 2048*i) if i < 6 else 2048*((i - 6) % 6 if i < 22 else i - 22)
    def wdma(i, half):
        if half == 0:
            a(f"s_add_u32 m0, s53, {slot(i)}")
            a(f"s_add_u32 s4, s{SW[i//4]}, {(i%4)*16*896}")
            a.vm(f"buffer_load_dwordx4 {vr(vD)}, s[28:31], s4 offen lds", ("w", i))
        else:
            a.vm(f"buffer_load_dwordx4 {vr(vD2)}, s[28:31], s4 offen offset:1024 lds", ("w", i))
    def wodma(k):
        a(f"s_add_u32 m0, s7, {WOS+k*1024}")
        a(f"s_add_u32 s5, s6, {k*8*896}")
        a.vm(f"buffer_load_dwordx4 {vr(vD)}, s[12:15], s5 offen lds", "wo")
    def wreg(i): return WREG + 8*(i-6) if 6 <= i < 22 else W + 8*(i & 1)
    def reads(i):
        for ct in range(2):
            for r_ in range(2):
                a.lg(f"ds_read_b64_tr_b16 {vr(wreg(i)+4*ct+2*r_,2)}, {vr(vT0+ct)} offset:{slot(i)+r_*1024}", ("r", i))
    seq = list(range(6, 22)) + list(range(6)) + [("wo", k) for k in range(0, 14, 2)]
    rd = 6; nst = 0; flagged = False
    for n, it in enumerate(seq):
        if nst < 7 and n % cfg.HSI == 0:
            pace(cfg.V1); hstore(nst); nst += 1
        if isinstance(it, tuple):
            for k in (it[1], it[1]+1):
                pace(cfg.V1); wodma(k)
        else:
            if 12 <= it < 22:
                while rd <= it - 6:
                    a.wait(vm=("w", rd)); reads(rd); rd += 1
                a.wait(lg=("r", it-6))
            for half in range(2):
                pace(cfg.V1); wdma(it, half)
        while rd < 22 and rd in seq[:n+1] and a._cnt(a.vmq, ("w", rd)) is None:
            if len(a.lgq) >= 12: a.wait(lg="all")
            reads(rd); rd += 1
        if nst == 7 and not flagged and a._cnt(a.vmq, "st") is None:
            hflag(); flagged = True
            st(name="hfl1")
    assert rd == 22 and flagged
    st(name="hpre")
    poll(a, "L_p2", f"v{u}", vr(vP), "s[24:27]", "s58", 1, sleep=8)
    st(name="hpoll2")
    a.wait(lg="all")
    hpool = [HR + 8*k for k in range(4)]
    hreg = {}
    opq = []
    nh = [0]
    def hload(i, tt):
        if tt == 0: hreg[i] = hpool.pop(0)
        a.vm(f"buffer_load_dwordx4 {vr(hreg[i]+4*tt,4)}, {vr(vL if tt == 0 else vL1)}, s[24:27], s{SH[i//4]} offen offset:{1024*(i%4)} {SC1}", ("h", i))
    ringq = [(i, half) for i in range(22, 28) for half in range(2)]
    def next_op(v):
        k = nh[0]
        if ringq and ringq[0][1] == 1: pace(v); wdma(*ringq.pop(0))
        elif k < 56 and (k % 2 or hpool): pace(v); hload(k // 2, k % 2); nh[0] += 1
        elif ringq: pace(v); wdma(*ringq.pop(0))
        else: return False
        return True
    for k in range(8): next_op(cfg.V2)
    reads(0)
    for i in range(28):
        if i == cfg.N1:
            while next_op(cfg.V3): pass
            st(name="hN1"); a("s_barrier")
        if i == min(27, cfg.N1 + cfg.N2): a("s_barrier")
        if i + 1 < 6 or 22 <= i + 1 < 28:
            assert not any(q[0] == i + 1 for q in ringq)
            a.wait(vm=("w", i+1)); reads(i+1)
        assert nh[0] >= 2*i + 2
        a.wait(vm=("h", i), lg=("r", i))
        if i == 5: lds_add(a, vr(vC), vr(vOne), HX, "c")
        for m in range(4):
            tt, ct = m // 2, m % 2
            acc = vr(ACC+16*(ct+2*tt), 16)
            a(f"v_mfma_f32_32x32x16_bf16 {acc}, {vr(wreg(i)+4*ct,4)}, {vr(hreg[i]+4*tt,4)}, {'0' if i==0 else acc}")
            if m == 0 and i >= 1:
                hpool.append(hreg[i-1])
                if 6 <= i-1 < 22: hpool.append(wreg(i-1))
            next_op(cfg.V2 if i < cfg.N1 else cfg.V3)
            if cfg.PAD and i < cfg.N1: a(f"s_nop {cfg.PAD-1}")
    assert nh[0] == 56 and not ringq and cfg.N1 >= 6
    a(f"v_add_u32 v6, s53, {vr(vL)}")
    a("s_lshl_b32 s51, s44, 12")
    a(f"s_add_u32 s51, s51, {CB1}")
    a(f"v_add_u32 v7, s51, {vr(vL)}")
    st(name="hdown")
    a("s_nop 7")
    for tl in range(4):
        for q in range(4):
            if tl < 3: a(f"ds_write_b128 v6, {vr(ACC+16*tl+4*q,4)} offset:{tl*4096+q*1024}")
            else: a(f"ds_write_b128 v7, {vr(ACC+16*tl+4*q,4)} offset:{q*1024}")
    a("s_waitcnt lgkmcnt(0)")
    a("s_barrier")
    a("L_h_end:")
    st.flush(63, 8)
    a("s_endpgm")
    for g in GL:
        lds_wait(a, f"L_gate{g}", vr(vC), vr(vG), 8 if g == 2 else 4, off=GATE(g))
        a(f"s_branch L_gate{g}_x")
    a("L_code_end:")

def build():
    a = Asm()
    st = Stamps(a, 0, 22)
    common(a, st)
    n0 = st.n
    gen_c(a, st)
    cn = st.names[1:]
    st.n = n0; st.names = st.names[:n0]
    gen_h(a, st)
    if asmlib.STAMP: a.raw(f"; STAMPS C {cn}\n; STAMPS H {st.names[1:]}")
    s = f"; @launch grid=(256,1,1) block=(512,1,1) lds={LDS}\n"
    s += '.amdgcn_target "amdgcn-amd-amdhsa--gfx950"\n.text\n' + kernel_head(NAME) + a.text()
    s += '.section .rodata,"a"\n' + kernel_desc(NAME, 256, 256, 102)
    if cfg.ALIGN:
        import align
        s, f_, m_ = align.align(s, nop=cfg.ALIGN if cfg.ALIGN > 1 else False)
    return s
def set_args(args):
    for x in args:
        if x.startswith("sel="): asmlib.STAMP_SEL = x[4:].split(",")
        elif "=" in x:
            k, v = x.split("="); setattr(cfg, k, eval(v))
if __name__ == "__main__":
    asmlib.STAMP = "--stamp" in sys.argv
    asmlib.STAMP_REAL = "--real" in sys.argv
    set_args(sys.argv[2:])
    open(sys.argv[1], "w").write(build())
```

```python
import sys, math, struct
import asmlib
from asmlib import *
def f2u(x): return struct.unpack("<I", struct.pack("<f", x))[0]
NAME = "parallel_sum__softmax_full_mha__glu_gated_reglu__prompt_kernel"
WS_KV, WS_A, WS_F = 2<<20, 6<<20, 16<<20
WS_BYTES = WS_F + 3*32768
QSCALE = math.log2(math.e) / math.sqrt(28.0)
LDS = 163840
XS = 49152; AR = 28672
OU = 14336 + 128
FA = {"A": 9216, "B": 16512, "C": 0}
FSLOT = ["A", "B", "D", "C", "A", "B", "D"]
STO = 24576
CNT = 163712
GATE = lambda g: 4*g
CONS = lambda g: 32 + 4*g
HD = CNT + 48; HA = CNT + 52
GQ1 = 56; GQ2 = 60; CQ = 28; CQ2 = 0; HX = 44
CA = 64; CW = 68; R1 = 72; RX = 80
VS0 = 32768; VS2 = 25600
WOS = 98304; NS = 6; RNG = NS*2048
CB1 = 49152; EXB = 65536
WS_Q = 0
class P: pass
cfg = P()
cfg.N1 = 16
cfg.N2 = 4
cfg.SPIN = 1 << 16
cfg.ROT = 0
cfg.V1 = 3; cfg.V2 = 4; cfg.V3 = 12
cfg.XA = 4; cfg.BX = 2
cfg.Q0 = 2; cfg.Q1 = 0
cfg.LPRE = 8
cfg.HPRE = 4
cfg.HSI = 1; cfg.HSN = 1; cfg.PE = 2; cfg.WDP = [0, 0, 0]; cfg.F3 = 1
cfg.SLOTS = 6
cfg.SPF = 0; cfg.SPQ = 0; cfg.SPS = 0
cfg.LP2 = 2; cfg.T6 = 0; cfg.HST = 0; cfg.VN = 9; cfg.V1B = 5; cfg.NOM = 0; cfg.ITS = 0; cfg.CQF = 3; cfg.LN0 = 0; cfg.PF = 2; cfg.ZM = 0; cfg.MAP = 1
cfg.LAG = 7; cfg.WOP = 0
cfg.W2 = 1
cfg.K0 = 24; cfg.LNG = 3
cfg.ALIGN = 5
cfg.PC = 0; cfg.PH2 = 1; cfg.PAD = 8
cfg.SIG = 1
SC1 = "sc1"

def poll(a, lab, vdst, voff, srd_, soff, want_ge, cnt="s62", sleep=2):
    a(f"s_mov_b32 {cnt}, 0")
    a(f"{lab}:")
    a(f"buffer_load_dword {vdst}, {voff}, {srd_}, {soff} offen sc1")
    a(f"s_add_u32 {cnt}, {cnt}, 1")
    a(f"s_waitcnt vmcnt(0)")
    a(f"v_cmp_le_u32 vcc, {want_ge}, {vdst}")
    a(f"s_cmp_gt_u32 {cnt}, {cfg.SPIN}")
    a(f"s_cbranch_scc1 {lab}_x")
    a(f"s_nop 1")
    a(f"s_cmp_eq_u64 vcc, -1")
    a(f"s_cbranch_scc1 {lab}_x")
    a(f"s_sleep {sleep}")
    a(f"s_branch {lab}")
    a(f"{lab}_x:")
    a.vmq = []
def lds_wait(a, lab, vaddr, vdst, n, sleep=0, off=0):
    a(f"{lab}:")
    if sleep: a(f"s_sleep {sleep}")
    a(f"ds_read_b32 {vdst}, {vaddr} offset:{off}")
    a("s_waitcnt lgkmcnt(0)")
    a(f"v_cmp_gt_u32 vcc, {n}, {vdst}")
    a("s_nop 3")
    a(f"s_cbranch_vccnz {lab}")
    a.lgq = []

def common(a, st):
    a("s_cmp_ge_u32 s2, 256")
    a("s_cbranch_scc1 L_end")
    st(wait=False, real=True); st(wait=False)
    a("s_load_dwordx8 s[4:11], s[0:1], 0")
    a("s_load_dwordx8 s[12:19], s[0:1], 32")
    a("s_load_dwordx4 s[20:23], s[0:1], 64")
    a("v_lshrrev_b32 v1, 6, v0")
    a("v_and_b32 v0, 63, v0")
    a("v_readfirstlane_b32 s63, v1")
    a("s_and_b32 s48, s2, 7")
    a("s_lshr_b32 s47, s2, 3")
    a("s_lshr_b32 s50, s47, 2")
    a("s_and_b32 s51, s47, 3")
    a("s_and_b32 s44, s63, 3")
    a("s_cmp_ge_u32 s63, 4")
    a("s_cbranch_scc1 L_helper")
def mapping(a):
    if cfg.MAP == 0:
        a("s_and_b32 s46, s48, 3")
        a("s_lshl_b32 s46, s46, 2")
        a("s_add_u32 s46, s46, s51")
        a("s_lshr_b32 s45, s48, 2")
        a("s_lshl_b32 s45, s45, 3")
        a("s_add_u32 s45, s45, s50")
    else:
        a("s_and_b32 s46, s48, 1")
        a("s_lshl_b32 s46, s46, 3")
        a("s_add_u32 s46, s46, s50")
        a("s_lshr_b32 s45, s48, 1")
        a("s_lshl_b32 s45, s45, 2")
        a("s_add_u32 s45, s45, s51")
    a("s_lshl_b32 s49, s48, 2")
    a("s_add_u32 s49, s49, s51")
    a("s_lshl_b32 s3, s51, 1")
    a("s_add_u32 s64, s3, s50")
    a("s_cmp_ge_u32 s64, 7")
    a("s_cselect_b32 s62, 7, 0")
    a("s_sub_u32 s64, s64, s62")
    if cfg.ROT == 2: a("s_mov_b32 s3, s64")
    if cfg.ROT == 0: a("s_mov_b32 s3, 0")
    a("s_lshl_b32 s52, s45, 2")
    a("s_add_u32 s52, s52, s44")
def emit(a, op):
    if op[1] == "vm": a.vm(op[0], op[2])
    elif op[1] == "lg": a.lg(op[0], op[2])
    else: a(op[0])
def wait_lg_tags(a, tags):
    n = min([c for c in (a._cnt(a.lgq, tg) for tg in tags) if c is not None], default=None)
    if n is not None:
        assert n <= 15
        a(f"s_waitcnt lgkmcnt({n})")
        a.lgq = a.lgq[len(a.lgq)-n:] if n else []
V = lambda s: (s, "v")

def lds_add(a, vaddr, vone, off, tag=None):
    a("s_mov_b64 exec, 1")
    a.lg(f"ds_add_u32 {vaddr}, {vone} offset:{off}", tag)
    a("s_mov_b64 exec, -1")
def ffn_setup(a, vDF, t):
    a("s_cmp_ge_u32 s44, 2")
    a("s_cselect_b32 s32, s14, s12")
    a("s_cselect_b32 s33, s15, s13")
    a(f"s_mov_b32 s34, {448*1792*2}")
    a("s_mov_b32 s35, 0x00020000")
    a("s_cselect_b32 s51, 128, 0")
    a(f"s_mul_i32 s53, s44, {AR}")
    a("s_add_u32 s53, s53, s51")
    a(f"s_add_u32 s53, s53, {XS}")
    a("s_mul_i32 s42, s44, 7168")
    a("s_add_u32 s42, s42, s51")
    a("s_and_b32 s51, s44, 1")
    a(f"s_mul_i32 s54, s51, {32*3584}")
    a("s_mul_i32 s51, s46, 224")
    for j in range(7):
        a(f"v_add_u32 v{t}, {64*j}, v0")
        a(f"v_mul_u32_u24 v{t+1}, 4682, v{t}")
        a(f"v_lshrrev_b32 v{t+1}, 16, v{t+1}")
        a(f"v_mul_u32_u24 v{t+2}, {3584-14*16}, v{t+1}")
        a(f"v_lshl_add_u32 v{t+2}, v{t}, 4, v{t+2}")
        if j % 4: a(f"v_subrev_u32 v{t+2}, {1024*(j%4)}, v{t+2}")
        a(f"v_add_u32 {vr(vDF+j)}, s51, v{t+2}")
def gap(a, n):
    while n > 0:
        a(f"s_nop {min(n, 16) - 1}"); n -= 16
def ffn_dma(a, g, vDF, lo=0, hi=7, sp=None):
    sp = cfg.SPF if sp is None else sp
    if lo:
        base, off = ("s42", 0) if FSLOT[g] == "D" else ("s53", FA[FSLOT[g]])
        assert lo == 4
        a(f"s_add_u32 m0, {base}, {off+4096}")
        a(f"s_add_u32 s43, s3, {g}")
        a("s_cmp_ge_u32 s43, 7")
        a("s_cselect_b32 s62, 7, 0")
        a("s_sub_u32 s43, s43, s62")
        a(f"s_mul_i32 s43, s43, {64*3584}")
        a("s_add_u32 s43, s43, s54")
        for j in range(4, 7):
            a.vm(f"buffer_load_dwordx4 {vr(vDF+j)}, s[32:35], s43 offen offset:{1024*(j%4)} lds", ("F", g))
            if j < 6: gap(a, sp)
        return
    base, off = ("s42", 0) if FSLOT[g] == "D" else ("s53", FA[FSLOT[g]])
    a(f"s_add_u32 m0, {base}, {off}")
    a(f"s_add_u32 s43, s3, {g}")
    a("s_cmp_ge_u32 s43, 7")
    a("s_cselect_b32 s62, 7, 0")
    a("s_sub_u32 s43, s43, s62")
    a(f"s_mul_i32 s43, s43, {64*3584}")
    a("s_add_u32 s43, s43, s54")
    for j in range(hi):
        if j == 4:
            a(f"s_add_u32 m0, {base}, {off+4096}"); a("s_nop 0")
        a.vm(f"buffer_load_dwordx4 {vr(vDF+j)}, s[32:35], s43 offen offset:{1024*(j%4)} lds", ("F", g))
        if j < hi - 1: gap(a, sp)
def xread_addr(a, vX, t):
    a(f"s_mul_i32 s56, s44, {AR}")
    a(f"s_add_u32 s56, s56, {XS}")
    a(f"v_and_b32 v{t}, 31, v0")
    a(f"v_lshlrev_b32 v{t+1}, 7, v{t}")
    a(f"v_add_u32 v{t+1}, s56, v{t+1}")
    a(f"v_bfe_u32 v{t}, v0, 1, 3")
    a(f"v_lshrrev_b32 v{t+2}, 5, v0")
    a(f"v_xor_b32 v{t}, v{t}, v{t+2}")
    a(f"v_lshl_add_u32 {vr(vX)}, v{t}, 4, v{t+1}")
    for sp in range(1, 4): a(f"v_xor_b32 {vr(vX+sp)}, {32*sp}, {vr(vX)}")
def ln_ops(X0, k, LT, vR, nt=2):
    ops = []
    for b in range(0, 4, nt):
        for i in range(nt):
            r = X0 + 4*k + b + i
            ops += [f"v_lshlrev_b32 v{LT+2*i}, 16, v{r}", f"v_and_b32 v{LT+2*i+1}, s61, v{r}"]
        ops += [f"v_fma_f32 v{LT+i}, v{LT+i}, v{vR}, v{vR+1}" for i in range(2*nt)]
        ops += [f"v_cvt_pk_bf16_f32 v{X0+4*k+b+i}, v{LT+2*i}, v{LT+2*i+1}" for i in range(nt)]
    return ops
def sigma(a, dst, src):
    if cfg.SIG:
        a(f"s_add_u32 s62, {src}, 4")
        a("s_bfe_u32 s62, s62, 0x10003")
        a(f"s_xor_b32 {dst}, {src}, s62")
    else:
        a(f"s_mov_b32 {dst}, {src}")

def gen_c(a, st):
    X0 = 16; AQ = 128; WR = 176; RING = 10
    AS = 216; vR = 220; vXD = 224; vX = 228; LT = 232; t = 240
    vTQ = 2; vL = 15; vDF = 249
    a("s_setprio 2")
    mapping(a)
    a(f"v_lshrrev_b32 v{t+2}, 3, v0")
    a("s_lshl_b32 s51, s52, 5")
    a(f"v_add_u32 v{t+2}, s51, v{t+2}")
    a(f"v_mul_u32_u24 v{t+2}, 896, v{t+2}")
    a(f"v_lshrrev_b32 v{t+3}, 4, v0")
    a(f"v_and_b32 v{t+4}, 7, v0")
    a(f"v_xor_b32 v{t+3}, v{t+3}, v{t+4}")
    a(f"v_lshl_add_u32 {vr(vXD)}, v{t+3}, 4, v{t+2}")
    a(f"v_xor_b32 v{t+3}, 64, {vr(vXD)}")
    a(f"v_add_u32 {vr(vXD+1)}, 6144, v{t+3}")
    a(f"v_add_u32 {vr(vXD+2)}, {2*6144}, {vr(vXD)}")
    a(f"v_add_u32 {vr(vXD+3)}, {3*6144}, v{t+3}")
    a(f"s_mul_i32 s64, s44, {AR}")
    a(f"s_add_u32 s64, s64, {XS}")
    a("s_lshl_b32 s55, s3, 7")
    a(f"s_mov_b32 s30, {2048*448*2}")
    a("s_mov_b32 s31, 0x00020000")
    a("s_mov_b32 m0, s64")
    a("s_waitcnt lgkmcnt(0)")
    a("s_mov_b32 s28, s4"); a("s_mov_b32 s29, s5")
    st(name="_c0")
    def xload(cb):
        for rg in range(4):
            a.vm(f"buffer_load_dwordx4 {vr(vXD+rg)}, s[28:31], s55 offen offset:{rg*1024} lds", ("x", cb))
        if cb < 6:
            a(f"s_add_u32 m0, s64, {(cb+1)*4096}")
            a("s_add_u32 s55, s55, 128"); a("s_cmp_ge_u32 s55, 896"); a("s_cselect_b32 s55, 0, s55")
    for cb in range(cfg.XA - 1): xload(cb)
    srd(a, 24, 22, WS_BYTES)
    ffn_setup(a, vDF, t)
    srd(a, 12, 20, 256)
    xread_addr(a, vX, t)
    a(f"v_lshlrev_b32 {vr(vL)}, 4, v0")
    a(f"v_lshrrev_b32 v{t+5}, 5, v0")
    sigma(a, "s60", "s46")
    a(f"v_bfe_u32 v{t+2}, v0, 2, 2")
    a(f"v_and_b32 v{t+3}, 3, v0")
    a(f"v_bfe_u32 v{t+4}, v0, 4, 1")
    a(f"v_lshlrev_b32 v{t+3}, 3, v{t+3}")
    a(f"v_lshl_add_u32 v{t+3}, v{t+4}, 5, v{t+3}")
    a(f"v_lshl_add_u32 v{t+6}, v{t+5}, 3, v{t+2}")
    a(f"v_mul_u32_u24 v{t+6}, 192, v{t+6}")
    a("s_and_b32 s51, s60, 1")
    a("s_lshl_b32 s51, s51, 3")
    a(f"v_add3_u32 {vr(vTQ)}, v{t+6}, v{t+3}, s51")
    a(f"v_add_u32 {vr(vTQ+1)}, {XS}, {vr(vTQ)}")
    a(f"v_add_u32 {vr(vTQ+2)}, {XS+2*AR}, {vr(vTQ)}")
    a(f"v_and_b32 v5, 31, v0")
    a(f"v_lshlrev_b32 v5, 6, v5")
    a(f"v_lshl_add_u32 v5, v{t+5}, 3, v5")
    a(f"v_bfe_u32 v6, v0, 1, 2")
    a(f"v_lshl_add_u32 v5, v6, 4, v5")
    a("s_lshl_b32 s51, s44, 12")
    a(f"s_add_u32 s51, s51, {VS0}")
    a("s_sub_u32 s65, s64, s51")
    a(f"s_add_u32 s65, s65, {VS2}")
    a(f"v_add_u32 v5, s51, v5")
    a(f"v_lshl_add_u32 v6, v{t+5}, 2, v{t+2}")
    a(f"v_lshrrev_b32 v7, 1, v6")
    a(f"v_lshlrev_b32 v7, 4, v7")
    a(f"v_xor_b32 v7, v7, v{t+3}")
    a(f"v_lshlrev_b32 v6, 6, v6")
    a(f"v_add3_u32 v6, v6, v7, s51")
    TY = [0, 1, 11]
    a("s_mov_b32 s20, s8"); a("s_mov_b32 s21, s9")
    a("s_mul_i32 s60, s60, 3")
    for i in range(3):
        a(f"s_add_u32 s51, s60, {i}")
        a(f"s_lshr_b32 s{TY[i]}, s51, 4")
        a("s_and_b32 s51, s51, 15")
        a("s_lshl_b32 s51, s51, 6")
        a("s_add_u32 s51, s51, s52")
        a("s_lshl_b32 s56, s51, 11")
        a("s_lshl_b32 s57, s51, 12")
        a(f"s_lshl_b32 s58, s{TY[i]}, 11")
        a("s_add_u32 s57, s57, s58")
        a(f"s_add_u32 s57, s57, {WS_KV-2048}")
        a(f"s_cmp_eq_u32 s{TY[i]}, 0")
        a(f"s_cselect_b32 s{8+i}, s56, s57")
        a(f"s_cselect_b32 s{36+i}, 0, 1.0")
    a("s_mov_b32 s40, 0"); a("s_mov_b32 s41, -1")
    for s_ in ("s_lshl_b32 s59, s45, 4", "s_add_u32 s59, s59, s46", "s_lshl_b32 s59, s59, 7", "s_lshl_b32 s51, s44, 2", "s_add_u32 s59, s59, s51", f"s_add_u32 s59, s59, {WS_F}",
               "v_lshlrev_b32 v13, 25, v0", "v_mov_b32 v14, 1", f"v_mov_b32 v12, {CNT}", f"s_mov_b32 s39, {f2u(QSCALE):#x}",
               "v_and_b32 v222, 15, v0", "v_lshlrev_b32 v222, 4, v222"): a(s_)
    for i in range(4): a(f"v_mov_b32 v{AS+i}, 0")
    a(f"v_mov_b32 v{t+8}, 0x3f803f80")
    a("s_mov_b32 s61, 0xffff0000")
    a(f"v_lshlrev_b32 v11, 3, v0")
    a(f"v_add_u32 v11, s64, v11")
    st(name="setup")
    xload(cfg.XA - 1)
    def dots(cb):
        for r in range(X0+16*cb, X0+16*cb+16):
            a(f"v_dot2c_f32_bf16 v{AS+(r&1)}, v{r}, v{t+8}")
            a(f"v_dot2c_f32_bf16 v{AS+2+(r&1)}, v{r}, v{r}")
    for cb in range(7):
        a.wait(vm=("x", cb))
        st(name=("" if cb == 6 else "_") + f"x{cb}")
        for sp in range(4): a.lg(f"ds_read_b128 {vr(X0+16*cb+4*sp,4)}, {vr(vX+sp)} offset:{cb*4096}", ("x", cb))
        if cb + cfg.XA < 7: xload(cb + cfg.XA)
        if cb == cfg.BX: a("s_barrier")
        if cb:
            a.wait(lg=("x", cb-1)); dots(cb-1)
    a.wait(lg="all")
    a("s_barrier")
    dots(6)
    a(f"s_mov_b32 s51, {f2u(1/448):#x}")
    a(f"s_mov_b32 s55, {f2u(1e-5):#x}")
    a("s_nop 0")
    a(f"v_add_f32 v{AS}, v{AS}, v{AS+1}")
    a(f"v_add_f32 v{AS+2}, v{AS+2}, v{AS+3}")
    a(f"v_mov_b32 v{AS+1}, v{AS}")
    a(f"v_mov_b32 v{AS+3}, v{AS+2}")
    a("s_nop 1")
    a(f"v_permlane32_swap_b32 v{AS+1}, v{AS}")
    a(f"v_permlane32_swap_b32 v{AS+3}, v{AS+2}")
    a("s_nop 1")
    a(f"v_add_f32 v{AS}, v{AS}, v{AS+1}")
    a(f"v_add_f32 v{AS+2}, v{AS+2}, v{AS+3}")
    a(f"v_mul_f32 v{AS}, s51, v{AS}")
    a(f"v_mul_f32 v{AS+2}, s51, v{AS+2}")
    a(f"v_fma_f32 v{AS+2}, -v{AS}, v{AS}, v{AS+2}")
    a(f"v_max_f32 v{AS+2}, 0, v{AS+2}")
    a(f"v_add_f32 v{AS+2}, s55, v{AS+2}")
    a(f"v_rsq_f32 v{vR}, v{AS+2}")
    a("s_nop 0")
    a(f"v_mul_f32 v{vR+1}, -v{AS}, v{vR}")
    st(name="_t0")
    def frag(f):
        g, sp, tl = f // 12, (f % 12) // 3, f % 3
        reg = WR + 4*(f % RING)
        for rd in range(2):
            if g < 4: ad, off = vTQ, g*12288 + 16*sp*192
            else: ad, off = vTQ + 1 + sp//2, (sp % 2)*AR + (g-4)*3072
            a.lg(f"ds_read_b64_tr_b16 {vr(reg+2*rd,2)}, {vr(ad)} offset:{off + 4*rd*192 + tl*56}", ("f", f))
    a.raw(".p2align 3")
    def ln_pk(k):
        for i in range(4):
            r = X0 + 4*k + i
            a(f"v_lshlrev_b32 v{LT+2*i}, 16, v{r}"); a(f"v_and_b32 v{LT+2*i+1}, s61, v{r}")
        for i in range(4): a(f"v_pk_fma_f32 {vr(LT+2*i,2)}, {vr(LT+2*i,2)}, {vr(vR,2)}, {vr(vR,2)} op_sel:[0,0,1] op_sel_hi:[1,0,1]")
        for i in range(4): a(f"v_cvt_pk_bf16_f32 v{X0+4*k+i}, v{LT+2*i}, v{LT+2*i+1}")
    for k in range(cfg.LPRE - cfg.LP2): ln_pk(k)
    st(name="_p0")
    a("s_barrier")
    st(name="b0")
    rp = 0
    a.lg(f"ds_write_b64 v11, {vr(vR,2)} offset:{STO}", "sto")
    for k in range(7): frag(rp); rp += 1
    for k in range(cfg.LPRE - cfg.LP2, cfg.LPRE): ln_pk(k)
    lq = []
    for k in range(cfg.LPRE, 28): lq += [(k, o) for o in ln_ops(X0, k, LT, vR, 4)]
    lim = 24
    for f in range(84):
        k, tl = f // 3, f % 3
        if tl == 0:
            assert not lq or lq[0][0] > k
            wait_lg_tags(a, [("f", f+2)])
        acc = vr(AQ + 16*tl, 16)
        a(f"v_mfma_f32_32x32x16_bf16 {acc}, {vr(WR+4*(f%RING),4)}, {vr(X0+4*k,4)}, {'0' if f < 3 else acc}")
        st(name=f"_a{f}")
        if f == cfg.CQF:
            assert a._cnt(a.lgq, "sto") is None
            lds_add(a, "v12", "v14", CQ, "c")
        if f == 33: lds_add(a, "v12", "v14", CQ2, "c")
        for b, off, nl_ in ((24, GQ1, 48), (48, GQ2, 84)):
            if f == b - 10: a.lg(f"ds_read_b32 v1, v12 offset:{off}", "g")
            if f == b - 8:
                a.wait(lg="g"); a("v_cmp_gt_u32 vcc, 4, v1")
            if f == b - 7:
                st(name=f"_w{b//12}", wait=False) if False else None
                a(f"s_cbranch_vccnz L_gq{b}"); a(f"L_gq{b}_x:")
                st(name=("_" if b == 24 else "") + f"b{b//12}")
                lim = nl_
        if f == 79:
            assert rp == 84
            st(name="_w7")
            a.wait(lg="all")
            a("s_barrier")
            st(name="b7")
            a.vm(f"buffer_load_dword v223, v222, s[12:15], 0 offen {SC1}", "go")
        if f == 80: ffn_dma(a, 2, vDF, 4)
        n = 0
        while rp < lim and rp <= f + 8 and n < 2:
            frag(rp); rp += 1; n += 1
        take = -(-len(lq) // max(1, 79 - f))
        for q in range(min(take, len(lq))): a(lq.pop(0)[1])
    assert not lq
    a(f"s_setprio {cfg.PE}")
    O = 16; S = 80; PP = 192; KV = 128; T = 200
    QL = [248, 224, 232, 240]
    for i in range(1, 4): a(f"v_xor_b32 v{7+i}, {16*i}, v5")
    a("s_nop 4")
    for tl in range(3):
        b = AQ + 16*tl; d = S + 8*tl
        a(f"v_mov_b32 v7, s{36+tl}")
        a(f"s_cmp_lg_u32 s{TY[tl]}, 0")
        a(f"s_cbranch_scc1 L_nq{tl}")
        for r in range(16): a(f"v_mul_f32 v{b+r}, s39, v{b+r}")
        a(f"L_nq{tl}:")
        a(f"v_cndmask_b32 v{b+12}, v{b+12}, v7, s[40:41]")
        a(f"v_cndmask_b32 v{b+13}, v{b+13}, 0, s[40:41]")
        for r in range(8): a(f"v_cvt_pk_bf16_f32 v{d+r}, v{b+2*r}, v{b+2*r+1}")
        a(f"s_cmp_eq_u32 s{TY[tl]}, 2")
        a(f"v_cndmask_b32 v{d+7}, v{d+7}, 0, s[40:41]")
        a(f"s_cbranch_scc0 L_vx{tl}")
        if tl == 2:
            for r in (5, 8, 9, 10, 6): a(f"v_add_u32 v{r}, s65, v{r}")
        off = 2048 if tl == 1 else 0
        for i in range(4): a(f"ds_write_b64 v{[5,8,9,10][i]}, {vr(d+2*i,2)} offset:{off}")
        for i in range(4): a(f"ds_read_b64_tr_b16 {vr(d+2*i,2)}, v6 offset:{off+512*i}")
        a(f"L_vx{tl}:")
        if tl == 0 and cfg.F3: ffn_dma(a, 3, vDF, 0, 4)
        if tl == 2 and cfg.F3: ffn_dma(a, 3, vDF, 4)
    a("s_waitcnt lgkmcnt(0)")
    for tl in range(3):
        d = S + 8*tl
        a.vm(f"buffer_store_dwordx4 {vr(d,4)}, {vr(vL)}, s[24:27], s{8+tl} offen {SC1}", "st")
        gap(a, cfg.SPS)
        a.vm(f"buffer_store_dwordx4 {vr(d+4,4)}, {vr(vL)}, s[24:27], s{8+tl} offen offset:1024 {SC1}", "st")
        gap(a, cfg.SPS)
    st(name="_st0")
    a(f"s_setprio {cfg.PF}")
    if not cfg.F3: ffn_dma(a, 3, vDF)
    def wd_touch(pos):
        for k, p in enumerate(cfg.WDP):
            if p != pos: continue
            if k < 2:
                srd(a, 36, 16, 1792*448*2)
                a(f"v_min_u32 v3, 48, v0")
                a(f"v_lshlrev_b32 v3, 7, v3")
                a("s_lshl_b32 s51, s47, 3")
                a("s_add_u32 s51, s51, s44")
                a(f"s_add_u32 s51, s51, {4*k}")
                a(f"s_mul_i32 s51, s51, {49*128}")
                a.vm(f"buffer_load_dword v7, v3, s[36:39], s51 offen", "pf")
            else:
                srd(a, 36, 20, 448*448*2)
                a(f"v_min_u32 v4, 24, v0")
                a(f"v_lshlrev_b32 v4, 7, v4")
                a("s_lshl_b32 s51, s47, 2")
                a("s_add_u32 s51, s51, s44")
                a(f"s_mul_i32 s51, s51, 3136")
                a.vm(f"buffer_load_dword v7, v4, s[36:39], s51 offen", "pf")
    wd_touch(3)
    a.wait(vm=("F", 2))
    lds_add(a, "v12", "v14", GATE(2))
    st(name="_g2")
    lds_wait(a, f"L_cons4", "v12", "v2", 4, sleep=1, off=CONS(0))
    st(name="_c4")
    ffn_dma(a, 4, vDF)
    st(name="_i4")
    wd_touch(4)
    if cfg.F3:
        a.wait(vm=("F", 3))
        lds_add(a, "v12", "v14", GATE(3))
    a("v_cmp_gt_u32 vcc, 1, v223")
    a("s_nop 3")
    a("s_cbranch_vccnz L_go"); a("L_go_x:")
    a.wait(vm="st")
    a.vm(f"buffer_store_dword v14, v13, s[24:27], s59 offen {SC1}", "fl")
    st(name="fl0")
    if not cfg.F3:
        a.wait(vm=("F", 3))
        lds_add(a, "v12", "v14", GATE(3))
    lds_wait(a, f"L_cons5", "v12", "v2", 4, sleep=1, off=CONS(1))
    st(name="_c5")
    ffn_dma(a, 5, vDF)
    wd_touch(5)
    a.wait(vm=("F", 4))
    lds_add(a, "v12", "v14", GATE(4))
    st(name="_g4")
    lds_wait(a, f"L_cons6", "v12", "v2", 4, sleep=1, off=CONS(2))
    st(name="_c6")
    ffn_dma(a, 6, vDF)
    wd_touch(6)
    if cfg.K0 == 24:
        a.wait(vm=("F", 5))
        lds_add(a, "v12", "v14", GATE(5))
    a("s_lshl_b32 s65, s48, 1")
    a("s_and_b32 s51, s47, 1")
    a("s_add_u32 s65, s65, s51")
    a("s_lshr_b32 s66, s47, 1")
    a(f"v_bfe_u32 v{t+2}, v0, 2, 2")
    a(f"v_bfe_u32 v{t+4}, v0, 4, 1")
    for s_ in ("s_lshl_b32 s51, s66, 2", "s_add_u32 s51, s51, s44", f"s_mul_i32 s67, s51, {144*1024}", "s_lshl_b32 s51, s65, 11", "s_add_u32 s67, s67, s51",
               f"s_add_u32 s67, s67, {WS_A+112*1024}",
               "s_lshl_b32 s51, s44, 2",
               "s_lshl_b32 s60, s66, 4", "s_add_u32 s60, s60, s65", "s_lshl_b32 s60, s60, 7", "s_add_u32 s60, s60, s51", f"s_add_u32 s60, s60, {WS_F+65536}",
               "s_lshl_b32 s51, s65, 18", "s_lshl_b32 s58, s44, 16", "s_add_u32 s51, s51, s58", f"s_add_u32 s51, s51, {WS_KV}",
               "s_add_u32 s4, s22, s51", "s_addc_u32 s5, s23, 0", "s_mov_b32 s6, 0x10000", "s_mov_b32 s7, 0x00020000",
               "s_lshl_b32 s69, s66, 12"): a(s_)
    for k, (add, dst) in enumerate(((0, "s56"), (16, "s57"), (32, "s58"))):
        a(f"s_add_u32 s51, s65, {add}")
        a("s_mul_i32 s51, s51, 43")
        a("s_lshr_b32 s51, s51, 7")
        sigma(a, "s51", "s51")
        a(f"s_lshl_b32 {dst}, s51, 7")
    a("s_lshl_b32 s51, s66, 11")
    a("s_add_u32 s56, s56, s51")
    a("s_lshl_b32 s51, s44, 13")
    a("s_add_u32 s57, s57, s51")
    a("s_add_u32 s58, s58, s51")
    a(f"v_lshlrev_b32 v1, 11, v{t+2}")
    a(f"v_add_u32 v{t+6}, s58, v1")
    a(f"v_add_u32 v1, s57, v1")
    a(f"v_cmp_eq_u32 vcc, 1, v{t+4}")
    a(f"v_mov_b32 v{t+7}, s56")
    a(f"v_and_b32 v{t+3}, 3, v0")
    a(f"v_cndmask_b32 v1, v1, v{t+6}, vcc")
    a(f"v_cndmask_b32 v1, v1, v{t+7}, s[40:41]")
    a(f"v_lshl_add_u32 v1, v{t+3}, 2, v1")
    a(f"s_mov_b32 s68, {WS_F}")
    a.vm(f"buffer_load_dword v2, v1, s[24:27], s68 offen {SC1}", "p1")
    a.wait(vm=("F", 6))
    lds_add(a, "v12", "v14", GATE(5 if cfg.K0 == 20 else 6))
    st(name="_cf6")
    for j in range(4):
        for s_ in (f"s_add_u32 s51, s44, {j}", "s_and_b32 s51, s51, 3", f"s_mul_i32 s55, s51, 12288", f"s_add_u32 s55, s55, {CB1}", f"v_add_u32 v{T+4+j}, s55, {vr(vL)}",
                   "s_lshl_b32 s55, s65, 4", "s_add_u32 s55, s55, s66", "s_lshl_b32 s55, s55, 2", "s_add_u32 s55, s55, s51", f"s_lshl_b32 s{8+j}, s55, 11"): a(s_)
    a("s_mov_b32 s55, 0")
    a.wait(vm="p1")
    a("v_cmp_gt_u32 vcc, 1, v2")
    a("s_nop 3")
    a("s_cbranch_vccz L_p1_x")
    def kvload(slot, j): return f"buffer_load_dwordx4 {vr(KV+16*slot+4*j,4)}, {vr(vL)}, s[4:7], s69 offen offset:{1024*j} {SC1}"
    kvadv = ["s_add_u32 s69, s69, 4096", "s_and_b32 s69, s69, 0xffff"]
    poll(a, "L_p1", "v2", "v1", "s[24:27]", "s68", 1, sleep=4)
    st(name="poll1")
    for j in (1, 2, 3, 0):
        for ks in range(2): a.vm(f"buffer_load_dwordx4 {vr(QL[j]+4*ks,4)}, {vr(vL)}, s[24:27], s{8+j} offen offset:{1024*ks} {SC1}", "q")
    for sl in range(3):
        for j in range(4): a.vm(kvload(sl, j), ("kv", sl))
        for x in kvadv: a(x)
    for r in range(4): a(f"v_mov_b32 v{PP+4+r}, 0")
    for r in range(4): a(f"v_mov_b32 v{KV+48+12+r}, 0")
    if cfg.ZM:
        for j in range(4): a(f"v_mfma_f32_32x32x16_bf16 {vr(O+16*j,16)}, {vr(PP+4,4)}, {vr(PP+4,4)}, 0")
    a(f"s_setprio {cfg.PC}")
    if not cfg.ZM:
        for r in range(64): a(f"v_mov_b32 v{O+r}, 0")
    QO = [1, 2, 3, 0]
    def qk(n, ks):
        kt, qt = (n//4) % 4, n % 4
        s = vr(S+16*(n&1), 16)
        return f"v_mfma_f32_32x32x16_bf16 {s}, {vr(KV+16*kt+4*ks,4)}, {vr(QL[QO[qt]]+4*ks,4)}, {'0' if ks==0 else s}"
    def pv(n, ks):
        kt, qt = (n//4) % 4, n % 4
        o = vr(O+16*QO[qt], 16)
        return f"v_mfma_f32_32x32x16_bf16 {o}, {vr(KV+16*kt+8+4*ks,4)}, {vr(PP+4*ks,4)}, {o}"
    a.wait(vm=("kv", 0))
    lds_add(a, "v12", "v14", HA-CNT)
    st(name="att0")
    a(qk(0, 0)); a(qk(0, 1))
    a("s_nop 7"); a("s_nop 3")
    a.raw(".p2align 3")
    a("L_att:")
    def softmax(n, m, odd):
        sb = S + 16*(n & 1)
        for j in range(4):
            a(f"v_exp_f32{'_e64' if (odd and j == 1) else ''} v{sb+4*m+j}, v{sb+4*m+j}")
        for j in range(2): a(f"v_cvt_pk_bf16_f32 v{PP+2*m+j}, v{sb+4*m+2*j}, v{sb+4*m+2*j+1}")
    for n in range(16):
        kt, qt = n//4, n % 4
        ms = [qk(n+1, 0), qk(n+1, 1), pv(n-1, 1), pv(n, 0)]
        for m in range(4):
            a(ms[m])
            odd = False
            if n == 12 and m == 0:
                a("s_cbranch_scc1 L_last"); a("s_nop 0")
            if m == 0: a(kvload((kt+3) % 4, qt))
            if qt == 2 and m == 2 and kt == 0:
                a("s_add_u32 s55, s55, 1"); odd = True
            if n == 0 and m == 1 and asmlib.STAMP and cfg.ITS:
                a("s_mov_b64 s[96:97], s[94:95]"); a("s_mov_b64 s[94:95], s[92:93]"); a("s_mov_b64 s[92:93], s[90:91]"); a("s_memtime s[90:91]")
            if qt == 2 and m == 3: a("s_waitcnt vmcnt(9)"); odd = True
            if qt == 0 and m == 2: a("s_waitcnt vmcnt(9)"); odd = True
            if qt == 3 and m == 1: a(kvadv[0])
            if qt == 3 and m == 2: a(kvadv[1])
            if qt == 3 and m == 3 and kt == 0:
                a("s_cmp_eq_u32 s55, 4"); a("s_cselect_b32 s6, 0, s6")
            if qt == 3 and m == 3 and kt == 2: a("s_cmp_eq_u32 s55, 4"); odd = True
            softmax(n, m, odd)
    a("s_branch L_att")
    a.raw(".p2align 3")
    a("L_last:")
    def cwr(j, q): a(f"ds_write_b128 v{T+4+j}, {vr(O+16*j+4*q,4)} offset:{(j-1)*4096+q*1024}")
    for n in range(12, 16):
        ms = [qk(n+1, 0), qk(n+1, 1), pv(n-1, 1), pv(n, 0)] if n < 15 else [pv(14, 1), None, None, pv(15, 0)]
        for m in range(4):
            if n == 15 and m == 0: cwr(2, 0); cwr(2, 1)
            if ms[m] and not (n == 12 and m == 0): a(ms[m])
            odd = False
            if n == 12 and m == 0: a(f"ds_read_b32 v{T}, v12 offset:{HX}")
            if n == 12 and m == 2: a("s_waitcnt vmcnt(8) lgkmcnt(0)"); a(f"v_cmp_gt_u32 vcc, 4, v{T}")
            if n == 13 and m == 0:
                a("s_cbranch_vccnz L_hd"); a("L_hd_x:"); odd = True
            if n == 13 and m == 1: a(f"s_mov_b32 s42, {f2u(2.0**-64):#x}")
            if n == 13 and m == 2: a(f"s_mov_b32 s43, {f2u(2.0**64):#x}")
            if n == 14: cwr(1, m)
            if n == 15 and m == 1: cwr(2, 2); cwr(2, 3)
            if n == 15 and m >= 2: cwr(3, 2*m-4); cwr(3, 2*m-3)
            softmax(n, m, odd)
    a("s_setprio 2")
    a("s_waitcnt lgkmcnt(0)")
    a(pv(15, 1))
    st(name="attend")
    lds_add(a, "v12", "v14", CW)
    lds_wait(a, "L_cw", "v12", f"v{T}", 4, off=CW)
    st(name="_Tc")
    for q in (3, 0, 1, 2):
        for j in range(3):
            a.lg(f"ds_read_b128 {vr(O+16+16*j+4*q,4)}, v{T+4} offset:{j*4096+q*1024}", q)
    def add3(q):
        a.wait(lg=q)
        for r in range(4*q, 4*q+4): a(f"v_add_f32 v{O+r}, v{O+r}, v{O+16+r}")
        for r in range(4*q, 4*q+4): a(f"v_add_f32 v{O+32+r}, v{O+32+r}, v{O+48+r}")
        for r in range(4*q, 4*q+4): a(f"v_add_f32 v{O+r}, v{O+r}, v{O+32+r}")
    add3(3)
    a(f"v_mov_b32 v{T}, v{O+12}")
    a(f"v_mov_b32 v{T+1}, v{O+12}")
    add3(0)
    a(f"v_permlane32_swap_b32 v{T}, v{T+1}")
    add3(1)
    a(f"v_cmp_le_f32 vcc, s42, v{T+1}")
    a(f"v_cmp_ge_f32 s[56:57], s43, v{T+1}")
    a(f"v_rcp_f32 v{T}, v{T+1}")
    add3(2)
    a("s_and_b64 vcc, vcc, s[56:57]")
    a("s_cmp_eq_u64 vcc, -1")
    a("s_cbranch_scc0 L_slow")
    a("L_fin:")
    for r in range(8): a(f"v_mul_f32 v{O+r}, v{O+r}, v{T}")
    for r in range(4): a(f"v_cvt_pk_bf16_f32 v{PP+r}, v{O+2*r}, v{O+2*r+1}")
    a.vm(f"buffer_store_dwordx4 {vr(PP,4)}, {vr(vL)}, s[24:27], s67 offen {SC1}", "st")
    for r in range(8, 16): a(f"v_mul_f32 v{O+r}, v{O+r}, v{T}")
    for r in range(4, 8): a(f"v_cvt_pk_bf16_f32 v{PP+r}, v{O+2*r}, v{O+2*r+1}")
    a(f"v_cndmask_b32 v{PP+6}, v{PP+6}, 0, s[40:41]")
    a(f"v_cndmask_b32 v{PP+7}, v{PP+7}, 0, s[40:41]")
    a.vm(f"buffer_store_dwordx4 {vr(PP+4,4)}, {vr(vL)}, s[24:27], s67 offen offset:1024 {SC1}", "st")
    st(name="_prefl2")
    a.wait(vm="all")
    a.vm(f"buffer_store_dword v14, v13, s[24:27], s60 offen {SC1}", "fl")
    st(name="fl2")
    if asmlib.STAMP and cfg.ITS:
        assert st.n <= 10
        st.n = 14; st.names += ["it"]*4
    a("L_c_end:")
    st.flush(63, 8)
    a("L_end:")
    a("s_endpgm")
    for b, off in ((24, GQ1), (48, GQ2)):
        lds_wait(a, f"L_gq{b}", "v12", "v1", 4, off=off)
        a(f"s_branch L_gq{b}_x")
    a("L_go:")
    poll(a, "L_p0", "v223", "v222", "s[12:15]", "0", 1)
    a("s_branch L_go_x")
    lds_wait(a, "L_hd", "v12", f"v{T}", 4, off=HX)
    a("s_branch L_hd_x")
    S1 = S + 16
    a("L_slow:")
    a("s_lshl_b32 s56, s65, 18")
    a(f"s_add_u32 s56, s56, {WS_KV}")
    a("s_mov_b32 s57, s56")
    a("s_mov_b32 s55, 64")
    a(f"v_mov_b32 v{T+2}, 0xff800000")
    a("s_waitcnt vmcnt(0)")
    a("L_slow1:")
    for j in range(2): a(f"buffer_load_dwordx4 {vr(KV+4*j,4)}, {vr(vL)}, s[24:27], s57 offen offset:{1024*j} {SC1}")
    a("s_waitcnt vmcnt(0)")
    a(qk(3, 0)); a(qk(3, 1))
    a("s_nop 7"); a("s_nop 7")
    for r in range(8): a(f"v_max3_f32 v{T+2}, v{S1+2*r}, v{S1+2*r+1}, v{T+2}")
    a("s_add_u32 s57, s57, 4096")
    a("s_sub_u32 s55, s55, 1"); a("s_cmp_lg_u32 s55, 0")
    a("s_cbranch_scc1 L_slow1")
    a(f"v_mov_b32 v{T+3}, v{T+2}")
    a("s_nop 1")
    a(f"v_permlane32_swap_b32 v{T+3}, v{T+2}")
    a("s_nop 1")
    a(f"v_max_f32 v{T+2}, v{T+2}, v{T+3}")
    for r in range(16): a(f"v_mov_b32 v{O+r}, 0")
    a("s_mov_b32 s55, 64")
    a("L_slow2:")
    for j in range(4): a(f"buffer_load_dwordx4 {vr(KV+4*j,4)}, {vr(vL)}, s[24:27], s56 offen offset:{1024*j} {SC1}")
    a("s_waitcnt vmcnt(0)")
    a(qk(3, 0)); a(qk(3, 1))
    a("s_nop 7"); a("s_nop 7")
    for r in range(16): a(f"v_sub_f32 v{S1+r}, v{S1+r}, v{T+2}")
    for r in range(16): a(f"v_exp_f32 v{S1+r}, v{S1+r}")
    a("s_nop 0")
    for r in range(8): a(f"v_cvt_pk_bf16_f32 v{PP+r}, v{S1+2*r}, v{S1+2*r+1}")
    a("s_nop 1")
    a(pv(3, 0)); a(pv(3, 1))
    a("s_add_u32 s56, s56, 4096")
    a("s_sub_u32 s55, s55, 1"); a("s_cmp_lg_u32 s55, 0")
    a("s_cbranch_scc1 L_slow2")
    a("s_nop 7"); a("s_nop 7")
    a(f"v_mov_b32 v{T}, v{O+12}")
    a(f"v_mov_b32 v{T+1}, v{O+12}")
    a("s_nop 1")
    a(f"v_permlane32_swap_b32 v{T}, v{T+1}")
    a("s_nop 1")
    a(f"v_rcp_f32 v{T}, v{T+1}")
    a("s_nop 0")
    a("s_branch L_fin")

def gen_h(a, st):
    a.vmq = []; a.lgq = []
    X0 = 16; ACCF = 128; vDF = 128; vDQ = 136; vX = 140; t = 144; SINK = 160
    vTF = 1; vC = 3; vOne = 4; vG = 5; vR = 6; LT = 8
    a("L_helper:")
    a("s_getpc_b64 s[56:57]")
    a("L_pc:")
    a(f"s_sub_u32 s56, s56, L_pc-{NAME}")
    a("s_subb_u32 s57, s57, 0")
    a(f"v_min_u32 v{t+1}, 2, v0")
    a("s_lshl_b32 s55, s47, 2")
    a("s_add_u32 s55, s55, s44")
    a("s_mul_i32 s55, s55, 3")
    a(f"v_add_u32 v{t+1}, s55, v{t+1}")
    a(f"v_lshlrev_b32 v{t+1}, 7, v{t+1}")
    a(f"v_min_u32 v{t+1}, L_code_end-{NAME}-4, v{t+1}")
    a.vm(f"global_load_dword v{SINK}, v{t+1}, s[56:57]", "pf")
    a("s_setprio 1")
    mapping(a)
    for i in range(4): a(f"v_mov_b32 v{t+12+i}, 0")
    a(f"v_mov_b32 {vr(vOne)}, 1")
    a(f"v_lshlrev_b32 v{t+11}, 25, v0")
    a(f"v_mov_b32 {vr(vC)}, {CNT}")
    a("s_xor_b32 s67, s45, s46")
    a("s_or_b32 s67, s67, s44")
    a("s_lshl_b32 s58, s45, 11")
    a(f"s_add_u32 s58, s58, {WS_F}")
    a("s_waitcnt lgkmcnt(0)")
    srd(a, 24, 22, WS_BYTES)
    srd(a, 28, 20, 256)
    a("s_cmp_lg_u32 s67, 0")
    a("s_cbranch_scc1 L_noclr")
    a(f"v_lshrrev_b32 v{t}, 4, v0")
    a(f"v_min_u32 v{t}, 2, v{t}")
    a(f"v_lshlrev_b32 v{t}, 15, v{t}")
    a(f"v_and_b32 v{t+1}, 15, v0")
    a(f"v_lshl_add_u32 v{t}, v{t+1}, 7, v{t}")
    a(f"buffer_store_dwordx4 {vr(t+12,4)}, v{t}, s[24:27], s58 offen {SC1}")
    a("L_noclr:")
    a("s_lshl_b32 s59, s46, 7")
    a("s_add_u32 s59, s59, s58")
    a("s_lshl_b32 s51, s44, 2")
    a("s_add_u32 s59, s59, s51")
    a("s_add_u32 s59, s59, 32768")
    srd(a, 36, 6, 448*1344*2)
    sigma(a, "s51", "s46")
    a("s_mul_i32 s51, s51, 168")
    a("s_and_b32 s51, s51, -16")
    for j in range(3):
        a(f"v_add_u32 v{t}, {64*j}, v0")
        a(f"v_mul_u32_u24 v{t+1}, 5462, v{t}")
        a(f"v_lshrrev_b32 v{t+1}, 16, v{t+1}")
        a(f"v_mul_u32_u24 v{t+2}, 12, v{t+1}")
        a(f"v_sub_u32 v{t+2}, v{t}, v{t+2}")
        a(f"v_min_u32 v{t+2}, 10, v{t+2}")
        a(f"v_mul_u32_u24 v{t+1}, 2688, v{t+1}")
        a(f"v_lshl_add_u32 v{t+1}, v{t+2}, 4, v{t+1}")
        if j: a(f"v_subrev_u32 v{t+1}, {1024*j}, v{t+1}")
        a(f"v_add_u32 {vr(vDQ+j)}, s51, v{t+1}")
    xread_addr(a, vX, t)
    a(f"s_mul_i32 s60, s44, {16*2688}")
    a(f"s_mul_i32 s57, s44, {16*192}")
    a(f"s_mul_i32 s55, s3, {64*2688}")
    def qkv_dma(g):
        a(f"s_add_u32 m0, s57, {g*12288}" if g < 4 else f"s_add_u32 m0, s56, {(g-4)*3072}")
        a("s_add_u32 s51, s55, s60")
        for j in range(3):
            a.vm(f"buffer_load_dwordx4 {vr(vDQ+j)}, s[36:39], s51 offen offset:{1024*j} lds", ("Q", g))
            if g >= 4 + cfg.Q1: gap(a, cfg.SPQ)
        if g < 6:
            a(f"s_add_u32 s55, s55, {64*2688}"); a(f"s_cmp_ge_u32 s55, {448*2688}"); a("s_cselect_b32 s55, 0, s55")
    ffn_setup(a, vDF, t)
    a(f"v_lshrrev_b32 v{t+5}, 5, v0")
    a(f"v_bfe_u32 v{t+2}, v0, 2, 2")
    a(f"v_lshl_add_u32 v{t+2}, v{t+5}, 3, v{t+2}")
    a(f"v_and_b32 v{t+3}, 3, v0")
    a(f"v_bfe_u32 v{t+4}, v0, 4, 1")
    a(f"v_mul_u32_u24 v{t+5}, 224, v{t+2}")
    a(f"v_lshl_add_u32 v{t+5}, v{t+3}, 3, v{t+5}")
    a(f"v_mul_u32_u24 v{t+6}, {OU}, v{t+4}")
    a(f"v_add_u32 {vr(vTF)}, v{t+5}, v{t+6}")
    a(f"v_mul_u32_u24 v{t+6}, {2*AR+128}, v{t+4}")
    a(f"v_add_u32 v{t+5}, {XS}, v{t+5}")
    a(f"v_add_u32 {vr(vTF+1)}, v{t+5}, v{t+6}")
    a(f"s_mul_i32 s65, s52, {144*1024}")
    a(f"s_mul_i32 s51, s46, {7*1024}")
    a("s_add_u32 s65, s65, s51")
    a(f"s_add_u32 s65, s65, {WS_A}")
    a("s_add_u32 s66, s65, 4096")
    a(f"v_and_b32 v{t+10}, 15, v0")
    a(f"v_lshlrev_b32 v{t+10}, 4, v{t+10}")
    a(f"v_lshlrev_b32 v{t+9}, 3, v0")
    a(f"v_add_u32 v{t+9}, s56, v{t+9}")
    a("s_lshl_b32 s58, s45, 4")
    a("s_mov_b32 s61, 0xffff0000")
    def xread(cb):
        for sp in range(4): a(f"ds_read_b128 {vr(X0+16*cb+4*sp,4)}, {vr(vX+sp)} offset:{cb*4096}")
    st(name="_hsetup")
    a("s_barrier")
    st(name="_hBx")
    for g in range(cfg.Q0): qkv_dma(g)
    for cb in range(cfg.BX + 1): xread(cb)
    st(name="_hq")
    a("s_barrier")
    for cb in range(cfg.BX + 1, 7): xread(cb)
    for g in range(cfg.Q0, 4): qkv_dma(g)
    a("s_waitcnt lgkmcnt(0)")
    a("s_cmp_lg_u32 s44, 3")
    a("s_cbranch_scc1 L_nocnt")
    for i in range(8): a(f"ds_write_b128 {vr(vC)}, {vr(t+12,4)} offset:{16*i}")
    a("L_nocnt:")
    for g in range(4, 4 + cfg.Q1): qkv_dma(g)
    st(name="_hw0")
    a.wait(vm=("Q", 1))
    a("s_waitcnt lgkmcnt(0)")
    st(name="_hp0")
    a("s_barrier")
    st(name="_hb0")
    for g in range(4 + cfg.Q1, 7): qkv_dma(g)
    a("s_cmp_lg_u32 s67, 0")
    a("s_cbranch_scc1 L_nogo")
    a(f"buffer_store_dword {vr(vOne)}, v{t+11}, s[28:31], s58 offen {SC1}")
    a("L_nogo:")
    a.wait(vm=("Q", 3))
    lds_add(a, vr(vC), vr(vOne), GQ1)
    st(name="_hq3")
    ffn_dma(a, 0, vDF)
    a.wait(vm=("Q", 6))
    lds_add(a, vr(vC), vr(vOne), GQ2)
    st(name="_hq6")
    ffn_dma(a, 1, vDF, 0, 4)
    lds_wait(a, "L_cq", vr(vC), vr(vG), 4, off=CQ)
    a(f"ds_read_b64 {vr(vR,2)}, v{t+9} offset:{STO}")
    a("s_waitcnt lgkmcnt(0)")
    for k in range(cfg.HPRE):
        for op in ln_ops(X0, k, LT, vR): a(op)
    st(name="_hw7")
    ffn_dma(a, 1, vDF, 4)
    lds_wait(a, "L_cq2", vr(vC), vr(vG), 4, off=CQ2)
    ffn_dma(a, 2, vDF, 0, 4)
    a.wait(vm=("F", 0))
    st(name="_hp7")
    a("s_barrier")
    st(name="hb7")
    K0 = cfg.K0; KT = 28 - K0
    order = [(k, tl) for k in range(K0) for tl in range(7)] + [(k, tl) for tl in range(7) for k in range(K0, 28)]
    if cfg.T6: order = [(k, tl) for k in range(4) for tl in range(6)] + [(k, 6) for k in range(4)] + order[28:]
    NM = len(order); SC = 7*K0
    GL = [1, 2, 3, 4, 5] + ([6] if K0 == 24 else [])
    pool = [240, 244, 248, 252, 12]
    HP = 40
    freg = {}
    def frag(f):
        k, tl = order[f]; g, sp = k // 4, k % 4
        reg = pool.pop(0); freg[f] = reg
        for rd in range(2):
            if FSLOT[g] == "D": ad, off = vTF, 16*sp*224
            else: ad, off = vTF+1, FA[FSLOT[g]] + (sp//2)*AR + 16*(sp % 2)*224
            a.lg(f"ds_read_b64_tr_b16 {vr(reg+2*rd,2)}, {vr(ad)} offset:{off + 4*rd*224 + tl*32}", ("f", f))
    def epi_f(tl):
        b = ACCF + 16*tl
        return [f"v_max_f32 v{b+r}, 0, v{b+r}" for r in range(8)] + [f"v_mul_f32 v{b+r}, v{b+r}, v{b+8+r}" for r in range(8)] + \
               [f"v_cvt_pk_bf16_f32 v{HP+4*tl+r}, v{b+2*r}, v{b+2*r+1}" for r in range(4)] + \
               ([f"buffer_store_dwordx4 {vr(HP+4*tl,4)}, v7, s[24:27], {'s65' if tl < 4 else 's66'} offen offset:{1024*(tl%4)} {SC1}"] if cfg.HST == 2 else [])
    epi_at = {SC + KT*tl + KT - 1 + 3: epi_f(tl) for tl in range(7)}
    epiq = []
    lq = []
    for k in range(cfg.HPRE, 28): lq += [(k, o) for o in ln_ops(X0, k, LT, vR)]
    tmp = [ACCF + 96 + 4*q for q in range(4)] if cfg.T6 else []
    pool += tmp
    rp = 7 if cfg.T6 else 5
    for f in range(rp): frag(f)
    waited = -1; lim = 28
    gates = []
    for f in range(NM):
        k, tl = order[f]
        used = 0
        if f > waited:
            waited = min(NM-1, f + (1 if rp - f < 7 else 3), rp-1)
            assert waited >= f
            wait_lg_tags(a, [("f", waited)])
        assert not lq or lq[0][0] > (k if f < SC else 27)
        acc = vr(ACCF + 16*tl, 16)
        a(f"v_mfma_f32_32x32x16_bf16 {acc}, {vr(freg[f],4)}, {vr(X0+4*k,4)}, {'0' if k == 0 else acc}")
        st(name=f"_f{f}")
        if f == SC: a("v_lshlrev_b32 v7, 4, v0")
        if f == waited: used += 1
        if f >= 1 and not (freg[f-1] in tmp and rp >= 22): pool.append(freg[f-1])
        if cfg.T6:
            if rp >= 22: pool[:] = [r_ for r_ in pool if r_ not in tmp]
            if f == 24: assert all(freg[q] not in tmp for q in range(23, rp))
            if 25 <= f <= 28: pool.append(X0 + 4*(f - 25))
            if f == 35: pool.append(X0 + 16)
        elif 7 <= f <= 35 and f % 7 == 0: pool.append(X0 + 4*(f//7 - 1))
        if f in epi_at: epiq += epi_at.pop(f)
        if f in (27, 55, 83):
            lds_add(a, vr(vC), vr(vOne), CONS(f // 28), "c"); used += 3
        if f == 28 - 15:
            a.wait(vm=("F", 1)); lds_add(a, vr(vC), vr(vOne), GATE(1), "c"); used += 4
        if f == 34:
            a.wait(vm=("F", 2)); lds_add(a, vr(vC), vr(vOne), GATE(2), "c"); used += 4
        for g in GL:
            if f == 28*g - 12:
                a.lg(f"ds_read_b32 {vr(vG)}, {vr(vC)} offset:{GATE(g)}", "g"); used += 1
            if f == 28*g - 9:
                a.wait(lg="g"); a(f"v_cmp_gt_u32 vcc, {8 if g == 2 else 4}, {vr(vG)}"); used += 2
            if f == 28*g - 8:
                st(name=f"_hpre{g}")
                a(f"s_cbranch_vccnz L_gate{g}"); a(f"L_gate{g}_x:"); used += 1
                lim = 28*(g+1) if g < GL[-1] else NM
                st(name=("" if g == 5 else "_") + f"hgate{g}")
        n = 0
        while rp < lim and rp <= f + 8 and n < 2 and pool:
            frag(rp); rp += 1; n += 1; used += 2
        need = -(-len(lq) // max(1, SC - 2 - f))
        n = 0
        while lq and f >= cfg.LN0 and ((used < cfg.SLOTS and n < max(need, cfg.LNG)) or n < need - 1):
            a(lq.pop(0)[1]); used += 1; n += 1
        while epiq and used < cfg.SLOTS:
            a(epiq.pop(0)); used += 1
    lds_add(a, vr(vC), vr(vOne), HD-CNT)
    for op in epiq: a(op)
    a("s_nop 7")
    for k in sorted(epi_at):
        for op in epi_at[k]: a(op)
    st(name="hg1")
    if cfg.HST == 2: a.vmq = ["st"]*7
    if cfg.HST == 1: lds_wait(a, "L_ha", vr(vC), "v16", 4, sleep=2, off=HA-CNT)
    mark = len(a.L)
    vL = 12
    a(f"v_lshlrev_b32 {vr(vL)}, 4, v0")
    a("v_lshlrev_b32 v5, 25, v0")
    srd(a, 28, 16, 1792*448*2)
    srd(a, 12, 8, 448*448*2)
    ACC = 16; HR = 80; W = 112; WREG = 128
    vD = 1; vD2 = 2; vT0 = 8; vT1 = 9; vP = 10; vL1 = 11
    u = 16
    a(f"v_lshrrev_b32 v{u}, 3, v0")
    a(f"v_bfe_u32 v{u+1}, v0, 4, 1")
    a(f"v_lshlrev_b32 v{u+1}, 2, v{u+1}")
    a(f"v_and_b32 v{u+2}, 7, v0")
    a(f"v_xor_b32 v{u+2}, v{u+2}, v{u+1}")
    a(f"v_mul_u32_u24 v{u}, 896, v{u}")
    a(f"v_lshl_add_u32 v{u}, v{u+2}, 4, v{u}")
    a("s_lshl_b32 s51, s50, 7")
    a(f"v_add_u32 {vr(vD)}, s51, v{u}")
    a(f"v_add_u32 {vr(vD2)}, {8*896-1024}, {vr(vD)}")
    a(f"v_bfe_u32 v{u}, v0, 2, 2")
    a(f"v_lshrrev_b32 v{u+1}, 5, v0")
    a(f"v_lshl_add_u32 v{u+1}, v{u+1}, 2, v{u}")
    a(f"v_lshlrev_b32 v{u+1}, 7, v{u+1}")
    a(f"v_and_b32 v{u+2}, 3, v0")
    a(f"v_lshl_add_u32 v{u+1}, v{u+2}, 3, v{u+1}")
    a(f"v_bfe_u32 v{u+2}, v0, 4, 1")
    a(f"v_lshl_add_u32 v{u+1}, v{u+2}, 5, v{u+1}")
    a(f"v_lshrrev_b32 v{u}, 1, v{u}")
    a("s_and_b32 s56, s44, 1")
    a("s_lshr_b32 s57, s44, 1")
    a(f"v_xor_b32 v{u}, s56, v{u}")
    a(f"v_lshl_add_u32 v{u+1}, v{u}, 6, v{u+1}")
    a(f"s_mul_i32 s51, s56, {8*28*128}")
    a(f"s_add_u32 s51, s51, {WOS}")
    a(f"v_add_u32 v13, s51, v{u+1}")
    a(f"v_xor_b32 v14, 64, v13")
    a(f"s_mul_i32 s53, s44, {RNG}")
    a(f"v_add_u32 {vr(vT0)}, s53, v{u+1}")
    a(f"v_xor_b32 {vr(vT1)}, 64, {vr(vT0)}")
    a(f"v_bfe_u32 {vr(vP)}, v0, 1, 2")
    a(f"v_lshlrev_b32 {vr(vP)}, 7, {vr(vP)}")
    a(f"v_and_b32 v{u}, 1, v0")
    a(f"v_lshl_add_u32 {vr(vP)}, v{u}, 2, {vr(vP)}")
    a("s_lshr_b32 s58, s49, 1")
    a("s_lshl_b32 s58, s58, 11")
    a("s_and_b32 s51, s49, 1")
    a("s_lshl_b32 s51, s51, 3")
    a("s_add_u32 s58, s58, s51")
    a("s_lshl_b32 s51, s44, 9")
    a("s_add_u32 s58, s58, s51")
    a(f"s_add_u32 s58, s58, {WS_F+32768}")
    a(f"s_mul_i32 s60, s49, {2*144*1024}")
    a(f"s_mul_i32 s51, s44, {28*1024}")
    a("s_add_u32 s60, s60, s51")
    a(f"s_add_u32 s60, s60, {WS_A}")
    a(f"s_mul_i32 s61, s44, {448*896}")
    a(f"s_mul_i32 s51, s57, {144*1024}")
    a(f"v_add_u32 v15, s51, {vr(vL)}")
    a(f"s_sub_u32 s51, {144*1024}, s51")
    a(f"v_add_u32 {vr(vL1)}, s51, {vr(vL)}")
    a("s_lshl_b32 s67, s49, 1")
    a("s_add_u32 s67, s67, s57")
    a(f"v_and_b32 v{u}, 31, v0")
    a(f"v_lshrrev_b32 v{u+1}, 5, v0")
    a("s_lshl_b32 s51, s67, 5")
    a(f"v_add_u32 v{u}, s51, v{u}")
    a(f"v_mul_u32_u24 v{u}, 896, v{u}")
    a("s_lshl_b32 s51, s56, 6")
    a("s_lshl_b32 s62, s50, 7")
    a("s_add_u32 s51, s51, s62")
    a(f"v_add_u32 v{u}, s51, v{u}")
    a(f"v_lshl_add_u32 v6, v{u+1}, 4, v{u}")
    a("s_lshr_b32 s68, s49, 1")
    a("s_lshl_b32 s68, s68, 11")
    a("s_lshl_b32 s51, s56, 10")
    a("s_add_u32 s68, s68, s51")
    a("s_and_b32 s51, s67, 3")
    a("s_lshl_b32 s51, s51, 2")
    a("s_add_u32 s68, s68, s51")
    a(f"s_add_u32 s68, s68, {WS_F+65536}")
    a(f"s_mul_i32 s67, s67, {144*1024}")
    a("s_lshl_b32 s51, s56, 14")
    a("s_add_u32 s67, s67, s51")
    a(f"s_add_u32 s67, s67, {WS_A+112*1024}")
    srd(a, 8, 4, 2048*448*2)
    a(f"s_mul_i32 s7, s44, {14*1024}")
    a(f"s_mul_i32 s6, s44, {14*8*896}")
    SW = [32, 33, 34, 35, 36, 37, 38]; SH = [39, 40, 41, 42, 43, 54, 55]
    for g in range(7):
        a(f"s_add_u32 s51, s64, {g}")
        a("s_cmp_ge_u32 s51, 7")
        a("s_cselect_b32 s62, 7, 0")
        a("s_sub_u32 s51, s51, s62")
        a(f"s_mul_i32 s{SW[g]}, s51, {64*896}")
        a(f"s_add_u32 s{SW[g]}, s{SW[g]}, s61")
        a(f"s_lshl_b32 s{SH[g]}, s51, 12")
        a(f"s_add_u32 s{SH[g]}, s{SH[g]}, s60")
    if cfg.HST == 1:
        body = a.L[mark:]; a.L = a.L[:mark]
        step_ = len(body) // 7
        for tl in range(7):
            a.vm(f"buffer_store_dwordx4 {vr(HP+4*tl,4)}, v7, s[24:27], {'s65' if tl < 4 else 's66'} offen offset:{1024*(tl%4)} {SC1}", "st")
            a.L += body[tl*step_:(tl+1)*step_ if tl < 6 else None]
    def pace(n):
        if len(a.vmq) > n:
            a(f"s_waitcnt vmcnt({n})"); a.vmq = a.vmq[len(a.vmq)-n:]
    def hstore(tl): a.vm(f"buffer_store_dwordx4 {vr(HP+4*tl,4)}, {vr(vL)}, s[24:27], {'s65' if tl < 4 else 's66'} offen offset:{1024*(tl%4)} {SC1}", "st")
    def hflag(): a.vm(f"buffer_store_dword {vr(vOne)}, v5, s[24:27], s59 offen {SC1}", "fl")
    if cfg.HST != 1: lds_wait(a, "L_ha", vr(vC), f"v{u}", 4, sleep=2, off=HA-CNT)
    st(name="_ha")
    keep = list(a.vmq)
    a("s_cmp_lt_u32 s50, 7")
    a("s_cbranch_scc1 L_htile")
    lds_add(a, vr(vC), vr(vOne), HX)
    for tl in range(7 if cfg.HST == 0 else 0):
        pace(1); hstore(tl)
    a.wait(vm="all"); hflag()
    a("s_branch L_h_end")
    a("L_htile:")
    a.vmq = keep
    a(f"s_setprio {cfg.PH2}")
    for i in range(2): a.vm(f"buffer_load_dwordx4 {vr(HR+4*i,4)}, v6, s[8:11], 0 offen offset:{32*i}", "x")
    lds_wait(a, "L_hdh", vr(vC), f"v{u}", 4, off=HD-CNT)
    def slot(i): return (CB1 + 2048*i) if i < 6 else 2048*((i - 6) % 6 if i < 22 else i - 22)
    def wdma(i, half):
        if half == 0:
            a(f"s_add_u32 m0, s53, {slot(i)}")
            a(f"s_add_u32 s4, s{SW[i//4]}, {(i%4)*16*896}")
            a.vm(f"buffer_load_dwordx4 {vr(vD)}, s[28:31], s4 offen lds", ("w", i))
        else:
            a.vm(f"buffer_load_dwordx4 {vr(vD2)}, s[28:31], s4 offen offset:1024 lds", ("w", i))
    def wodma(k):
        a(f"s_add_u32 m0, s7, {WOS+k*1024}")
        a(f"s_add_u32 s5, s6, {k*8*896}")
        a.vm(f"buffer_load_dwordx4 {vr(vD)}, s[12:15], s5 offen lds", "wo")
    def wreg(i): return WREG + 8*(i-6) if 6 <= i < 22 else W + 8*(i & 1)
    def reads(i):
        for ct in range(2):
            for r_ in range(2):
                a.lg(f"ds_read_b64_tr_b16 {vr(wreg(i)+4*ct+2*r_,2)}, {vr(vT0+ct)} offset:{slot(i)+r_*1024}", ("r", i))
    seq = list(range(6, 22)) + list(range(6)) + [("wo", k) for k in range(0, cfg.WOP, 2)]
    woq = list(range(cfg.WOP, 14))
    rd = 6; nst = 7 if cfg.HST else 0; flagged = False
    for n, it in enumerate(seq):
        V1 = cfg.V1 if n < cfg.VN else cfg.V1B
        for q in range(cfg.HSN):
            if nst < 7 and n % cfg.HSI == 0:
                pace(V1); hstore(nst); nst += 1
        if isinstance(it, tuple):
            for k in (it[1], it[1]+1):
                pace(V1); wodma(k)
        else:
            if 12 <= it < 22:
                while rd <= it - 6:
                    a.wait(vm=("w", rd)); reads(rd); rd += 1
                a.wait(lg=("r", it-6))
            for half in range(2):
                pace(V1); wdma(it, half)
        while rd < 22 and rd in seq[:n+1] and a._cnt(a.vmq, ("w", rd)) is None:
            if len(a.lgq) >= 12: a.wait(lg="all")
            reads(rd); rd += 1
        if nst == 7 and not flagged and a._cnt(a.vmq, "st") is None:
            hflag(); flagged = True
            st(name="hfl1")
    assert rd == 22 and flagged
    st(name="hpre")
    poll(a, "L_p2", f"v{u}", vr(vP), "s[24:27]", "s58", 1, sleep=8)
    st(name="hpoll2")
    for b in (0, 4):
        a(f"v_permlane32_swap_b32 v{HR+b}, v{HR+b+2}")
        a(f"v_permlane32_swap_b32 v{HR+b+1}, v{HR+b+3}")
    a("s_mov_b32 s51, 0xffff0000")
    for i in range(8):
        a(f"v_lshlrev_b32 v{ACC+2*i}, 16, v{HR+i}")
        a(f"v_and_b32 v{ACC+2*i+1}, s51, v{HR+i}")
    srd(a, 8, 18, 2048*448*2)
    a(f"v_and_b32 {vr(vP)}, 7, v0")
    a(f"v_lshlrev_b32 {vr(vP)}, 7, {vr(vP)}")
    a.wait(lg="all")
    hpool = [HR + 8*k for k in range(4)]
    hreg = {}
    opq = []
    nh = [0]
    def hload(i, tt):
        if tt == 0: hreg[i] = hpool.pop(0)
        a.vm(f"buffer_load_dwordx4 {vr(hreg[i]+4*tt,4)}, {vr(15 if tt == 0 else vL1)}, s[24:27], s{SH[i//4]} offen offset:{1024*(i%4)} {SC1}", ("h", i))
    ringq = [(i, half) for i in range(22, 28) for half in range(2)]
    def next_op(v):
        k = nh[0]
        if ringq and ringq[0][1] == 1: pace(v); wdma(*ringq.pop(0))
        elif k < 56 and (k % 2 or hpool): pace(v); hload(k // 2, k % 2); nh[0] += 1
        elif ringq: pace(v); wdma(*ringq.pop(0))
        elif woq: pace(v); wodma(woq.pop(0))
        else: return False
        return True
    for k in range(8): next_op(cfg.V2)
    reads(0)
    for i in range(28):
        if i == cfg.N1:
            while next_op(cfg.V3): pass
            st(name="hN1")
            lds_wait(a, "L_ca", vr(vC), "v7", 1, sleep=1, off=CW)
        if i + 1 < 6 or 22 <= i + 1 < 28:
            assert not any(q[0] == i + 1 for q in ringq)
            a.wait(vm=("w", i+1)); reads(i+1)
        assert nh[0] >= 2*i + 2
        a.wait(vm=("h", i), lg=("r", i))
        if i == 5: lds_add(a, vr(vC), vr(vOne), HX, "c")
        for m in range(4):
            tt, ct = m // 2, m % 2
            acc = vr(ACC+16*(ct+2*tt), 16)
            if not (cfg.NOM and i < cfg.N1): a(f"v_mfma_f32_32x32x16_bf16 {acc}, {vr(wreg(i)+4*ct,4)}, {vr(hreg[i]+4*tt,4)}, {'0' if (i == 0 and m) else acc}")
            if m == 0 and i >= 1:
                hpool.append(hreg[i-1])
                if 6 <= i-1 < 22: hpool.append(wreg(i-1))
            next_op(cfg.V2 if i < cfg.N1 else cfg.V3)
            if cfg.PAD and i < cfg.N1: a(f"s_nop {cfg.PAD-1}")
    assert nh[0] == 56 and not ringq and not woq and cfg.N1 >= 6
    OF = 80; WF = 144; PT = 192; PA = [None, 8, 9, 11]
    a(f"v_add_u32 v1, s53, {vr(vL)}")
    for j in range(1, 4):
        a(f"s_xor_b32 s51, s44, {j}")
        a(f"s_mul_i32 s51, s51, {RNG}")
        a(f"v_add_u32 v{PA[j]}, s51, {vr(vL)}")
    st(name="hdown")
    a.vm(f"buffer_load_dword v7, {vr(vP)}, s[24:27], s68 offen {SC1}", "p3")
    a("s_lshl_b32 s51, s57, 2")
    a(f"v_add_u32 v2, s51, {vr(vC)}")
    for j in range(1, 4):
        for q in range(4): a(f"ds_write_b128 v1, {vr(ACC+16*j+4*q,4)} offset:{(j-1)*4096+q*1024}")
    morder = [(stp, 1) for stp in range(cfg.LAG)]
    for stp in range(16):
        if stp + cfg.LAG < 16: morder.append((stp + cfg.LAG, 1))
        morder.append((stp, 0))
    def wrd(k):
        stp, ct = morder[k]
        row = 28*(stp//2) + 16*(stp % 2)
        for r_ in range(2):
            a.lg(f"ds_read_b64_tr_b16 {vr(WF+4*(k%10)+2*r_,2)}, v{13+ct} offset:{(row+8*r_)*128}", ("w", k))
    def oloads():
        for i in range(16):
            if i and i % 4 == 0: a("s_add_u32 s67, s67, 4096")
            a.vm(f"buffer_load_dwordx4 {vr(OF+4*i,4)}, {vr(vL)}, s[24:27], s67 offen offset:{1024*(i%4)} {SC1}", ("o", i))
    a("s_waitcnt vmcnt(1) lgkmcnt(0)"); a.lgq = []
    lds_add(a, vr(vC), vr(vOne), R1)
    lds_wait(a, "L_r1", vr(vC), "v15", 4, off=R1)
    for j in range(1, 4):
        for q in range(4): a.lg(f"ds_read_b128 {vr(PT+16*(j-1)+4*q,4)}, v{PA[j]} offset:{(j-1)*4096+q*1024}", ("p", j))
    a("s_waitcnt vmcnt(0)"); a.vmq = []
    a("v_cmp_gt_u32 vcc, 1, v7")
    a("s_nop 3")
    a("s_mov_b64 s[4:5], vcc")
    a("s_cbranch_vccnz L_noearly")
    oloads()
    a("L_noearly:")
    for j in range(1, 4):
        a.wait(lg=("p", j))
        for r in range(16): a(f"v_add_f32 v{ACC+r}, v{ACC+r}, v{PT+16*(j-1)+r}")
    for k in range(7): wrd(k)
    st(name="hred")
    a("s_cmp_eq_u64 s[4:5], 0")
    a("s_cbranch_scc1 L_early")
    poll(a, "L_p3", "v7", vr(vP), "s[24:27]", "s68", 1, sleep=1)
    oloads()
    a("L_early:")
    st(name="hpoll3")
    last1 = max(k for k in range(32) if morder[k][1] == 1)
    for k in range(32):
        stp, ct = morder[k]
        a.wait(vm=("o", stp), lg=("w", min(31, k+1)) if k % 2 == 0 else None)
        acc = vr(ACC+16*ct, 16)
        a(f"v_mfma_f32_32x32x16_bf16 {acc}, {vr(WF+4*(k%10),4)}, {vr(OF+4*stp,4)}, {'0' if k==0 else acc}")
        if k + 7 < 32: wrd(k+7)
        if k == last1 + 2:
            a("s_nop 7")
            for q in range(4): a.lg(f"ds_write_b128 v8, {vr(ACC+16+4*q,4)} offset:{q*1024}", "e")
        if k == last1 + 5:
            a.wait(lg="all")
            lds_add(a, "v2", vr(vOne), RX)
    assert last1 + 5 < 32
    st(name="homf")
    lds_wait(a, "L_rx", "v2", "v7", 2, off=RX)
    for q in range(4): a.lg(f"ds_read_b128 {vr(PT+4*q,4)}, v1 offset:{q*1024}", ("e", q))
    for hq in range(2):
        a.wait(lg=("e", 2*hq+1))
        for r in range(8*hq, 8*hq+8): a(f"v_add_f32 v{ACC+r}, v{ACC+r}, v{PT+r}")
        for r in range(4*hq, 4*hq+4): a(f"v_cvt_pk_bf16_f32 v{OF+r}, v{ACC+2*r}, v{ACC+2*r+1}")
        a("s_nop 1")
        b = 4*hq
        a(f"v_permlane32_swap_b32 v{OF+b}, v{OF+b+2}")
        a(f"v_permlane32_swap_b32 v{OF+b+1}, v{OF+b+3}")
        a(f"buffer_store_dwordx4 {vr(OF+b,4)}, v6, s[8:11], 0 offen offset:{32*hq}")
    a("L_h_end:")
    st.flush(63, 8)
    a("s_endpgm")
    for g in GL:
        lds_wait(a, f"L_gate{g}", vr(vC), vr(vG), 8 if g == 2 else 4, off=GATE(g))
        a(f"s_branch L_gate{g}_x")
    a("L_code_end:")

def build():
    a = Asm()
    st = Stamps(a, 0, 22)
    common(a, st)
    n0 = st.n
    gen_c(a, st)
    cn = st.names[1:]
    st.n = n0; st.names = st.names[:n0]
    gen_h(a, st)
    if asmlib.STAMP: a.raw(f"; STAMPS C {cn}\n; STAMPS H {st.names[1:]}")
    s = f"; @launch grid=(256,1,1) block=(512,1,1) lds={LDS}\n"
    s += '.amdgcn_target "amdgcn-amd-amdhsa--gfx950"\n.text\n' + kernel_head(NAME) + a.text()
    s += '.section .rodata,"a"\n' + kernel_desc(NAME, 256, 256, 102)
    if cfg.ALIGN:
        import align
        s, f_, m_ = align.align(s, nop=cfg.ALIGN if cfg.ALIGN > 1 else False)
    return s
def set_args(args):
    for x in args:
        if x.startswith("sel="): asmlib.STAMP_SEL = x[4:].split(",")
        elif "=" in x:
            k, v = x.split("="); setattr(cfg, k, eval(v))
if __name__ == "__main__":
    asmlib.STAMP = "--stamp" in sys.argv
    asmlib.STAMP_REAL = "--real" in sys.argv
    set_args(sys.argv[2:])
    open(sys.argv[1], "w").write(build())
```

```python
import sys, math, struct
import asmlib
from asmlib import *
def f2u(x): return struct.unpack("<I", struct.pack("<f", x))[0]
NAME = "parallel_sum__softmax_full_mha__glu_gated_reglu__prompt_kernel"
WS_KV, WS_A, WS_F = 2<<20, 6<<20, 16<<20
WS_BYTES = WS_F + 3*32768
QSCALE = math.log2(math.e) / math.sqrt(28.0)
LDS = 163840
XS = 49152; AR = 28672
OU = 14336 + 128
FA = {"A": 14336, "B": 21504, "C": 0, "E": 7168}
FSLOT = ["A", "B", "D", "C", "E", "A", "B"]
STO = 24576
CNT = XS + 2*AR - 128
GATE = lambda g: 4*g
CONS = lambda g: 32 + 4*g
HD = CNT + 48; HA = CNT + 52
GQ1 = 56; GQ2 = 60; GQ0 = 28; CQ2 = 88; CE = 92; GQ3 = 104; GQ4 = 108; CL = 112; AF = 116; HX = 100
CA = 64; CW = 68; R1 = 72; RX = 80
VS0 = 32768; VS2 = 25600
WOS = XS + 2*AR; NS = 6; RNG = NS*2048
CB1 = 0; RB = 49152
WS_Q = 0
class P: pass
cfg = P()
cfg.N1 = 16
cfg.N2 = 4
cfg.SPIN = 1 << 16
cfg.ROT = 0
cfg.V1 = 3; cfg.V2 = 4; cfg.V3 = 12
cfg.XA = 4; cfg.BX = 2
cfg.Q0 = 2; cfg.Q1 = 0
cfg.LPRE = 8
cfg.HPRE = 4
cfg.HSI = 1; cfg.HSN = 1; cfg.PE = 2; cfg.WDP = [0, 0, 0]; cfg.F3 = 1
cfg.SLOTS = 6
cfg.SPF = 0; cfg.SPQ = 0; cfg.SPS = 0
cfg.LP2 = 2; cfg.T6 = 0; cfg.HST = 0; cfg.VN = 9; cfg.V1B = 5; cfg.NOM = 0; cfg.ITS = 0; cfg.CQF = 3; cfg.LN0 = 0; cfg.PF = 0; cfg.ZM = 0; cfg.MAP = 1
cfg.EW = 0; cfg.GL = 30; cfg.F4E = 0; cfg.PS1 = 4; cfg.FL = 60; cfg.SPW = 0; cfg.P1F = 1; cfg.LAG = 8; cfg.EP = 18; cfg.PS3 = 1; cfg.WOP = 0
cfg.W2 = 1
cfg.K0 = 24; cfg.LNG = 3
cfg.ALIGN = 5
cfg.PC = 0; cfg.PH2 = 1; cfg.PAD = 8
cfg.SIG = 1
SC1 = "sc1"

def poll(a, lab, vdst, voff, srd_, soff, want_ge, cnt="s62", sleep=2):
    a(f"s_mov_b32 {cnt}, 0")
    a(f"{lab}:")
    a(f"buffer_load_dword {vdst}, {voff}, {srd_}, {soff} offen sc1")
    a(f"s_add_u32 {cnt}, {cnt}, 1")
    a(f"s_waitcnt vmcnt(0)")
    a(f"v_cmp_le_u32 vcc, {want_ge}, {vdst}")
    a(f"s_cmp_gt_u32 {cnt}, {cfg.SPIN}")
    a(f"s_cbranch_scc1 {lab}_x")
    a(f"s_nop 1")
    a(f"s_cmp_eq_u64 vcc, -1")
    a(f"s_cbranch_scc1 {lab}_x")
    a(f"s_sleep {sleep}")
    a(f"s_branch {lab}")
    a(f"{lab}_x:")
    a.vmq = []
def lds_wait(a, lab, vaddr, vdst, n, sleep=0, off=0):
    a(f"{lab}:")
    if sleep: a(f"s_sleep {sleep}")
    a(f"ds_read_b32 {vdst}, {vaddr} offset:{off}")
    a("s_waitcnt lgkmcnt(0)")
    a(f"v_cmp_gt_u32 vcc, {n}, {vdst}")
    a("s_nop 3")
    a(f"s_cbranch_vccnz {lab}")
    a.lgq = []

def common(a, st):
    a("s_cmp_ge_u32 s2, 256")
    a("s_cbranch_scc1 L_end")
    st(wait=False, real=True); st(wait=False)
    a("s_load_dwordx8 s[4:11], s[0:1], 0")
    a("s_load_dwordx8 s[12:19], s[0:1], 32")
    a("s_load_dwordx4 s[20:23], s[0:1], 64")
    a("s_getpc_b64 s[56:57]")
    a("L_pc:")
    a("v_lshrrev_b32 v1, 5, v0")
    a("s_lshr_b32 s55, s2, 3")
    a("s_lshl_b32 s55, s55, 4")
    a("v_add_u32 v2, s55, v1")
    a("v_lshlrev_b32 v2, 7, v2")
    a("v_min_u32 v2, L_code_end-L_pc-4, v2")
    a("global_load_dword v255, v2, s[56:57]")
    a("v_lshrrev_b32 v1, 6, v0")
    a("v_and_b32 v0, 63, v0")
    a("v_readfirstlane_b32 s63, v1")
    a("s_and_b32 s48, s2, 7")
    a("s_lshr_b32 s47, s2, 3")
    a("s_lshr_b32 s50, s47, 2")
    a("s_and_b32 s51, s47, 3")
    a("s_and_b32 s44, s63, 3")
    a("s_cmp_lt_u32 s63, 4")
    a("s_cbranch_scc1 L_compute")
def mapping(a):
    if cfg.MAP == 0:
        a("s_and_b32 s46, s48, 3")
        a("s_lshl_b32 s46, s46, 2")
        a("s_add_u32 s46, s46, s51")
        a("s_lshr_b32 s45, s48, 2")
        a("s_lshl_b32 s45, s45, 3")
        a("s_add_u32 s45, s45, s50")
    else:
        a("s_and_b32 s46, s48, 1")
        a("s_lshl_b32 s46, s46, 3")
        a("s_add_u32 s46, s46, s50")
        a("s_lshr_b32 s45, s48, 1")
        a("s_lshl_b32 s45, s45, 2")
        a("s_add_u32 s45, s45, s51")
    a("s_lshl_b32 s49, s48, 2")
    a("s_add_u32 s49, s49, s51")
    a("s_lshl_b32 s3, s51, 1")
    a("s_add_u32 s64, s3, s50")
    a("s_cmp_ge_u32 s64, 7")
    a("s_cselect_b32 s62, 7, 0")
    a("s_sub_u32 s64, s64, s62")
    if cfg.ROT == 2: a("s_mov_b32 s3, s64")
    if cfg.ROT == 0: a("s_mov_b32 s3, 0")
    a("s_lshl_b32 s52, s45, 2")
    a("s_add_u32 s52, s52, s44")
def emit(a, op):
    if op[1] == "vm": a.vm(op[0], op[2])
    elif op[1] == "lg": a.lg(op[0], op[2])
    else: a(op[0])
def wait_lg_tags(a, tags):
    n = min([c for c in (a._cnt(a.lgq, tg) for tg in tags) if c is not None], default=None)
    if n is not None:
        assert n <= 15
        a(f"s_waitcnt lgkmcnt({n})")
        a.lgq = a.lgq[len(a.lgq)-n:] if n else []
V = lambda s: (s, "v")

def lds_add(a, vaddr, vone, off, tag=None):
    a("s_mov_b64 exec, 1")
    a.lg(f"ds_add_u32 {vaddr}, {vone} offset:{off}", tag)
    a("s_mov_b64 exec, -1")
def arrive(a, vdst, vaddr, vone, p, tag=None):
    a("s_mov_b64 exec, 1")
    a.lg(f"ds_add_rtn_u32 {vdst}, {vaddr}, {vone} offset:{AF+4*p}", tag)
    a("s_mov_b64 exec, -1")
def flag_if_last(a, v, vone, soff):
    a(f"v_xor_b32 {v}, 3, {v}")
    a(f"v_lshlrev_b32 {v}, 25, {v}")
    a.vm(f"buffer_store_dword {vone}, {v}, s[24:27], {soff} offen {SC1}", "fl")
def ffn_setup(a, vDF, t):
    a("s_cmp_ge_u32 s44, 2")
    a("s_cselect_b32 s32, s14, s12")
    a("s_cselect_b32 s33, s15, s13")
    a(f"s_mov_b32 s34, {448*1792*2}")
    a("s_mov_b32 s35, 0x00020000")
    a("s_cselect_b32 s51, 128, 0")
    a(f"s_mul_i32 s53, s44, {AR}")
    a("s_add_u32 s53, s53, s51")
    a(f"s_add_u32 s53, s53, {XS-128}")
    a("s_mul_i32 s42, s44, 7168")
    a("s_add_u32 s42, s42, s51")
    a("s_and_b32 s51, s44, 1")
    a(f"s_mul_i32 s54, s51, {32*3584}")
    a("s_mul_i32 s51, s46, 224")
    for j in range(7):
        a(f"v_add_u32 v{t}, {64*j}, v0")
        a(f"v_mul_u32_u24 v{t+1}, 4682, v{t}")
        a(f"v_lshrrev_b32 v{t+1}, 16, v{t+1}")
        a(f"v_mul_u32_u24 v{t+2}, {3584-14*16}, v{t+1}")
        a(f"v_lshl_add_u32 v{t+2}, v{t}, 4, v{t+2}")
        if j % 4: a(f"v_subrev_u32 v{t+2}, {1024*(j%4)}, v{t+2}")
        a(f"v_add_u32 {vr(vDF+j)}, s51, v{t+2}")
def gap(a, n):
    while n > 0:
        a(f"s_nop {min(n, 16) - 1}"); n -= 16
def ffn_dma(a, g, vDF, lo=0, hi=7, sp=None):
    sp = cfg.SPF if sp is None else sp
    if lo:
        base, off = ("s42", 0) if FSLOT[g] == "D" else ("s53", FA[FSLOT[g]])
        assert lo == 4
        a(f"s_add_u32 m0, {base}, {off+4096}")
        a(f"s_add_u32 s43, s3, {g}")
        a("s_cmp_ge_u32 s43, 7")
        a("s_cselect_b32 s62, 7, 0")
        a("s_sub_u32 s43, s43, s62")
        a(f"s_mul_i32 s43, s43, {64*3584}")
        a("s_add_u32 s43, s43, s54")
        for j in range(4, 7):
            a.vm(f"buffer_load_dwordx4 {vr(vDF+j)}, s[32:35], s43 offen offset:{1024*(j%4)} lds", ("F", g))
            if j < 6: gap(a, sp)
        return
    base, off = ("s42", 0) if FSLOT[g] == "D" else ("s53", FA[FSLOT[g]])
    a(f"s_add_u32 m0, {base}, {off}")
    a(f"s_add_u32 s43, s3, {g}")
    a("s_cmp_ge_u32 s43, 7")
    a("s_cselect_b32 s62, 7, 0")
    a("s_sub_u32 s43, s43, s62")
    a(f"s_mul_i32 s43, s43, {64*3584}")
    a("s_add_u32 s43, s43, s54")
    for j in range(hi):
        if j == 4:
            a(f"s_add_u32 m0, {base}, {off+4096}"); a("s_nop 0")
        a.vm(f"buffer_load_dwordx4 {vr(vDF+j)}, s[32:35], s43 offen offset:{1024*(j%4)} lds", ("F", g))
        if j < hi - 1: gap(a, sp)
def xread_addr(a, vX, t):
    a(f"s_mul_i32 s56, s44, {AR}")
    a(f"s_add_u32 s56, s56, {XS}")
    a(f"v_and_b32 v{t}, 31, v0")
    a(f"v_lshlrev_b32 v{t+1}, 7, v{t}")
    a(f"v_add_u32 v{t+1}, s56, v{t+1}")
    a(f"v_bfe_u32 v{t}, v0, 1, 3")
    a(f"v_lshrrev_b32 v{t+2}, 5, v0")
    a(f"v_xor_b32 v{t}, v{t}, v{t+2}")
    a(f"v_lshl_add_u32 {vr(vX)}, v{t}, 4, v{t+1}")
    for sp in range(1, 4): a(f"v_xor_b32 {vr(vX+sp)}, {32*sp}, {vr(vX)}")
def ln_ops(X0, k, LT, vR, nt=2):
    ops = []
    for b in range(0, 4, nt):
        for i in range(nt):
            r = X0 + 4*k + b + i
            ops += [f"v_lshlrev_b32 v{LT+2*i}, 16, v{r}", f"v_and_b32 v{LT+2*i+1}, s61, v{r}"]
        ops += [f"v_fma_f32 v{LT+i}, v{LT+i}, v{vR}, v{vR+1}" for i in range(2*nt)]
        ops += [f"v_cvt_pk_bf16_f32 v{X0+4*k+b+i}, v{LT+2*i}, v{LT+2*i+1}" for i in range(nt)]
    return ops
def sigma(a, dst, src):
    tab = [0, 1, 2, 3, 4, 5, 7, 6, 9, 8, 15, 11, 12, 13, 14, 10]
    assert all(tab[tab[k]] == k for k in range(16))
    lo = sum(tab[k] << (4*k) for k in range(8)); hi = sum(tab[8+k] << (4*k) for k in range(8))
    a(f"s_cmp_ge_u32 {src}, 8")
    a(f"s_cselect_b32 s62, {lo ^ hi:#x}, 0")
    a(f"s_xor_b32 s62, s62, {lo:#x}")
    a(f"s_lshl_b32 {dst}, {src}, 2")
    a(f"s_lshr_b32 {dst}, s62, {dst}")
    a(f"s_and_b32 {dst}, {dst}, 15")

def gen_c(a, st):
    a.vmq = []; a.lgq = []
    vDQ = 216; t = 240; SINK = 221; vL = 15; vDF = 208
    O = 16; S = 80; PP = 192; KV = 128; T = 200
    QL = [248, 224, 232, 240]
    a("L_compute:")
    mapping(a)
    for r in range(4): a(f"v_mov_b32 v{PP+4+r}, 0")
    a(f"v_min_u32 v{t}, 11, v0")
    a(f"v_and_b32 v{t+1}, 3, v{t}")
    a(f"v_lshrrev_b32 v{t}, 2, v{t}")
    a(f"v_lshlrev_b32 v{t}, 15, v{t}")
    a(f"v_lshl_add_u32 v{t}, v{t+1}, 7, v{t}")
    a("s_lshl_b32 s51, s52, 9")
    a(f"s_add_u32 s51, s51, {WS_F}")
    a("s_xor_b32 s59, s46, 7")
    a("s_waitcnt lgkmcnt(0)")
    srd(a, 24, 22, WS_BYTES)
    a("s_cbranch_scc1 L_noclr")
    a(f"buffer_store_dword v{PP+4}, v{t}, s[24:27], s51 offen {SC1}")
    a("L_noclr:")
    srd(a, 28, 6, 448*1344*2)
    sigma(a, "s51", "s46")
    a("s_mul_i32 s51, s51, 168")
    a("s_and_b32 s51, s51, -16")
    for j in range(3):
        a(f"v_add_u32 v{t}, {64*j}, v0")
        a(f"v_mul_u32_u24 v{t+1}, 5462, v{t}")
        a(f"v_lshrrev_b32 v{t+1}, 16, v{t+1}")
        a(f"v_mul_u32_u24 v{t+2}, 12, v{t+1}")
        a(f"v_sub_u32 v{t+2}, v{t}, v{t+2}")
        a(f"v_min_u32 v{t+2}, 10, v{t+2}")
        a(f"v_mul_u32_u24 v{t+1}, 2688, v{t+1}")
        a(f"v_lshl_add_u32 v{t+1}, v{t+2}, 4, v{t+1}")
        if j: a(f"v_subrev_u32 v{t+1}, {1024*j}, v{t+1}")
        a(f"v_add_u32 {vr(vDQ+j)}, s51, v{t+1}")
    a(f"s_mul_i32 s70, s44, {16*2688}")
    a(f"s_mul_i32 s71, s44, {16*192}")
    a(f"s_mul_i32 s72, s3, {64*2688}")
    a(f"s_mul_i32 s73, s44, {AR}")
    a(f"s_add_u32 s73, s73, {XS}")
    def qkv_dma(g):
        a(f"s_add_u32 m0, s71, {g*12288}" if g < 4 else f"s_add_u32 m0, s73, {(g-4)*3072}")
        a("s_add_u32 s51, s72, s70")
        for j in range(3):
            a.vm(f"buffer_load_dwordx4 {vr(vDQ+j)}, s[28:31], s51 offen offset:{1024*j} lds", ("Q", g))
        if g < 6:
            a(f"s_add_u32 s72, s72, {64*2688}"); a(f"s_cmp_ge_u32 s72, {448*2688}"); a("s_cselect_b32 s72, 0, s72")
    ffn_setup(a, vDF, t)
    srd(a, 12, 20, 256)
    srd(a, 36, 16, 1792*448*2)
    a("s_mov_b32 s40, 0"); a("s_mov_b32 s41, -1")
    for s_ in (f"v_lshlrev_b32 {vr(vL)}, 4, v0", "v_lshlrev_b32 v13, 25, v0", "v_mov_b32 v14, 1", f"v_mov_b32 v12, {CNT}",
               "v_and_b32 v222, 15, v0", "v_lshlrev_b32 v222, 4, v222", "s_lshl_b32 s74, s45, 4"): a(s_)
    for r in range(4): a(f"v_mov_b32 v{KV+48+12+r}, 0")
    for r in range(64): a(f"v_mov_b32 v{O+r}, 0")
    def landed(tag, off):
        a.wait(vm=tag); lds_add(a, "v12", "v14", off)
    def free(lab, off): lds_wait(a, lab, "v12", "v2", 4, sleep=1, off=off)
    st(name="setup")
    a("s_barrier")
    a(f"s_setprio {cfg.PF}")
    for g in range(cfg.Q0): qkv_dma(g)
    a("s_barrier")
    st(name="bx2")
    for g in range(cfg.Q0, 4): qkv_dma(g)
    landed(("Q", 1), GQ0)
    qkv_dma(4); qkv_dma(5)
    landed(("Q", 3), GQ1)
    qkv_dma(6)
    landed(("Q", 4), GQ2)
    ffn_dma(a, 0, vDF, 0, 4)
    landed(("Q", 5), GQ3)
    ffn_dma(a, 0, vDF, 4)
    landed(("Q", 6), GQ4)
    st(name="_q6")
    ffn_dma(a, 1, vDF)
    a("s_or_b32 s59, s59, s44")
    a("s_cbranch_scc1 L_nogo")
    free("L_clr", GQ0)
    a(f"buffer_store_dword v14, v13, s[12:15], s74 offen {SC1}")
    a("L_nogo:")
    landed(("F", 0), GATE(0))
    st(name="_g0")
    free("L_cq2", CQ2)
    ffn_dma(a, 2, vDF)
    landed(("F", 1), GATE(1))
    free("L_ce", CE)
    st(name="ce")
    a.vm(f"buffer_load_dword v223, v222, s[12:15], 0 offen {SC1}", "go")
    ffn_dma(a, 3, vDF)
    a.wait(vm="go")
    a("v_cmp_gt_u32 vcc, 1, v223")
    a("s_nop 3")
    a("s_cbranch_vccnz L_go"); a("L_go_x:")
    lds_add(a, "v12", "v14", GATE(2))
    st(name="_g2")
    if cfg.F4E: ffn_dma(a, 4, vDF)
    free("L_cons5", CONS(0))
    st(name="_c5")
    if not cfg.F4E: ffn_dma(a, 4, vDF)
    landed(("F", 3), GATE(3))
    ffn_dma(a, 5, vDF)
    a("s_setprio 0")
    a("s_lshl_b32 s65, s48, 1")
    a("s_and_b32 s51, s47, 1")
    a("s_add_u32 s65, s65, s51")
    a("s_lshr_b32 s66, s47, 1")
    a(f"v_bfe_u32 v{t+2}, v0, 2, 2")
    a(f"v_bfe_u32 v{t+4}, v0, 4, 1")
    for s_ in ("s_lshl_b32 s51, s66, 2", "s_add_u32 s51, s51, s44", f"s_mul_i32 s67, s51, {144*1024}", "s_lshl_b32 s51, s65, 11", "s_add_u32 s67, s67, s51",
               f"s_add_u32 s67, s67, {WS_A+112*1024}",
               "s_lshl_b32 s51, s44, 2",
               "s_lshl_b32 s60, s66, 4", "s_add_u32 s60, s60, s65", "s_lshl_b32 s60, s60, 7", f"s_add_u32 s60, s60, {WS_F+65536}",
               "s_lshl_b32 s51, s65, 18", "s_lshl_b32 s58, s44, 16", "s_add_u32 s51, s51, s58", f"s_add_u32 s51, s51, {WS_KV}",
               "s_add_u32 s4, s22, s51", "s_addc_u32 s5, s23, 0", "s_mov_b32 s6, 0x10000", "s_mov_b32 s7, 0x00020000",
               "s_lshl_b32 s69, s66, 12"): a(s_)
    for k, (add, dst) in enumerate(((0, "s56"), (16, "s57"), (32, "s58"))):
        a(f"s_add_u32 s51, s65, {add}")
        a("s_mul_i32 s51, s51, 43")
        a("s_lshr_b32 s51, s51, 7")
        sigma(a, "s51", "s51")
        a(f"s_lshl_b32 {dst}, s51, 7")
    a("s_lshl_b32 s51, s66, 11")
    a("s_add_u32 s56, s56, s51")
    a("s_lshl_b32 s51, s44, 13")
    a("s_add_u32 s57, s57, s51")
    a("s_add_u32 s58, s58, s51")
    a(f"v_lshlrev_b32 v1, 11, v{t+2}")
    a(f"v_add_u32 v{t+6}, s58, v1")
    a(f"v_add_u32 v1, s57, v1")
    a(f"v_cmp_eq_u32 vcc, 1, v{t+4}")
    a(f"v_mov_b32 v{t+7}, s56")
    a(f"v_and_b32 v{t+3}, 3, v0")
    a(f"v_cndmask_b32 v1, v1, v{t+6}, vcc")
    a(f"v_cndmask_b32 v1, v1, v{t+7}, s[40:41]")
    a(f"s_mov_b32 s68, {WS_F}")
    for j in range(4):
        for s_ in (f"s_add_u32 s51, s44, {j}", "s_and_b32 s51, s51, 3", f"s_mul_i32 s55, s51, 12288", f"s_add_u32 s55, s55, {CB1}", f"v_add_u32 v{T+4+j}, s55, {vr(vL)}",
                   "s_lshl_b32 s55, s65, 4", "s_add_u32 s55, s55, s66", "s_lshl_b32 s55, s55, 2", "s_add_u32 s55, s55, s51", f"s_lshl_b32 s{8+j}, s55, 11"): a(s_)
    a("s_mov_b32 s55, 0")
    if cfg.EW:
        a("s_cmp_lt_u32 s50, 7")
        a("s_cselect_b32 s38, s38, 0")
        for s_ in ("v_lshrrev_b32 v3, 3, v0", "v_bfe_u32 v4, v0, 4, 1", "v_lshlrev_b32 v4, 2, v4", "v_and_b32 v7, 7, v0", "v_xor_b32 v7, v7, v4",
                   "v_mul_u32_u24 v3, 896, v3", "v_lshl_add_u32 v3, v7, 4, v3", f"v_add_u32 v4, {8*896-1024}, v3",
                   f"s_mul_i32 s56, s44, {448*896}", "s_lshl_b32 s57, s50, 7", "s_add_u32 s56, s56, s57", f"s_mul_i32 s57, s64, {64*896}", "s_add_u32 s57, s57, s56",
                   "s_add_u32 s51, s64, 1", "s_cmp_ge_u32 s51, 7", "s_cselect_b32 s51, 0, s51", f"s_mul_i32 s58, s51, {64*896}", "s_add_u32 s58, s58, s56",
                   f"s_mul_i32 s56, s44, {RNG}"): a(s_)
    a(f"s_setprio {cfg.PF}")
    landed(("F", 4), GATE(4))
    free("L_cons6", CONS(1))
    st(name="_c6")
    ffn_dma(a, 6, vDF)
    if cfg.K0 == 24: landed(("F", 5), GATE(5))
    landed(("F", 6), GATE(5 if cfg.K0 == 20 else 6))
    if cfg.EW:
        free("L_consw", CONS(2))
        for i in range(5):
            a(f"s_add_u32 m0, s56, {CB1 + 2048*i}")
            a(f"s_add_u32 s51, s{57 + i//4}, {(i%4)*16*896}")
            a.vm(f"buffer_load_dwordx4 v3, s[36:39], s51 offen lds", "wx")
            a.vm(f"buffer_load_dwordx4 v4, s[36:39], s51 offen offset:1024 lds", "wx")
    st(name="_cf6")
    def kvload(slot, j): return f"buffer_load_dwordx4 {vr(KV+16*slot+4*j,4)}, {vr(vL)}, s[4:7], s69 offen offset:{1024*j} {SC1}"
    kvadv = ["s_add_u32 s69, s69, 4096", "s_and_b32 s69, s69, 0xffff"]
    poll(a, "L_p1", "v2", "v1", "s[24:27]", "s68", 1, sleep=cfg.PS1)
    st(name="poll1")
    for j in (1, 2, 3, 0):
        for ks in range(2): a.vm(f"buffer_load_dwordx4 {vr(QL[j]+4*ks,4)}, {vr(vL)}, s[24:27], s{8+j} offen offset:{1024*ks} {SC1}", "q")
    for sl in range(3):
        for j in range(4): a.vm(kvload(sl, j), ("kv", sl))
        for x in kvadv: a(x)
    a(f"s_setprio {cfg.PC}")
    QO = [1, 2, 3, 0]
    def qk(n, ks):
        kt, qt = (n//4) % 4, n % 4
        s = vr(S+16*(n&1), 16)
        return f"v_mfma_f32_32x32x16_bf16 {s}, {vr(KV+16*kt+4*ks,4)}, {vr(QL[QO[qt]]+4*ks,4)}, {'0' if ks==0 else s}"
    def pv(n, ks):
        kt, qt = (n//4) % 4, n % 4
        o = vr(O+16*QO[qt], 16)
        return f"v_mfma_f32_32x32x16_bf16 {o}, {vr(KV+16*kt+8+4*ks,4)}, {vr(PP+4*ks,4)}, {o}"
    a.wait(vm=("kv", 0))
    lds_add(a, "v12", "v14", HA-CNT)
    st(name="att0")
    a(qk(0, 0)); a(qk(0, 1))
    a("s_nop 7"); a("s_nop 3")
    a.raw(".p2align 3")
    a("L_att:")
    def softmax(n, m, odd):
        sb = S + 16*(n & 1)
        for j in range(4):
            a(f"v_exp_f32{'_e64' if (odd and j == 1) else ''} v{sb+4*m+j}, v{sb+4*m+j}")
        for j in range(2): a(f"v_cvt_pk_bf16_f32 v{PP+2*m+j}, v{sb+4*m+2*j}, v{sb+4*m+2*j+1}")
    for n in range(16):
        kt, qt = n//4, n % 4
        ms = [qk(n+1, 0), qk(n+1, 1), pv(n-1, 1), pv(n, 0)]
        for m in range(4):
            a(ms[m])
            odd = False
            if n == 12 and m == 0:
                a("s_cbranch_scc1 L_last"); a("s_nop 0")
            if m == 0: a(kvload((kt+3) % 4, qt))
            if qt == 2 and m == 2 and kt == 0:
                a("s_add_u32 s55, s55, 1"); odd = True
            if n == 0 and m == 1 and asmlib.STAMP and cfg.ITS:
                a("s_mov_b64 s[96:97], s[94:95]"); a("s_mov_b64 s[94:95], s[92:93]"); a("s_mov_b64 s[92:93], s[90:91]"); a("s_memtime s[90:91]")
            if qt == 2 and m == 3: a("s_waitcnt vmcnt(9)"); odd = True
            if qt == 0 and m == 2: a("s_waitcnt vmcnt(9)"); odd = True
            if qt == 3 and m == 1: a(kvadv[0])
            if qt == 3 and m == 2: a(kvadv[1])
            if qt == 3 and m == 3 and kt == 0:
                a("s_cmp_eq_u32 s55, 4"); a("s_cselect_b32 s6, 0, s6")
            if qt == 3 and m == 3 and kt == 2: a("s_cmp_eq_u32 s55, 4"); odd = True
            softmax(n, m, odd)
    a("s_branch L_att")
    a.raw(".p2align 3")
    a("L_last:")
    def cwr(j, q): a(f"ds_write_b128 v{T+4+j}, {vr(O+16*j+4*q,4)} offset:{(j-1)*4096+q*1024}")
    for n in range(12, 16):
        ms = [qk(n+1, 0), qk(n+1, 1), pv(n-1, 1), pv(n, 0)] if n < 15 else [pv(14, 1), None, None, pv(15, 0)]
        for m in range(4):
            if n == 15 and m == 0: cwr(2, 0); cwr(2, 1)
            if ms[m] and not (n == 12 and m == 0): a(ms[m])
            odd = False
            if n == 12 and m == 0: a(f"ds_read_b32 v{T}, v12 offset:{HX}")
            if n == 12 and m == 2: a("s_waitcnt vmcnt(8) lgkmcnt(0)"); a(f"v_cmp_gt_u32 vcc, 4, v{T}")
            if n == 13 and m == 0:
                a("s_cbranch_vccnz L_hd"); a("L_hd_x:"); odd = True
            if n == 13 and m == 1: a(f"s_mov_b32 s42, {f2u(2.0**-64):#x}")
            if n == 13 and m == 2: a(f"s_mov_b32 s43, {f2u(2.0**64):#x}")
            if n == 14: cwr(1, m)
            if n == 15 and m == 1: cwr(2, 2); cwr(2, 3)
            if n == 15 and m >= 2: cwr(3, 2*m-4); cwr(3, 2*m-3)
            softmax(n, m, odd)
    a("s_setprio 2")
    a("s_waitcnt lgkmcnt(0)")
    a(pv(15, 1))
    st(name="attend")
    lds_add(a, "v12", "v14", CW)
    lds_wait(a, "L_cw", "v12", f"v{T}", 4, off=CW)
    st(name="_Tc")
    for q in (3, 0, 1, 2):
        for j in range(3):
            a.lg(f"ds_read_b128 {vr(O+16+16*j+4*q,4)}, v{T+4} offset:{j*4096+q*1024}", q)
    def add3(q):
        a.wait(lg=q)
        for r in range(4*q, 4*q+4): a(f"v_add_f32 v{O+r}, v{O+r}, v{O+16+r}")
        for r in range(4*q, 4*q+4): a(f"v_add_f32 v{O+32+r}, v{O+32+r}, v{O+48+r}")
        for r in range(4*q, 4*q+4): a(f"v_add_f32 v{O+r}, v{O+r}, v{O+32+r}")
    add3(3)
    a(f"v_mov_b32 v{T}, v{O+12}")
    a(f"v_mov_b32 v{T+1}, v{O+12}")
    add3(0)
    a(f"v_permlane32_swap_b32 v{T}, v{T+1}")
    add3(1)
    a(f"v_cmp_le_f32 vcc, s42, v{T+1}")
    a(f"v_cmp_ge_f32 s[56:57], s43, v{T+1}")
    a(f"v_rcp_f32 v{T}, v{T+1}")
    add3(2)
    a("s_and_b64 vcc, vcc, s[56:57]")
    a("s_cmp_eq_u64 vcc, -1")
    a("s_cbranch_scc0 L_slow")
    a("L_fin:")
    for r in range(8): a(f"v_mul_f32 v{O+r}, v{O+r}, v{T}")
    for r in range(4): a(f"v_cvt_pk_bf16_f32 v{PP+r}, v{O+2*r}, v{O+2*r+1}")
    a.vm(f"buffer_store_dwordx4 {vr(PP,4)}, {vr(vL)}, s[24:27], s67 offen {SC1}", "st")
    for r in range(8, 16): a(f"v_mul_f32 v{O+r}, v{O+r}, v{T}")
    for r in range(4, 8): a(f"v_cvt_pk_bf16_f32 v{PP+r}, v{O+2*r}, v{O+2*r+1}")
    a(f"v_cndmask_b32 v{PP+6}, v{PP+6}, 0, s[40:41]")
    a(f"v_cndmask_b32 v{PP+7}, v{PP+7}, 0, s[40:41]")
    a.vm(f"buffer_store_dwordx4 {vr(PP+4,4)}, {vr(vL)}, s[24:27], s67 offen offset:1024 {SC1}", "st")
    st(name="_prefl2")
    a("v_mov_b32 v13, 0")
    a.wait(vm="all")
    arrive(a, "v13", "v12", "v14", 2)
    a.wait(lg="all")
    flag_if_last(a, "v13", "v14", "s60")
    st(name="fl2")
    if asmlib.STAMP and cfg.ITS:
        assert st.n <= 10
        st.n = 14; st.names += ["it"]*4
    a("L_c_end:")
    st.flush(63, 8)
    a("L_end:")
    a("s_endpgm")
    a("L_go:")
    poll(a, "L_p0", "v223", "v222", "s[12:15]", "0", 1)
    a("s_branch L_go_x")
    lds_wait(a, "L_hd", "v12", f"v{T}", 4, off=HX)
    a("s_branch L_hd_x")
    S1 = S + 16
    a("L_slow:")
    a("s_lshl_b32 s56, s65, 18")
    a(f"s_add_u32 s56, s56, {WS_KV}")
    a("s_mov_b32 s57, s56")
    a("s_mov_b32 s55, 64")
    a(f"v_mov_b32 v{T+2}, 0xff800000")
    a("s_waitcnt vmcnt(0)")
    a("L_slow1:")
    for j in range(2): a(f"buffer_load_dwordx4 {vr(KV+4*j,4)}, {vr(vL)}, s[24:27], s57 offen offset:{1024*j} {SC1}")
    a("s_waitcnt vmcnt(0)")
    a(qk(3, 0)); a(qk(3, 1))
    a("s_nop 7"); a("s_nop 7")
    for r in range(8): a(f"v_max3_f32 v{T+2}, v{S1+2*r}, v{S1+2*r+1}, v{T+2}")
    a("s_add_u32 s57, s57, 4096")
    a("s_sub_u32 s55, s55, 1"); a("s_cmp_lg_u32 s55, 0")
    a("s_cbranch_scc1 L_slow1")
    a(f"v_mov_b32 v{T+3}, v{T+2}")
    a("s_nop 1")
    a(f"v_permlane32_swap_b32 v{T+3}, v{T+2}")
    a("s_nop 1")
    a(f"v_max_f32 v{T+2}, v{T+2}, v{T+3}")
    for r in range(16): a(f"v_mov_b32 v{O+r}, 0")
    a("s_mov_b32 s55, 64")
    a("L_slow2:")
    for j in range(4): a(f"buffer_load_dwordx4 {vr(KV+4*j,4)}, {vr(vL)}, s[24:27], s56 offen offset:{1024*j} {SC1}")
    a("s_waitcnt vmcnt(0)")
    a(qk(3, 0)); a(qk(3, 1))
    a("s_nop 7"); a("s_nop 7")
    for r in range(16): a(f"v_sub_f32 v{S1+r}, v{S1+r}, v{T+2}")
    for r in range(16): a(f"v_exp_f32 v{S1+r}, v{S1+r}")
    a("s_nop 0")
    for r in range(8): a(f"v_cvt_pk_bf16_f32 v{PP+r}, v{S1+2*r}, v{S1+2*r+1}")
    a("s_nop 1")
    a(pv(3, 0)); a(pv(3, 1))
    a("s_add_u32 s56, s56, 4096")
    a("s_sub_u32 s55, s55, 1"); a("s_cmp_lg_u32 s55, 0")
    a("s_cbranch_scc1 L_slow2")
    a("s_nop 7"); a("s_nop 7")
    a(f"v_mov_b32 v{T}, v{O+12}")
    a(f"v_mov_b32 v{T+1}, v{O+12}")
    a("s_nop 1")
    a(f"v_permlane32_swap_b32 v{T}, v{T+1}")
    a("s_nop 1")
    a(f"v_rcp_f32 v{T}, v{T+1}")
    a("s_nop 0")
    a("s_branch L_fin")
    a("L_code_end:")

def gen_h(a, st):
    X0 = 16; ACCF = 128; AQ = 192
    AS = 144; vR = 148; LT = 152; vXD = 160; vX = 164; vTQ = 168; t = 172
    vTF = 1; vC = 3; vOne = 4; vG = 5; vL = 7
    a("s_setprio 1")
    mapping(a)
    a(f"v_lshrrev_b32 v{t+2}, 3, v0")
    a("s_lshl_b32 s51, s52, 5")
    a(f"v_add_u32 v{t+2}, s51, v{t+2}")
    a(f"v_mul_u32_u24 v{t+2}, 896, v{t+2}")
    a(f"v_lshrrev_b32 v{t+3}, 4, v0")
    a(f"v_and_b32 v{t+4}, 7, v0")
    a(f"v_xor_b32 v{t+3}, v{t+3}, v{t+4}")
    a(f"v_lshl_add_u32 {vr(vXD)}, v{t+3}, 4, v{t+2}")
    a(f"v_xor_b32 v{t+3}, 64, {vr(vXD)}")
    a(f"v_add_u32 {vr(vXD+1)}, 6144, v{t+3}")
    a(f"v_add_u32 {vr(vXD+2)}, {2*6144}, {vr(vXD)}")
    a(f"v_add_u32 {vr(vXD+3)}, {3*6144}, v{t+3}")
    a(f"s_mul_i32 s53, s44, {AR}")
    a(f"s_add_u32 s53, s53, {XS}")
    a("s_lshl_b32 s55, s3, 7")
    a(f"s_mov_b32 s30, {2048*448*2}")
    a("s_mov_b32 s31, 0x00020000")
    a("s_mov_b32 m0, s53")
    a("s_waitcnt lgkmcnt(0)")
    a("s_mov_b32 s28, s4"); a("s_mov_b32 s29, s5")
    st(name="_h0")
    def xload(cb):
        for rg in range(4):
            a.vm(f"buffer_load_dwordx4 {vr(vXD+rg)}, s[28:31], s55 offen offset:{rg*1024} lds", ("x", cb))
        if cb < 6:
            a(f"s_add_u32 m0, s53, {(cb+1)*4096}")
            a("s_add_u32 s55, s55, 128"); a("s_cmp_ge_u32 s55, 896"); a("s_cselect_b32 s55, 0, s55")
    for cb in range(cfg.XA - 1): xload(cb)
    srd(a, 24, 22, WS_BYTES)
    xread_addr(a, vX, t)
    for i in range(4): a(f"v_mov_b32 v{AS+i}, 0")
    a(f"v_mov_b32 v{t+10}, 0")
    a(f"v_mov_b32 v{t+8}, 0x3f803f80")
    a("s_mov_b32 s61, 0xffff0000")
    a(f"v_mov_b32 {vr(vOne)}, 1")
    a(f"v_mov_b32 {vr(vC)}, {CNT}")
    a(f"v_lshlrev_b32 {vr(vL)}, 4, v0")
    a(f"v_and_b32 v{t+9}, 31, v0")
    a(f"v_cmp_eq_u32 vcc, 28, v{t+9}")
    a(f"v_lshl_add_u32 v{t+9}, v{t+9}, 2, {vr(vC)}")
    sigma(a, "s60", "s46")
    a(f"v_cndmask_b32 v6, 0, v{t+8}, vcc")
    a(f"v_lshrrev_b32 v{t+5}, 5, v0")
    a(f"v_bfe_u32 v{t+2}, v0, 2, 2")
    a(f"v_lshl_add_u32 v{t+2}, v{t+5}, 3, v{t+2}")
    a(f"v_and_b32 v{t+3}, 3, v0")
    a(f"v_bfe_u32 v{t+4}, v0, 4, 1")
    a(f"v_mul_u32_u24 v{t+5}, 224, v{t+2}")
    a(f"v_lshl_add_u32 v{t+5}, v{t+3}, 3, v{t+5}")
    a(f"v_mul_u32_u24 v{t+6}, {OU}, v{t+4}")
    a(f"v_add_u32 {vr(vTF)}, v{t+5}, v{t+6}")
    a(f"v_mul_u32_u24 v{t+6}, {2*AR+128}, v{t+4}")
    a(f"v_add_u32 v{t+5}, {XS-128}, v{t+5}")
    a(f"v_add_u32 {vr(vTF+1)}, v{t+5}, v{t+6}")
    a(f"v_mul_u32_u24 v{t+5}, 192, v{t+2}")
    a(f"v_lshl_add_u32 v{t+5}, v{t+3}, 3, v{t+5}")
    a(f"v_lshl_add_u32 v{t+5}, v{t+4}, 5, v{t+5}")
    a("s_and_b32 s51, s60, 1")
    a("s_lshl_b32 s51, s51, 3")
    a(f"v_add_u32 {vr(vTQ)}, s51, v{t+5}")
    a(f"v_add_u32 {vr(vTQ+1)}, {XS}, {vr(vTQ)}")
    a(f"v_add_u32 {vr(vTQ+2)}, {XS+2*AR}, {vr(vTQ)}")
    a("s_mul_i32 s54, s60, 3")
    for i in range(3):
        a(f"s_add_u32 s51, s54, {i}")
        a(f"s_lshr_b32 s62, s51, 4")
        a("s_and_b32 s51, s51, 15")
        a("s_lshl_b32 s51, s51, 6")
        a("s_add_u32 s51, s51, s52")
        a("s_lshl_b32 s56, s51, 11")
        a("s_lshl_b32 s57, s51, 12")
        a(f"s_lshl_b32 s58, s62, 11")
        a("s_add_u32 s57, s57, s58")
        a(f"s_add_u32 s57, s57, {WS_KV-2048}")
        a(f"s_cmp_eq_u32 s62, 0")
        a(f"s_cselect_b32 s{32+i}, s56, s57")
        a(f"s_cselect_b32 s{35+i}, {f2u(QSCALE):#x}, 1.0")
    a("s_mov_b32 s42, 0"); a("s_mov_b32 s43, -1")
    a("s_mov_b32 s38, 0x0fffffff"); a("s_mov_b32 s39, 0x0fffffff")
    st(name="_hsetup")
    xload(cfg.XA - 1)
    def dots(cb):
        for r in range(X0+16*cb, X0+16*cb+16):
            a(f"v_dot2c_f32_bf16 v{AS+(r&1)}, v{r}, v{t+8}")
            a(f"v_dot2c_f32_bf16 v{AS+2+(r&1)}, v{r}, v{r}")
    for cb in range(7):
        a.wait(vm=("x", cb))
        st(name=("" if cb == 6 else "_") + f"x{cb}")
        for sp in range(4): a.lg(f"ds_read_b128 {vr(X0+16*cb+4*sp,4)}, {vr(vX+sp)} offset:{cb*4096}", ("x", cb))
        if cb + cfg.XA < 7: xload(cb + cfg.XA)
        if cb == cfg.BX: a("s_barrier")
        if cb == 6:
            a("s_cmp_lg_u32 s44, 1")
            a("s_cbranch_scc1 L_nocnt")
            a(f"ds_write_b32 v{t+9}, v{t+10}")
            a("L_nocnt:")
        if cb:
            a.wait(lg=("x", cb-1)); dots(cb-1)
    a.wait(lg="all")
    a("s_barrier")
    dots(6)
    a(f"s_mov_b32 s51, {f2u(1/448):#x}")
    a(f"s_mov_b32 s55, {f2u(1e-5):#x}")
    a("s_nop 0")
    a(f"v_add_f32 v{AS}, v{AS}, v{AS+1}")
    a(f"v_add_f32 v{AS+2}, v{AS+2}, v{AS+3}")
    a(f"v_mov_b32 v{AS+1}, v{AS}")
    a(f"v_mov_b32 v{AS+3}, v{AS+2}")
    a("s_nop 1")
    a(f"v_permlane32_swap_b32 v{AS+1}, v{AS}")
    a(f"v_permlane32_swap_b32 v{AS+3}, v{AS+2}")
    a("s_nop 1")
    a(f"v_add_f32 v{AS}, v{AS}, v{AS+1}")
    a(f"v_add_f32 v{AS+2}, v{AS+2}, v{AS+3}")
    a(f"v_mul_f32 v{AS}, s51, v{AS}")
    a(f"v_mul_f32 v{AS+2}, s51, v{AS+2}")
    a(f"v_fma_f32 v{AS+2}, -v{AS}, v{AS}, v{AS+2}")
    a(f"v_max_f32 v{AS+2}, 0, v{AS+2}")
    a(f"v_add_f32 v{AS+2}, s55, v{AS+2}")
    a(f"v_rsq_f32 v{vR}, v{AS+2}")
    a("s_nop 0")
    a(f"v_mul_f32 v{vR+1}, -v{AS}, v{vR}")
    st(name="_t0")
    def ln_pk(k):
        for i in range(4):
            r = X0 + 4*k + i
            a(f"v_lshlrev_b32 v{LT+2*i}, 16, v{r}"); a(f"v_and_b32 v{LT+2*i+1}, s61, v{r}")
        for i in range(4): a(f"v_pk_fma_f32 {vr(LT+2*i,2)}, {vr(LT+2*i,2)}, {vr(vR,2)}, {vr(vR,2)} op_sel:[0,0,1] op_sel_hi:[1,0,1]")
        for i in range(4): a(f"v_cvt_pk_bf16_f32 v{X0+4*k+i}, v{LT+2*i}, v{LT+2*i+1}")
    K0 = cfg.K0; KT = 28 - K0; NA = 84
    order = [("q", k, tl) for k in range(28) for tl in range(3)]
    order += [("f", k, tl) for k in range(4) for tl in range(4)] + [("f", k, tl) for tl in (4, 5, 6) for k in range(4)]
    order += [("f", k, tl) for k in range(4, K0) for tl in range(7)] + [("f", k, tl) for tl in range(7) for k in range(K0, 28)]
    NM = len(order); SC = NA + 7*K0
    HP = 52
    ACC = 16; HR = 80; W = 112; WREG = 128
    vD = 12; vD2 = 2; vT0 = 8; vT1 = 9; vP = 10; vL1 = 11; u = 44
    SK = [70, 71, 72, 73, 74, 75, 76]
    late = ["s_and_b32 s40, s44, 1", "s_lshr_b32 s41, s44, 1", f"s_mul_i32 s77, s44, {RNG}",
            f"s_mul_i32 s65, s52, {144*1024}", f"s_mul_i32 s51, s46, {7*1024}", "s_add_u32 s65, s65, s51", f"s_add_u32 s65, s65, {WS_A}", "s_add_u32 s66, s65, 4096",
            "s_lshl_b32 s46, s50, 7", f"s_mul_i32 s0, s44, {448*896}", "s_add_u32 s0, s0, s46",
            f"s_mul_i32 s1, s40, {8*28*128}", f"s_add_u32 s1, s1, {WOS}", "s_sub_u32 s1, s1, s77",
            f"s_mul_i32 s51, s49, {2*144*1024}", f"s_mul_i32 s55, s44, {28*1024}", "s_add_u32 s55, s55, s51", f"s_add_u32 s55, s55, {WS_A}",
            f"s_mul_i32 s21, s41, {144*1024}", "s_add_u32 s20, s55, s21", "s_add_u32 s69, s51, s21", "s_sub_u32 s21, s55, s21", f"s_add_u32 s21, s21, {144*1024}",
            "s_lshl_b32 s51, s40, 14", "s_add_u32 s69, s69, s51", f"s_add_u32 s69, s69, {WS_A+112*1024}",
            "s_lshr_b32 s68, s49, 1", "s_lshl_b32 s68, s68, 11",
            "s_lshl_b32 s51, s44, 9", "s_add_u32 s47, s68, s51", f"s_add_u32 s47, s47, {WS_F+32768}",
            "s_lshl_b32 s51, s40, 10", "s_add_u32 s68, s68, s51", f"s_add_u32 s68, s68, {WS_F+65536}",
            "s_lshl_b32 s45, s49, 1", "s_add_u32 s45, s45, s41", "s_lshl_b32 s45, s45, 5",
            f"s_mul_i32 s7, s44, {14*1024}", f"s_mul_i32 s6, s44, {14*8*896}", "s_add_u32 s6, s6, s46",
            "s_lshl_b32 s51, s40, 6", "s_add_u32 s46, s46, s51", "s_mov_b32 s51, s64", "s_add_u32 s59, s59, 32768"]
    for g in range(7):
        late.append(f"s_lshl_b32 s{SK[g]}, s51, 12")
        if g < 6: late += ["s_add_u32 s51, s51, 1", "s_cmp_ge_u32 s51, 7", "s_cselect_b32 s51, 0, s51"]
    b_ = Asm(); srd(b_, 28, 16, 1792*448*2); srd(b_, 12, 8, 448*448*2); srd(b_, 8, 4, 2048*448*2)
    late += [l.strip() for l in b_.L]
    late += [f"v_lshrrev_b32 v{u}, 3, v0", f"v_bfe_u32 v{u+3}, v0, 4, 1", f"v_lshlrev_b32 v{u+1}, 2, v{u+3}", f"v_and_b32 v{u+2}, 7, v0",
             f"v_xor_b32 v{u+2}, v{u+2}, v{u+1}", f"v_mul_u32_u24 v{u}, 896, v{u}", f"v_lshl_add_u32 {vr(vD)}, v{u+2}, 4, v{u}",
             f"v_bfe_u32 v{u}, v0, 2, 2", f"v_lshrrev_b32 v{u+4}, 5, v0", f"v_lshl_add_u32 v{u+1}, v{u+4}, 2, v{u}", f"v_lshlrev_b32 v{u+1}, 7, v{u+1}",
             f"v_and_b32 v{u+2}, 3, v0", f"v_lshl_add_u32 v{u+1}, v{u+2}, 3, v{u+1}", f"v_lshl_add_u32 v{u+1}, v{u+3}, 5, v{u+1}", f"v_lshrrev_b32 v{u}, 1, v{u}",
             f"v_xor_b32 v{u}, s40, v{u}", f"v_lshl_add_u32 v{u+1}, v{u}, 6, v{u+1}", f"v_add_u32 {vr(vT0)}, s77, v{u+1}", f"v_xor_b32 {vr(vT1)}, 64, {vr(vT0)}",
             f"v_and_b32 v{u}, 31, v0", f"v_add_u32 v{u}, s45, v{u}", f"v_mul_u32_u24 v{u}, 896, v{u}", f"v_lshl_add_u32 v{u}, v{u+4}, 4, v{u}", f"v_add_u32 v6, s46, v{u}",
             f"v_add_u32 v13, s1, {vr(vT0)}", "v_xor_b32 v14, 64, v13",
             f"v_bfe_u32 {vr(vP)}, v0, 1, 2", f"v_lshlrev_b32 {vr(vP)}, 7, {vr(vP)}",
             f"v_add_u32 v15, s20, {vr(vL)}", f"v_add_u32 {vr(vL1)}, s21, {vr(vL)}"]
    early = ["s_lshl_b32 s59, s45, 4", "s_add_u32 s59, s59, s46", "s_lshl_b32 s59, s59, 7", f"s_add_u32 s59, s59, {WS_F}", "v_mov_b32 v6, 0"]
    class Z: pass
    z = Z()
    tmp = [128, 132, 136, 140]
    z.pool = [240, 244, 248, 252, 8, 12] + tmp; z.freg = {}; z.rp = 0; z.waited = -1; z.lim = 24; z.epiq = []
    z.lq = []
    for k in range(cfg.LPRE, 28): z.lq += [(k, o) for o in ln_ops(X0, k, LT, vR, 4)]
    checks = {24 - 7: ("gq24", GQ1, 48), 48 - 7: ("gq48", GQ2, 60), 60 - 7: ("gq60", GQ3, 72), 72 - 7: ("gq72", GQ4, 84), NA - 7: ("gate0", GATE(0), NA + 28)}
    GL = [1, 2, 3, 4, 5] + ([6] if K0 == 24 else [])
    for g in GL: checks[NA + 28*g - 8] = (f"gate{g}", GATE(g), NA + 28*(g+1) if g < GL[-1] else NM)
    ool = []
    def frag(f):
        p, k, tl = order[f]; g, sp = k // 4, k % 4
        c = [r_ for r_ in z.pool if not (r_ in tmp and f >= NA)]
        if not c: return False
        reg = c[0]; z.pool.remove(reg); z.freg[f] = reg
        for rd in range(2):
            if p == "q":
                if g < 4: ad, off = vTQ, g*12288 + 16*sp*192
                else: ad, off = vTQ + 1 + sp//2, (sp % 2)*AR + (g-4)*3072
                off += 4*rd*192 + tl*56
            else:
                if FSLOT[g] == "D": ad, off = vTF, 16*sp*224
                else: ad, off = vTF+1, FA[FSLOT[g]] + (sp//2)*AR + 16*(sp % 2)*224
                off += 4*rd*224 + tl*32
            a.lg(f"ds_read_b64_tr_b16 {vr(reg+2*rd,2)}, {vr(ad)} offset:{off}", ("f", f))
        return True
    def epi_q(tl, var):
        b = AQ + 16*tl
        o = [] if var else [f"v_mul_f32 v{b+r}, s{35+tl}, v{b+r}" for r in range(16)]
        o += [f"v_cvt_pk_bf16_f32 v{b+r}, v{b+2*r}, v{b+2*r+1}" for r in range(8)]
        o += [f"v_cndmask_b32 v{b+r}, v6, v{b+r}, s[38:39]" for r in range(8)] if var else [f"v_cndmask_b32 v{b+r}, v{b+r}, 0, s[42:43]" for r in (6, 7)]
        if tl == 2 and not var: o.append(("mix",))
        o += [("vm", f"buffer_store_dwordx4 {vr(b+4*q,4)}, {vr(vL)}, s[24:27], s{32+tl} offen offset:{1024*q} {SC1}") for q in range(2)]
        return [(tl, x) for x in o]
    def epi_f(tl):
        b = ACCF + 16*tl
        return [(None, x) for x in [f"v_max_f32 v{b+r}, 0, v{b+r}" for r in range(8)] + [f"v_mul_f32 v{b+r}, v{b+r}, v{b+8+r}" for r in range(8)] +
                [f"v_cvt_pk_bf16_f32 v{HP+4*tl+r}, v{b+2*r}, v{b+2*r+1}" for r in range(4)]]
    epi_at = {SC + KT*tl + KT - 1 + 3: epi_f(tl) for tl in range(7)}
    def put(x):
        if isinstance(x, str): a(x); return 1
        if x[0] == "vm": a.vm(x[1], "st"); return 4
        a("s_cmp_eq_u32 s60, 10"); a("s_cbranch_scc1 L_mix"); a("L_mix_x:"); return 2
    def stream(lo, hi, var):
        sfx = "v" if var else ""
        for f in range(lo, hi):
            p, k, tl = order[f]; ff = f - NA
            used = 0
            if p == "f" and tl >= 4 and k == 0:
                flushed = False
                while any(e[0] is not None and e[0] <= tl - 4 for e in z.epiq): put(z.epiq.pop(0)[1]); flushed = True
                if flushed: a("s_nop 1")
            if f > z.waited:
                z.waited = min(NM-1, f + (2 if p == "q" else 1 if z.rp - f < 7 else 3), z.rp-1)
                assert z.waited >= f
                wait_lg_tags(a, [("f", z.waited)])
            assert not z.lq or z.lq[0][0] > k
            acc = vr((AQ if p == "q" else ACCF) + 16*tl, 16)
            ab = [vr(z.freg[f], 4), vr(X0+4*k, 4)]
            sw = var if p == "q" else 0
            a(f"v_mfma_f32_32x32x16_bf16 {acc}, {ab[sw]}, {ab[1-sw]}, {'0' if k == 0 else acc}")
            st(name=f"_a{f}" if p == "q" else f"_f{ff}")
            if f == z.waited: used += 1
            if f >= 1 and not (z.freg[f-1] in (8, 12) and ff > 44): z.pool.append(z.freg[f-1])
            if 25 <= ff <= 28: z.pool.append(X0 + 4*(ff - 25))
            if ff in (35, 42): z.pool.append(X0 + 4*(ff//7 - 1))
            if ff == 1: z.epiq += epi_q(0, var) + epi_q(1, var) + epi_q(2, var)
            if ff == cfg.GL: z.epiq += [(None, x) for x in early]
            if f in epi_at: z.epiq += epi_at.pop(f)
            sig = {33: CQ2, 81: CE, NA+27: CONS(0), NA+55: CONS(1)}
            if cfg.EW: sig[NA+83] = CONS(2)
            if f in sig:
                if f == 81: assert z.waited >= 83
                lds_add(a, vr(vC), vr(vOne), sig[f], "c"); used += 3
            if f == 81: st(name="b7")
            if f + 3 in checks:
                a.lg(f"ds_read_b32 {vr(vG)}, {vr(vC)} offset:{checks[f+3][1]}", "g"); used += 1
            if f + 1 in checks:
                a.wait(lg="g"); a(f"v_cmp_gt_u32 vcc, 4, {vr(vG)}"); used += 2
            if f in checks:
                lab = f"L_{checks[f][0]}{sfx}"
                st(name=f"_pre{checks[f][0]}")
                a(f"s_cbranch_vccnz {lab}"); a(f"{lab}_x:"); used += 1
                ool.append((lab, checks[f][1]))
                z.lim = checks[f][2]
                st(name=f"_{checks[f][0]}")
            if ff == cfg.FL:
                assert not z.epiq
                assert ff > 48
                st(name="_prefl0")
                a.wait(vm="all")
                arrive(a, "v6", vr(vC), vr(vOne), 0, "ar"); used += 4
            if ff == cfg.FL + 3:
                a.wait(lg="ar")
                flag_if_last(a, "v6", vr(vOne), "s59"); used += 5
                st(name="fl0")
            n = 0
            while z.rp < z.lim and z.rp <= f + 8 and n < 2 and frag(z.rp):
                z.rp += 1; n += 1; used += 2
            take = -(-len(z.lq) // max(1, 79 - f))
            for q in range(min(take, len(z.lq))): a(z.lq.pop(0)[1])
            while z.epiq and used < cfg.SLOTS: used += put(z.epiq.pop(0)[1])
            if ff > max(cfg.FL + 5, 72):
                assert 8 not in z.pool and 12 not in z.pool and all(z.freg[q] not in (8, 12) for q in range(f, z.rp))
                n = 0
                while late and used < cfg.SLOTS - 1 and n < 2: a(late.pop(0)); used += 1; n += 1
    a.raw(".p2align 3")
    for k in range(cfg.LPRE - cfg.LP2 - 1): ln_pk(k)
    a(f"ds_read_b32 {vr(vG)}, {vr(vC)} offset:{GQ0}")
    ln_pk(cfg.LPRE - cfg.LP2 - 1)
    st(name="_p0")
    a("s_waitcnt lgkmcnt(0)")
    a(f"v_cmp_gt_u32 vcc, 4, {vr(vG)}")
    a("s_cmp_ge_u32 s60, 11")
    a("s_nop 2")
    a("s_cbranch_vccnz L_gq0"); a("L_gq0_x:"); ool.append(("L_gq0", GQ0))
    st(name="b0")
    for k in range(7): frag(k); z.rp += 1
    for k in range(cfg.LPRE - cfg.LP2, cfg.LPRE): ln_pk(k)
    a("s_cbranch_scc1 L_pav")
    import copy
    saved = (list(a.vmq), list(a.lgq), st.n, list(st.names), len(a.L), copy.deepcopy(z.__dict__))
    a.raw(".p2align 3")
    a("L_pav:")
    stream(0, NA + 28, 1)
    a("s_branch L_pav_x")
    endv = (list(a.vmq), list(a.lgq), copy.deepcopy(z.__dict__))
    vcode = a.L[saved[4]:]; a.L = a.L[:saved[4]]
    a.vmq, a.lgq, st.n, st.names = saved[0], saved[1], saved[2], saved[3]
    z.__dict__.update(saved[5])
    stream(0, NA + 28, 0)
    assert endv == (a.vmq, a.lgq, z.__dict__)
    a("L_pav_x:")
    stream(NA + 28, NM, 0)
    assert not late
    lds_add(a, vr(vC), vr(vOne), HD-CNT)
    for e in z.epiq: put(e[1])
    a(f"v_add_u32 {vr(vD2)}, {8*896-1024}, {vr(vD)}")
    a("v_mov_b32 v1, 0")
    a("s_nop 5")
    for k in sorted(epi_at):
        for e in epi_at[k]: put(e[1])
    st(name="hg1")
    assert cfg.HST == 0
    def pace(n):
        if len(a.vmq) > n:
            a(f"s_waitcnt vmcnt({n})"); a.vmq = a.vmq[len(a.vmq)-n:]
    def hstore(tl): a.vm(f"buffer_store_dwordx4 {vr(HP+4*tl,4)}, {vr(vL)}, s[24:27], {'s65' if tl < 4 else 's66'} offen offset:{1024*(tl%4)} {SC1}", "st")
    def hflag():
        arrive(a, "v1", vr(vC), vr(vOne), 1)
        a.wait(lg="all")
        flag_if_last(a, "v1", vr(vOne), "s59")
    if cfg.HST != 1: lds_wait(a, "L_ha", vr(vC), "v5", 4, sleep=2, off=HA-CNT)
    st(name="_ha")
    keep = list(a.vmq)
    a("s_cmp_lt_u32 s50, 7")
    a("s_cbranch_scc1 L_htile")
    lds_add(a, vr(vC), vr(vOne), HX)
    for tl in range(7 if cfg.HST == 0 else 0):
        pace(1); hstore(tl)
    a.wait(vm="all"); hflag()
    a("s_branch L_h_end")
    a("L_htile:")
    a.vmq = keep
    a(f"s_setprio {cfg.PH2}")
    for i in range(2): a.vm(f"buffer_load_dwordx4 {vr(HR+4*i,4)}, v6, s[8:11], 0 offen offset:{32*i}", "x")
    lds_wait(a, "L_hdh", vr(vC), "v5", 4, off=HD-CNT)
    def slot(i): return (CB1 + 2048*i) if i < 6 else RB + 2048*((i - 6) % 6 if i < 22 else i - 22)
    def wdma(i, half):
        if half == 0:
            a(f"s_add_u32 m0, s77, {slot(i)}")
            a(f"s_mul_i32 s4, s{SK[i//4]}, 14")
            a("s_add_u32 s4, s4, s0")
            if i % 4: a(f"s_add_u32 s4, s4, {(i%4)*16*896}")
            a.vm(f"buffer_load_dwordx4 {vr(vD)}, s[28:31], s4 offen lds", ("w", i))
        else:
            a.vm(f"buffer_load_dwordx4 {vr(vD2)}, s[28:31], s4 offen offset:1024 lds", ("w", i))
    def wodma(k):
        a(f"s_add_u32 m0, s7, {WOS+k*1024}")
        a(f"s_add_u32 s5, s6, {k*8*896}")
        a.vm(f"buffer_load_dwordx4 {vr(vD)}, s[12:15], s5 offen lds", "wo")
    wlate = {}
    def wreg(i): return wlate[i] if i >= 22 else WREG + 8*(i-6) if i >= 6 else W + 8*(i & 1)
    def reads(i):
        for ct in range(2):
            for r_ in range(2):
                a.lg(f"ds_read_b64_tr_b16 {vr(wreg(i)+4*ct+2*r_,2)}, {vr(vT0+ct)} offset:{slot(i)+r_*1024}", ("r", i))
    seq = list(range(6, 22)) + ([5] if cfg.EW else list(range(6))) + [("wo", k) for k in range(0, cfg.WOP, 2)]
    woq = list(range(cfg.WOP, 14))
    rd = 6; nst = 7 if cfg.HST else 0; flagged = False
    for n, it in enumerate(seq):
        V1 = cfg.V1 if n < cfg.VN else cfg.V1B
        for q in range(cfg.HSN):
            if nst < 7 and n % cfg.HSI == 0:
                pace(V1); hstore(nst); nst += 1
        if isinstance(it, tuple):
            for k in (it[1], it[1]+1):
                pace(V1); wodma(k)
        else:
            if 12 <= it < 22:
                while rd <= it - 6:
                    a.wait(vm=("w", rd)); reads(rd); rd += 1
                a.wait(lg=("r", it-6))
            for half in range(2):
                pace(V1); wdma(it, half)
        while rd < 22 and rd in seq[:n+1] and a._cnt(a.vmq, ("w", rd)) is None:
            if len(a.lgq) >= 12: a.wait(lg="all")
            reads(rd); rd += 1
        if nst == 7 and not flagged and a._cnt(a.vmq, "st") is None:
            hflag(); flagged = True
            st(name="hfl1")
    assert flagged
    st(name="hpre")
    poll(a, "L_p2", "v5", vr(vP), "s[24:27]", "s47", 1, sleep=8)
    st(name="hpoll2")
    while rd < 22:
        if len(a.lgq) >= 12: a.wait(lg="all")
        reads(rd); rd += 1
    for b in (0, 4):
        a(f"v_permlane32_swap_b32 v{HR+b}, v{HR+b+2}")
        a(f"v_permlane32_swap_b32 v{HR+b+1}, v{HR+b+3}")
    a("s_mov_b32 s51, 0xffff0000")
    for i in range(8):
        a(f"v_lshlrev_b32 v{ACC+2*i}, 16, v{HR+i}")
        a(f"v_and_b32 v{ACC+2*i+1}, s51, v{HR+i}")
    srd(a, 8, 18, 2048*448*2)
    a(f"v_and_b32 {vr(vP)}, 7, v0")
    a(f"v_lshlrev_b32 {vr(vP)}, 7, {vr(vP)}")
    a.wait(lg="all")
    hpool = [HR + 8*k for k in range(4)]
    hreg = {}
    opq = []
    nh = [0]
    def hload(i, tt):
        if tt == 0: hreg[i] = hpool.pop(0)
        a.vm(f"buffer_load_dwordx4 {vr(hreg[i]+4*tt,4)}, {vr(15 if tt == 0 else vL1)}, s[24:27], s{SK[i//4]} offen offset:{1024*(i%4)} {SC1}", ("h", i))
    ringq = [(i, half) for i in range(22, 28) for half in range(2)]
    def next_op(v):
        k = nh[0]
        if ringq and ringq[0][1] == 1: pace(v); wdma(*ringq.pop(0))
        elif k < 56 and (k % 2 or hpool): pace(v); hload(k // 2, k % 2); nh[0] += 1
        elif ringq: pace(v); wdma(*ringq.pop(0))
        elif woq: pace(v); wodma(woq.pop(0))
        else: return False
        return True
    for k in range(8): next_op(cfg.V2)
    reads(0)
    assert 15 <= cfg.N1 <= cfg.EP <= 19
    PA = [None, 12, 2, 11]
    def dmf(i, m):
        tt, ct = m // 2, m % 2
        acc = vr(ACC+16*m, 16)
        a(f"v_mfma_f32_32x32x16_bf16 {acc}, {vr(wreg(i)+4*ct,4)}, {vr(hreg[i]+4*tt,4)}, {'0' if (i == 0 and m) else acc}")
    nr = 22
    for i in range(22):
        if i == cfg.N1:
            while next_op(cfg.V3): pass
            assert nh[0] == 56 and not ringq and not woq
            a(f"v_add_u32 v1, s77, {vr(vL)}")
            for j in range(1, 4):
                a(f"s_xor_b32 s51, s44, {j}")
                a(f"s_mul_i32 s51, s51, {RNG}")
                a(f"v_add_u32 v{PA[j]}, s51, {vr(vL)}")
            a("s_lshl_b32 s51, s41, 2")
            a(f"v_add_u32 v15, s51, {vr(vC)}")
            a("s_mov_b32 s12, s22"); a("s_mov_b32 s13, s23")
            hpool += [W, W + 8]
            st(name="hN1")
            lds_wait(a, "L_ca", vr(vC), "v5", 1, sleep=1, off=CW)
        if i == cfg.EP: a.vm(f"buffer_load_dword v5, {vr(vP)}, s[24:27], s68 offen {SC1}", "p3")
        if i + 1 < 6:
            a.wait(vm=("w", i+1)); reads(i+1)
        assert nh[0] >= 2*i + 2
        a.wait(vm=("h", i), lg=("r", i))
        if i == 5: lds_add(a, vr(vC), vr(vOne), HX, "c")
        for m in range(4):
            dmf(i, m)
            if m == 0 and i >= 1:
                hpool.append(hreg[i-1])
                if 6 <= i-1: hpool.append(wreg(i-1))
            if i < cfg.N1:
                next_op(cfg.V2)
                if cfg.PAD: a(f"s_nop {cfg.PAD-1}")
            if i >= 19 and m in (0, 2):
                wlate[nr] = hpool.pop(0)
                a.wait(vm=("w", nr));
                if len(a.lgq) > 8: a.wait(lg=("r", nr-2))
                reads(nr); nr += 1
            if i == 21 and m == 1:
                a.wait(vm="all")
                a("v_cmp_gt_u32 vcc, 1, v5")
            if i == 21 and m == 3:
                a("s_cmp_eq_u64 vcc, 0")
                a(f"s_cselect_b32 s14, {WS_BYTES}, 0")
    assert nr == 28
    oreg = {}
    def oload(k, srd_):
        if k == 0: a("s_mov_b32 s4, s69")
        elif k % 4 == 0: a("s_add_u32 s4, s4, 4096")
        if k not in oreg:
            b = hpool.pop(0); oreg[k] = b; oreg[k+1] = b + 4
        a.vm(f"buffer_load_dwordx4 {vr(oreg[k],4)}, {vr(vL)}, {srd_}, s4 offen offset:{1024*(k%4)} {SC1}", ("o", k))
    a.wait(lg="all")
    no = 0
    for q, (i, m) in enumerate([(i, m) for i in range(22, 28) for m in (2, 3)]):
        dmf(i, m)
        if q == 0: hpool += [hreg[21], wreg(21)]
        oload(no, "s[12:15]"); no += 1
    for q, (i, m) in enumerate([(i, m) for i in range(22, 28) for m in (0, 1)]):
        dmf(i, m)
        if m == 0 and i > 22: hpool += [hreg[i-1], wreg(i-1)]
        if q < 2:
            for z in range(2): oload(no, "s[12:15]"); no += 1
        if q == 2: a("s_nop 3")
        if 2 <= q < 10: a(f"ds_write_b128 v1, {vr(ACC+32+4*(q-2),4)} offset:{RB+4096+(q-2)*1024}")
        if q == 10: lds_add(a, vr(vC), vr(vOne), R1)
    st(name="hdown")
    a("v_and_b32 v8, 0xfffffdff, v13"); a("v_and_b32 v9, 0xfffffdff, v14")
    WFB = [hpool.pop(0) for k in range(5)]
    def wf(k): return WFB[(k % 10)//2] + 4*(k % 2)
    morder = [(stp, 1) for stp in range(cfg.LAG)]
    for stp in range(16):
        if stp + cfg.LAG < 16: morder.append((stp + cfg.LAG, 1))
        morder.append((stp, 0))
    def wrd(k):
        stp, ct = morder[k]
        row = 28*(stp//2) + 16*(stp % 2)
        for r_ in range(2):
            ad = (8 if (stp == 15 and r_) else 13) + ct
            a.lg(f"ds_read_b64_tr_b16 {vr(wf(k)+2*r_,2)}, v{ad} offset:{(row+8*r_)*128}", ("w", k))
    lds_wait(a, "L_r1", vr(vC), "v5", 4, off=R1)
    for k in range(3): wrd(k)
    for j in (2, 3):
        for q in range(4): a.lg(f"ds_read_b128 {vr(ACC+16*j+4*q,4)}, v{PA[j]} offset:{RB+(j-1)*4096+q*1024}", ("p", j))
    st(name="hred")
    a("s_cmp_lg_u32 s14, 0")
    a("s_cbranch_scc1 L_early")
    poll(a, "L_p3", "v5", vr(vP), "s[24:27]", "s68", 1, sleep=cfg.PS3)
    for k in range(16): oload(k, "s[24:27]")
    a("L_early:")
    st(name="hpoll3")
    last1 = max(k for k in range(32) if morder[k][1] == 1)
    adds = [f"v_add_f32 v{ACC+32+r}, v{ACC+32+r}, v{ACC+48+r}" for r in range(16)] + [f"v_add_f32 v{ACC+r}, v{ACC+r}, v{ACC+32+r}" for r in range(16)]
    wp = 3
    for k in range(32):
        stp, ct = morder[k]
        if ct == 0: assert not adds
        a.wait(vm=("o", stp), lg=(("w", k) if k < 4 else ("w", min(31, k+1)) if k % 2 == 0 else None))
        acc = vr(ACC+16*ct, 16)
        a(f"v_mfma_f32_32x32x16_bf16 {acc}, {vr(wf(k),4)}, {vr(oreg[stp],4)}, {acc}")
        if k == 1: a.wait(lg=("p", 3))
        for z in range(2 if k else 0):
            if wp < 32 and wp <= k + 6: wrd(wp); wp += 1
        if 1 <= k < cfg.LAG:
            for z in range(-(-len(adds) // (cfg.LAG - k))): a(adds.pop(0))
        if k == last1 + 2:
            a("s_nop 7")
            for q in range(4): a.lg(f"ds_write_b128 v1, {vr(ACC+16+4*q,4)} offset:{RB+q*1024}", "e")
            lds_add(a, "v15", vr(vOne), RX, "e")
    st(name="homf")
    PT = ACC + 32; OF = ACC + 48
    lds_wait(a, "L_rx", "v15", "v5", 2, off=RX)
    for q in range(4): a.lg(f"ds_read_b128 {vr(PT+4*q,4)}, v{PA[1]} offset:{RB+q*1024}", ("e", q))
    for hq in range(2):
        a.wait(lg=("e", 2*hq+1))
        for r in range(8*hq, 8*hq+8): a(f"v_add_f32 v{ACC+r}, v{ACC+r}, v{PT+r}")
        for r in range(4*hq, 4*hq+4): a(f"v_cvt_pk_bf16_f32 v{OF+r}, v{ACC+2*r}, v{ACC+2*r+1}")
        a("s_nop 1")
        b = 4*hq
        a(f"v_permlane32_swap_b32 v{OF+b}, v{OF+b+2}")
        a(f"v_permlane32_swap_b32 v{OF+b+1}, v{OF+b+3}")
        a(f"buffer_store_dwordx4 {vr(OF+b,4)}, v6, s[8:11], 0 offen offset:{32*hq}")
    a("L_h_end:")
    st.flush(63, 8)
    a("s_endpgm")
    a.L += vcode
    for lab, off in ool:
        lds_wait(a, lab, vr(vC), vr(vG), 4, off=off)
        a(f"s_branch {lab}_x")
    a("L_mix:")
    b = AQ + 32; m = b + 8
    for s_ in (f"v_mov_b32 v{m}, 0x3f80", f"v_cndmask_b32 v{b+6}, v{b+6}, v{m}, s[42:43]", "s_lshl_b32 s51, s44, 11", f"s_add_u32 s51, s51, {VS0}",
               f"v_lshrrev_b32 v{m+5}, 5, v0", f"v_and_b32 v{m}, 31, v0", f"v_lshlrev_b32 v{m}, 6, v{m}", f"v_lshl_add_u32 v{m}, v{m+5}, 3, v{m}",
               f"v_bfe_u32 v{m+1}, v0, 1, 2", f"v_lshl_add_u32 v{m}, v{m+1}, 4, v{m}", f"v_add_u32 v{m}, s51, v{m}",
               f"v_xor_b32 v{m+1}, 16, v{m}", f"v_xor_b32 v{m+2}, 32, v{m}", f"v_xor_b32 v{m+3}, 48, v{m}",
               f"v_bfe_u32 v{m+4}, v0, 2, 2", f"v_lshl_add_u32 v{m+4}, v{m+5}, 2, v{m+4}", f"v_lshrrev_b32 v{m+5}, 1, v{m+4}", f"v_lshlrev_b32 v{m+5}, 4, v{m+5}",
               f"v_and_b32 v{m+6}, 3, v0", f"v_lshlrev_b32 v{m+6}, 3, v{m+6}", f"v_bfe_u32 v{m+7}, v0, 4, 1", f"v_lshl_add_u32 v{m+6}, v{m+7}, 5, v{m+6}",
               f"v_xor_b32 v{m+5}, v{m+5}, v{m+6}", f"v_lshlrev_b32 v{m+4}, 6, v{m+4}", f"v_add3_u32 v{m+4}, v{m+4}, v{m+5}, s51"): a(s_)
    a("s_mov_b64 s[56:57], vcc")
    lds_wait(a, "L_mixw", vr(vC), f"v{m+5}", 4, off=CE)
    a("s_mov_b64 vcc, s[56:57]")
    for i in range(4): a(f"ds_write_b64 v{m+i}, {vr(b+2*i,2)}")
    for i in range(4): a(f"ds_read_b64_tr_b16 {vr(b+2*i,2)}, v{m+4} offset:{512*i}")
    a("s_waitcnt lgkmcnt(0)")
    a("s_branch L_mix_x")

def build():
    a = Asm()
    st = Stamps(a, 0, 22)
    common(a, st)
    n0 = st.n
    gen_h(a, st)
    hn = st.names[1:]
    st.n = n0; st.names = st.names[:n0]
    gen_c(a, st)
    if asmlib.STAMP: a.raw(f"; STAMPS C {st.names[1:]}\n; STAMPS H {hn}")
    s = f"; @launch grid=(256,1,1) block=(512,1,1) lds={LDS}\n"
    s += '.amdgcn_target "amdgcn-amd-amdhsa--gfx950"\n.text\n' + kernel_head(NAME) + a.text()
    s += '.section .rodata,"a"\n' + kernel_desc(NAME, 256, 256, 102)
    if cfg.ALIGN:
        import align
        s, f_, m_ = align.align(s, nop=cfg.ALIGN if cfg.ALIGN > 1 else False)
    return s
def set_args(args):
    for x in args:
        if x.startswith("sel="): asmlib.STAMP_SEL = x[4:].split(",")
        elif "=" in x:
            k, v = x.split("="); setattr(cfg, k, eval(v))
if __name__ == "__main__":
    asmlib.STAMP = "--stamp" in sys.argv
    asmlib.STAMP_REAL = "--real" in sys.argv
    set_args(sys.argv[2:])
    open(sys.argv[1], "w").write(build())
```

```python
import sys, math, struct
import asmlib
from asmlib import *
def f2u(x): return struct.unpack("<I", struct.pack("<f", x))[0]
NAME = "parallel_sum__softmax_full_mha__glu_gated_reglu__prompt_kernel"
WS_KV, WS_A, WS_F = 2<<20, 6<<20, 16<<20
WS_BYTES = WS_F + 3*32768
QSCALE = math.log2(math.e) / math.sqrt(28.0)
LDS = 163840
XS = 49152; AR = 28672
OU = 14336 + 128
FA = {"A": 14336, "B": 21504, "C": 0, "E": 7168}
FSLOT = ["A", "B", "D", "C", "E", "A", "B"]
STO = 24576
CNT = XS + 2*AR - 128
GATE = lambda g: 4*g
CONS = lambda g: 32 + 4*g
HD = CNT + 48; HA = CNT + 52
GQ1 = 56; GQ2 = 60; GQ0 = 28; CQ2 = 88; CE = 92; GQ3 = 104; GQ4 = 108; CL = 112; AF = 116; HX = 100
CA = 64; CW = 68; R1 = 72; RX = 80
VS0 = 32768; VS2 = 25600
WOS = XS + 2*AR; NS = 6; RNG = NS*2048
CB1 = 0; RB = 49152
WS_Q = 0
class P: pass
cfg = P()
cfg.N1 = 16
cfg.N2 = 4
cfg.SPIN = 1 << 16
cfg.ROT = 0
cfg.V1 = 3; cfg.V2 = 4; cfg.V3 = 12
cfg.XA = 4; cfg.BX = 2
cfg.Q0 = 2; cfg.Q1 = 0
cfg.LPRE = 8
cfg.HPRE = 4
cfg.HSI = 1; cfg.HSN = 1; cfg.PE = 2; cfg.WDP = [0, 0, 0]; cfg.F3 = 1
cfg.SLOTS = 6
cfg.SPF = 0; cfg.SPQ = 0; cfg.SPS = 0
cfg.LP2 = 2; cfg.T6 = 0; cfg.HST = 0; cfg.VN = 9; cfg.V1B = 5; cfg.NOM = 0; cfg.ITS = 0; cfg.CQF = 3; cfg.LN0 = 0; cfg.PF = 0; cfg.ZM = 0; cfg.MAP = 1
cfg.OT = 1; cfg.OFL = 'sc1'; cfg.EW = 0; cfg.GL = 30; cfg.F4E = 0; cfg.PS1 = 4; cfg.FL = 60; cfg.SPW = 0; cfg.P1F = 1; cfg.LAG = 8; cfg.EP = 18; cfg.PS3 = 1; cfg.WOP = 0
cfg.W2 = 1
cfg.K0 = 24; cfg.LNG = 3
cfg.ALIGN = 5
cfg.PC = 0; cfg.PH2 = 1; cfg.PAD = 8
cfg.SIG = 1
SC1 = "sc1"

def poll(a, lab, vdst, voff, srd_, soff, want_ge, cnt="s62", sleep=2):
    a(f"s_mov_b32 {cnt}, 0")
    a(f"{lab}:")
    a(f"buffer_load_dword {vdst}, {voff}, {srd_}, {soff} offen sc1")
    a(f"s_add_u32 {cnt}, {cnt}, 1")
    a(f"s_waitcnt vmcnt(0)")
    a(f"v_cmp_le_u32 vcc, {want_ge}, {vdst}")
    a(f"s_cmp_gt_u32 {cnt}, {cfg.SPIN}")
    a(f"s_cbranch_scc1 {lab}_x")
    a(f"s_nop 1")
    a(f"s_cmp_eq_u64 vcc, -1")
    a(f"s_cbranch_scc1 {lab}_x")
    a(f"s_sleep {sleep}")
    a(f"s_branch {lab}")
    a(f"{lab}_x:")
    a.vmq = []
def lds_wait(a, lab, vaddr, vdst, n, sleep=0, off=0):
    a(f"{lab}:")
    if sleep: a(f"s_sleep {sleep}")
    a(f"ds_read_b32 {vdst}, {vaddr} offset:{off}")
    a("s_waitcnt lgkmcnt(0)")
    a(f"v_cmp_gt_u32 vcc, {n}, {vdst}")
    a("s_nop 3")
    a(f"s_cbranch_vccnz {lab}")
    a.lgq = []

def common(a, st):
    a("s_cmp_ge_u32 s2, 256")
    a("s_cbranch_scc1 L_end")
    st(wait=False, real=True); st(wait=False)
    a("s_load_dwordx8 s[4:11], s[0:1], 0")
    a("s_load_dwordx8 s[12:19], s[0:1], 32")
    a("s_load_dwordx4 s[20:23], s[0:1], 64")
    a("s_getpc_b64 s[56:57]")
    a("L_pc:")
    a("v_lshrrev_b32 v1, 5, v0")
    a("s_lshr_b32 s55, s2, 3")
    a("s_lshl_b32 s55, s55, 4")
    a("v_add_u32 v2, s55, v1")
    a("v_lshlrev_b32 v2, 7, v2")
    a("v_min_u32 v2, L_code_end-L_pc-4, v2")
    a("global_load_dword v255, v2, s[56:57]")
    a("v_lshrrev_b32 v1, 6, v0")
    a("v_and_b32 v0, 63, v0")
    a("v_readfirstlane_b32 s63, v1")
    a("s_and_b32 s48, s2, 7")
    a("s_lshr_b32 s47, s2, 3")
    a("s_lshr_b32 s50, s47, 2")
    a("s_and_b32 s51, s47, 3")
    a("s_and_b32 s44, s63, 3")
    a("s_cmp_lt_u32 s63, 4")
    a("s_cbranch_scc1 L_compute")
def mapping(a):
    if cfg.MAP == 0:
        a("s_and_b32 s46, s48, 3")
        a("s_lshl_b32 s46, s46, 2")
        a("s_add_u32 s46, s46, s51")
        a("s_lshr_b32 s45, s48, 2")
        a("s_lshl_b32 s45, s45, 3")
        a("s_add_u32 s45, s45, s50")
    else:
        a("s_and_b32 s46, s48, 1")
        a("s_lshl_b32 s46, s46, 3")
        a("s_add_u32 s46, s46, s50")
        a("s_lshr_b32 s45, s48, 1")
        a("s_lshl_b32 s45, s45, 2")
        a("s_add_u32 s45, s45, s51")
    a("s_lshl_b32 s49, s48, 2")
    a("s_add_u32 s49, s49, s51")
    a("s_lshl_b32 s3, s51, 1")
    a("s_add_u32 s64, s3, s50")
    a("s_cmp_ge_u32 s64, 7")
    a("s_cselect_b32 s62, 7, 0")
    a("s_sub_u32 s64, s64, s62")
    if cfg.ROT == 2: a("s_mov_b32 s3, s64")
    if cfg.ROT == 0: a("s_mov_b32 s3, 0")
    a("s_lshl_b32 s52, s45, 2")
    a("s_add_u32 s52, s52, s44")
def emit(a, op):
    if op[1] == "vm": a.vm(op[0], op[2])
    elif op[1] == "lg": a.lg(op[0], op[2])
    else: a(op[0])
def wait_lg_tags(a, tags):
    n = min([c for c in (a._cnt(a.lgq, tg) for tg in tags) if c is not None], default=None)
    if n is not None:
        assert n <= 15
        a(f"s_waitcnt lgkmcnt({n})")
        a.lgq = a.lgq[len(a.lgq)-n:] if n else []
V = lambda s: (s, "v")

def lds_add(a, vaddr, vone, off, tag=None):
    a("s_mov_b64 exec, 1")
    a.lg(f"ds_add_u32 {vaddr}, {vone} offset:{off}", tag)
    a("s_mov_b64 exec, -1")
def arrive(a, vdst, vaddr, vone, p, tag=None):
    a("s_mov_b64 exec, 1")
    a.lg(f"ds_add_rtn_u32 {vdst}, {vaddr}, {vone} offset:{AF+4*p}", tag)
    a("s_mov_b64 exec, -1")
def flag_if_last(a, v, vone, soff):
    a(f"v_xor_b32 {v}, 3, {v}")
    a(f"v_lshlrev_b32 {v}, 25, {v}")
    a.vm(f"buffer_store_dword {vone}, {v}, s[24:27], {soff} offen {SC1}", "fl")
def ffn_setup(a, vDF, t):
    a("s_cmp_ge_u32 s44, 2")
    a("s_cselect_b32 s32, s14, s12")
    a("s_cselect_b32 s33, s15, s13")
    a(f"s_mov_b32 s34, {448*1792*2}")
    a("s_mov_b32 s35, 0x00020000")
    a("s_cselect_b32 s51, 128, 0")
    a(f"s_mul_i32 s53, s44, {AR}")
    a("s_add_u32 s53, s53, s51")
    a(f"s_add_u32 s53, s53, {XS-128}")
    a("s_mul_i32 s42, s44, 7168")
    a("s_add_u32 s42, s42, s51")
    a("s_and_b32 s51, s44, 1")
    a(f"s_mul_i32 s54, s51, {32*3584}")
    a("s_mul_i32 s51, s46, 224")
    for j in range(7):
        a(f"v_add_u32 v{t}, {64*j}, v0")
        a(f"v_mul_u32_u24 v{t+1}, 4682, v{t}")
        a(f"v_lshrrev_b32 v{t+1}, 16, v{t+1}")
        a(f"v_mul_u32_u24 v{t+2}, {3584-14*16}, v{t+1}")
        a(f"v_lshl_add_u32 v{t+2}, v{t}, 4, v{t+2}")
        if j % 4: a(f"v_subrev_u32 v{t+2}, {1024*(j%4)}, v{t+2}")
        a(f"v_add_u32 {vr(vDF+j)}, s51, v{t+2}")
def gap(a, n):
    while n > 0:
        a(f"s_nop {min(n, 16) - 1}"); n -= 16
def ffn_dma(a, g, vDF, lo=0, hi=7, sp=None):
    sp = cfg.SPF if sp is None else sp
    if lo:
        base, off = ("s42", 0) if FSLOT[g] == "D" else ("s53", FA[FSLOT[g]])
        assert lo == 4
        a(f"s_add_u32 m0, {base}, {off+4096}")
        a(f"s_add_u32 s43, s3, {g}")
        a("s_cmp_ge_u32 s43, 7")
        a("s_cselect_b32 s62, 7, 0")
        a("s_sub_u32 s43, s43, s62")
        a(f"s_mul_i32 s43, s43, {64*3584}")
        a("s_add_u32 s43, s43, s54")
        for j in range(4, 7):
            a.vm(f"buffer_load_dwordx4 {vr(vDF+j)}, s[32:35], s43 offen offset:{1024*(j%4)} lds", ("F", g))
            if j < 6: gap(a, sp)
        return
    base, off = ("s42", 0) if FSLOT[g] == "D" else ("s53", FA[FSLOT[g]])
    a(f"s_add_u32 m0, {base}, {off}")
    a(f"s_add_u32 s43, s3, {g}")
    a("s_cmp_ge_u32 s43, 7")
    a("s_cselect_b32 s62, 7, 0")
    a("s_sub_u32 s43, s43, s62")
    a(f"s_mul_i32 s43, s43, {64*3584}")
    a("s_add_u32 s43, s43, s54")
    for j in range(hi):
        if j == 4:
            a(f"s_add_u32 m0, {base}, {off+4096}"); a("s_nop 0")
        a.vm(f"buffer_load_dwordx4 {vr(vDF+j)}, s[32:35], s43 offen offset:{1024*(j%4)} lds", ("F", g))
        if j < hi - 1: gap(a, sp)
def xread_addr(a, vX, t):
    a(f"s_mul_i32 s56, s44, {AR}")
    a(f"s_add_u32 s56, s56, {XS}")
    a(f"v_and_b32 v{t}, 31, v0")
    a(f"v_lshlrev_b32 v{t+1}, 7, v{t}")
    a(f"v_add_u32 v{t+1}, s56, v{t+1}")
    a(f"v_bfe_u32 v{t}, v0, 1, 3")
    a(f"v_lshrrev_b32 v{t+2}, 5, v0")
    a(f"v_xor_b32 v{t}, v{t}, v{t+2}")
    a(f"v_lshl_add_u32 {vr(vX)}, v{t}, 4, v{t+1}")
    for sp in range(1, 4): a(f"v_xor_b32 {vr(vX+sp)}, {32*sp}, {vr(vX)}")
def ln_ops(X0, k, LT, vR, nt=2):
    ops = []
    for b in range(0, 4, nt):
        for i in range(nt):
            r = X0 + 4*k + b + i
            ops += [f"v_lshlrev_b32 v{LT+2*i}, 16, v{r}", f"v_and_b32 v{LT+2*i+1}, s61, v{r}"]
        ops += [f"v_fma_f32 v{LT+i}, v{LT+i}, v{vR}, v{vR+1}" for i in range(2*nt)]
        ops += [f"v_cvt_pk_bf16_f32 v{X0+4*k+b+i}, v{LT+2*i}, v{LT+2*i+1}" for i in range(nt)]
    return ops
def sigma(a, dst, src):
    tab = [0, 1, 2, 3, 4, 5, 7, 6, 9, 8, 15, 11, 12, 13, 14, 10]
    assert all(tab[tab[k]] == k for k in range(16))
    lo = sum(tab[k] << (4*k) for k in range(8)); hi = sum(tab[8+k] << (4*k) for k in range(8))
    a(f"s_cmp_ge_u32 {src}, 8")
    a(f"s_cselect_b32 s62, {lo ^ hi:#x}, 0")
    a(f"s_xor_b32 s62, s62, {lo:#x}")
    a(f"s_lshl_b32 {dst}, {src}, 2")
    a(f"s_lshr_b32 {dst}, s62, {dst}")
    a(f"s_and_b32 {dst}, {dst}, 15")

def gen_c(a, st):
    a.vmq = []; a.lgq = []
    vDQ = 216; t = 240; SINK = 221; vL = 15; vDF = 208
    O = 16; S = 80; PP = 192; KV = 128; T = 200
    QL = [248, 224, 232, 240]
    a("L_compute:")
    mapping(a)
    for r in range(4): a(f"v_mov_b32 v{PP+4+r}, 0")
    a(f"v_min_u32 v{t}, 11, v0")
    a(f"v_and_b32 v{t+1}, 3, v{t}")
    a(f"v_lshrrev_b32 v{t}, 2, v{t}")
    a(f"v_lshlrev_b32 v{t}, 15, v{t}")
    a(f"v_lshl_add_u32 v{t}, v{t+1}, 7, v{t}")
    a("s_lshl_b32 s51, s52, 9")
    a(f"s_add_u32 s51, s51, {WS_F}")
    a("s_xor_b32 s59, s46, 7")
    a("s_waitcnt lgkmcnt(0)")
    srd(a, 24, 22, WS_BYTES)
    a("s_cbranch_scc1 L_noclr")
    a(f"buffer_store_dword v{PP+4}, v{t}, s[24:27], s51 offen {SC1}")
    a("L_noclr:")
    srd(a, 28, 6, 448*1344*2)
    sigma(a, "s51", "s46")
    a("s_mul_i32 s51, s51, 168")
    a("s_and_b32 s51, s51, -16")
    for j in range(3):
        a(f"v_add_u32 v{t}, {64*j}, v0")
        a(f"v_mul_u32_u24 v{t+1}, 5462, v{t}")
        a(f"v_lshrrev_b32 v{t+1}, 16, v{t+1}")
        a(f"v_mul_u32_u24 v{t+2}, 12, v{t+1}")
        a(f"v_sub_u32 v{t+2}, v{t}, v{t+2}")
        a(f"v_min_u32 v{t+2}, 10, v{t+2}")
        a(f"v_mul_u32_u24 v{t+1}, 2688, v{t+1}")
        a(f"v_lshl_add_u32 v{t+1}, v{t+2}, 4, v{t+1}")
        if j: a(f"v_subrev_u32 v{t+1}, {1024*j}, v{t+1}")
        a(f"v_add_u32 {vr(vDQ+j)}, s51, v{t+1}")
    a(f"s_mul_i32 s70, s44, {16*2688}")
    a(f"s_mul_i32 s71, s44, {16*192}")
    a(f"s_mul_i32 s72, s3, {64*2688}")
    a(f"s_mul_i32 s73, s44, {AR}")
    a(f"s_add_u32 s73, s73, {XS}")
    def qkv_dma(g):
        a(f"s_add_u32 m0, s71, {g*12288}" if g < 4 else f"s_add_u32 m0, s73, {(g-4)*3072}")
        a("s_add_u32 s51, s72, s70")
        for j in range(3):
            a.vm(f"buffer_load_dwordx4 {vr(vDQ+j)}, s[28:31], s51 offen offset:{1024*j} lds", ("Q", g))
        if g < 6:
            a(f"s_add_u32 s72, s72, {64*2688}"); a(f"s_cmp_ge_u32 s72, {448*2688}"); a("s_cselect_b32 s72, 0, s72")
    ffn_setup(a, vDF, t)
    srd(a, 12, 20, 256)
    srd(a, 36, 16, 1792*448*2)
    a("s_mov_b32 s40, 0"); a("s_mov_b32 s41, -1")
    for s_ in (f"v_lshlrev_b32 {vr(vL)}, 4, v0", "v_lshlrev_b32 v13, 25, v0", "v_mov_b32 v14, 1", f"v_mov_b32 v12, {CNT}",
               "v_and_b32 v222, 15, v0", "v_lshlrev_b32 v222, 4, v222", "s_lshl_b32 s74, s45, 4"): a(s_)
    for r in range(4): a(f"v_mov_b32 v{KV+48+12+r}, 0")
    for r in range(64): a(f"v_mov_b32 v{O+r}, 0")
    def landed(tag, off):
        a.wait(vm=tag); lds_add(a, "v12", "v14", off)
    def free(lab, off): lds_wait(a, lab, "v12", "v2", 4, sleep=1, off=off)
    st(name="setup")
    a("s_barrier")
    a(f"s_setprio {cfg.PF}")
    for g in range(cfg.Q0): qkv_dma(g)
    a("s_barrier")
    st(name="bx2")
    for g in range(cfg.Q0, 4): qkv_dma(g)
    landed(("Q", 1), GQ0)
    qkv_dma(4); qkv_dma(5)
    landed(("Q", 3), GQ1)
    qkv_dma(6)
    landed(("Q", 4), GQ2)
    ffn_dma(a, 0, vDF, 0, 4)
    landed(("Q", 5), GQ3)
    ffn_dma(a, 0, vDF, 4)
    landed(("Q", 6), GQ4)
    st(name="_q6")
    ffn_dma(a, 1, vDF)
    a("s_or_b32 s59, s59, s44")
    a("s_cbranch_scc1 L_nogo")
    free("L_clr", GQ0)
    a(f"buffer_store_dword v14, v13, s[12:15], s74 offen {SC1}")
    a("L_nogo:")
    landed(("F", 0), GATE(0))
    st(name="_g0")
    free("L_cq2", CQ2)
    ffn_dma(a, 2, vDF)
    landed(("F", 1), GATE(1))
    free("L_ce", CE)
    st(name="ce")
    a.vm(f"buffer_load_dword v223, v222, s[12:15], 0 offen {SC1}", "go")
    ffn_dma(a, 3, vDF)
    a.wait(vm="go")
    a("v_cmp_gt_u32 vcc, 1, v223")
    a("s_nop 3")
    a("s_cbranch_vccnz L_go"); a("L_go_x:")
    lds_add(a, "v12", "v14", GATE(2))
    st(name="_g2")
    if cfg.F4E: ffn_dma(a, 4, vDF)
    free("L_cons5", CONS(0))
    st(name="_c5")
    if not cfg.F4E: ffn_dma(a, 4, vDF)
    landed(("F", 3), GATE(3))
    ffn_dma(a, 5, vDF)
    a("s_setprio 0")
    a("s_lshl_b32 s65, s48, 1")
    a("s_and_b32 s51, s47, 1")
    a("s_add_u32 s65, s65, s51")
    a("s_lshr_b32 s66, s47, 1")
    a(f"v_bfe_u32 v{t+2}, v0, 2, 2")
    a(f"v_bfe_u32 v{t+4}, v0, 4, 1")
    for s_ in ("s_lshl_b32 s51, s66, 2", "s_add_u32 s51, s51, s44", f"s_mul_i32 s67, s51, {144*1024}", "s_lshl_b32 s51, s65, 11", "s_add_u32 s67, s67, s51",
               f"s_add_u32 s67, s67, {WS_A+112*1024}",
               "s_lshl_b32 s51, s44, 2",
               "s_lshl_b32 s60, s66, 4", "s_add_u32 s60, s60, s65", "s_lshl_b32 s60, s60, 7", f"s_add_u32 s60, s60, {WS_F+65536}",
               "s_lshl_b32 s51, s65, 18", "s_lshl_b32 s58, s44, 16", "s_add_u32 s51, s51, s58", f"s_add_u32 s51, s51, {WS_KV}",
               "s_add_u32 s4, s22, s51", "s_addc_u32 s5, s23, 0", "s_mov_b32 s6, 0x10000", "s_mov_b32 s7, 0x00020000",
               "s_lshl_b32 s69, s66, 12"): a(s_)
    for k, (add, dst) in enumerate(((0, "s56"), (16, "s57"), (32, "s58"))):
        a(f"s_add_u32 s51, s65, {add}")
        a("s_mul_i32 s51, s51, 43")
        a("s_lshr_b32 s51, s51, 7")
        sigma(a, "s51", "s51")
        a(f"s_lshl_b32 {dst}, s51, 7")
    a("s_lshl_b32 s51, s66, 11")
    a("s_add_u32 s56, s56, s51")
    a("s_lshl_b32 s51, s44, 13")
    a("s_add_u32 s57, s57, s51")
    a("s_add_u32 s58, s58, s51")
    a(f"v_lshlrev_b32 v1, 11, v{t+2}")
    a(f"v_add_u32 v{t+6}, s58, v1")
    a(f"v_add_u32 v1, s57, v1")
    a(f"v_cmp_eq_u32 vcc, 1, v{t+4}")
    a(f"v_mov_b32 v{t+7}, s56")
    a(f"v_and_b32 v{t+3}, 3, v0")
    a(f"v_cndmask_b32 v1, v1, v{t+6}, vcc")
    a(f"v_cndmask_b32 v1, v1, v{t+7}, s[40:41]")
    a(f"s_mov_b32 s68, {WS_F}")
    for j in range(4):
        for s_ in (f"s_add_u32 s51, s44, {j}", "s_and_b32 s51, s51, 3", f"s_mul_i32 s55, s51, 12288", f"s_add_u32 s55, s55, {CB1}", f"v_add_u32 v{T+4+j}, s55, {vr(vL)}",
                   "s_lshl_b32 s55, s65, 4", "s_add_u32 s55, s55, s66", "s_lshl_b32 s55, s55, 2", "s_add_u32 s55, s55, s51", f"s_lshl_b32 s{8+j}, s55, 11"): a(s_)
    a("s_mov_b32 s55, 0")
    if cfg.EW:
        a("s_cmp_lt_u32 s50, 7")
        a("s_cselect_b32 s38, s38, 0")
        for s_ in ("v_lshrrev_b32 v3, 3, v0", "v_bfe_u32 v4, v0, 4, 1", "v_lshlrev_b32 v4, 2, v4", "v_and_b32 v7, 7, v0", "v_xor_b32 v7, v7, v4",
                   "v_mul_u32_u24 v3, 896, v3", "v_lshl_add_u32 v3, v7, 4, v3", f"v_add_u32 v4, {8*896-1024}, v3",
                   f"s_mul_i32 s56, s44, {448*896}", "s_lshl_b32 s57, s50, 7", "s_add_u32 s56, s56, s57", f"s_mul_i32 s57, s64, {64*896}", "s_add_u32 s57, s57, s56",
                   "s_add_u32 s51, s64, 1", "s_cmp_ge_u32 s51, 7", "s_cselect_b32 s51, 0, s51", f"s_mul_i32 s58, s51, {64*896}", "s_add_u32 s58, s58, s56",
                   f"s_mul_i32 s56, s44, {RNG}"): a(s_)
    a(f"s_setprio {cfg.PF}")
    landed(("F", 4), GATE(4))
    free("L_cons6", CONS(1))
    st(name="_c6")
    ffn_dma(a, 6, vDF)
    if cfg.K0 == 24: landed(("F", 5), GATE(5))
    landed(("F", 6), GATE(5 if cfg.K0 == 20 else 6))
    if cfg.EW:
        free("L_consw", CONS(2))
        for i in range(5):
            a(f"s_add_u32 m0, s56, {CB1 + 2048*i}")
            a(f"s_add_u32 s51, s{57 + i//4}, {(i%4)*16*896}")
            a.vm(f"buffer_load_dwordx4 v3, s[36:39], s51 offen lds", "wx")
            a.vm(f"buffer_load_dwordx4 v4, s[36:39], s51 offen offset:1024 lds", "wx")
    st(name="_cf6")
    def kvload(slot, j): return f"buffer_load_dwordx4 {vr(KV+16*slot+4*j,4)}, {vr(vL)}, s[4:7], s69 offen offset:{1024*j} {SC1}"
    kvadv = ["s_add_u32 s69, s69, 4096", "s_and_b32 s69, s69, 0xffff"]
    poll(a, "L_p1", "v2", "v1", "s[24:27]", "s68", 1, sleep=cfg.PS1)
    st(name="poll1")
    for j in (1, 2, 3, 0):
        for ks in range(2): a.vm(f"buffer_load_dwordx4 {vr(QL[j]+4*ks,4)}, {vr(vL)}, s[24:27], s{8+j} offen offset:{1024*ks} {SC1}", "q")
    for sl in range(3):
        for j in range(4): a.vm(kvload(sl, j), ("kv", sl))
        for x in kvadv: a(x)
    a(f"s_setprio {cfg.PC}")
    QO = [1, 2, 3, 0]
    def qk(n, ks):
        kt, qt = (n//4) % 4, n % 4
        s = vr(S+16*(n&1), 16)
        return f"v_mfma_f32_32x32x16_bf16 {s}, {vr(KV+16*kt+4*ks,4)}, {vr(QL[QO[qt]]+4*ks,4)}, {'0' if ks==0 else s}"
    def pv(n, ks):
        kt, qt = (n//4) % 4, n % 4
        o = vr(O+16*QO[qt], 16)
        return f"v_mfma_f32_32x32x16_bf16 {o}, {vr(KV+16*kt+8+4*ks,4)}, {vr(PP+4*ks,4)}, {o}"
    a.wait(vm=("kv", 0))
    lds_add(a, "v12", "v14", HA-CNT)
    st(name="att0")
    a(qk(0, 0)); a(qk(0, 1))
    a("s_nop 7"); a("s_nop 3")
    a.raw(".p2align 3")
    a("L_att:")
    def softmax(n, m, odd):
        sb = S + 16*(n & 1)
        for j in range(4):
            a(f"v_exp_f32{'_e64' if (odd and j == 1) else ''} v{sb+4*m+j}, v{sb+4*m+j}")
        for j in range(2): a(f"v_cvt_pk_bf16_f32 v{PP+2*m+j}, v{sb+4*m+2*j}, v{sb+4*m+2*j+1}")
    for n in range(16):
        kt, qt = n//4, n % 4
        ms = [qk(n+1, 0), qk(n+1, 1), pv(n-1, 1), pv(n, 0)]
        for m in range(4):
            a(ms[m])
            odd = False
            if n == 12 and m == 0:
                a("s_cbranch_scc1 L_last"); a("s_nop 0")
            if m == 0: a(kvload((kt+3) % 4, qt))
            if qt == 2 and m == 2 and kt == 0:
                a("s_add_u32 s55, s55, 1"); odd = True
            if n == 0 and m == 1 and asmlib.STAMP and cfg.ITS:
                a("s_mov_b64 s[96:97], s[94:95]"); a("s_mov_b64 s[94:95], s[92:93]"); a("s_mov_b64 s[92:93], s[90:91]"); a("s_memtime s[90:91]")
            if qt == 2 and m == 3: a("s_waitcnt vmcnt(9)"); odd = True
            if qt == 0 and m == 2: a("s_waitcnt vmcnt(9)"); odd = True
            if qt == 3 and m == 1: a(kvadv[0])
            if qt == 3 and m == 2: a(kvadv[1])
            if qt == 3 and m == 3 and kt == 0:
                a("s_cmp_eq_u32 s55, 4"); a("s_cselect_b32 s6, 0, s6")
            if qt == 3 and m == 3 and kt == 2: a("s_cmp_eq_u32 s55, 4"); odd = True
            softmax(n, m, odd)
    a("s_branch L_att")
    a.raw(".p2align 3")
    a("L_last:")
    def cwr(j, q): a(f"ds_write_b128 v{T+4+j}, {vr(O+16*j+4*q,4)} offset:{(j-1)*4096+q*1024}")
    for n in range(12, 16):
        ms = [qk(n+1, 0), qk(n+1, 1), pv(n-1, 1), pv(n, 0)] if n < 15 else [pv(14, 1), None, None, pv(15, 0)]
        for m in range(4):
            if n == 15 and m == 0: cwr(2, 0); cwr(2, 1)
            if ms[m] and not (n == 12 and m == 0): a(ms[m])
            odd = False
            if n == 12 and m == 0: a(f"ds_read_b32 v{T}, v12 offset:{HX}")
            if n == 12 and m == 2: a("s_waitcnt vmcnt(8) lgkmcnt(0)"); a(f"v_cmp_gt_u32 vcc, 4, v{T}")
            if n == 13 and m == 0:
                a("s_cbranch_vccnz L_hd"); a("L_hd_x:"); odd = True
            if n == 13 and m == 1: a(f"s_mov_b32 s42, {f2u(2.0**-64):#x}")
            if n == 13 and m == 2: a(f"s_mov_b32 s43, {f2u(2.0**64):#x}")
            if n == 14: cwr(1, m)
            if n == 15 and m == 1: cwr(2, 2); cwr(2, 3)
            if n == 15 and m >= 2: cwr(3, 2*m-4); cwr(3, 2*m-3)
            softmax(n, m, odd)
    a("s_setprio 2")
    a("s_waitcnt lgkmcnt(0)")
    a(pv(15, 1))
    st(name="attend")
    lds_add(a, "v12", "v14", CW)
    lds_wait(a, "L_cw", "v12", f"v{T}", 4, off=CW)
    st(name="_Tc")
    for q in (3, 0, 1, 2):
        for j in range(3):
            a.lg(f"ds_read_b128 {vr(O+16+16*j+4*q,4)}, v{T+4} offset:{j*4096+q*1024}", q)
    def add3(q):
        a.wait(lg=q)
        for r in range(4*q, 4*q+4): a(f"v_add_f32 v{O+r}, v{O+r}, v{O+16+r}")
        for r in range(4*q, 4*q+4): a(f"v_add_f32 v{O+32+r}, v{O+32+r}, v{O+48+r}")
        for r in range(4*q, 4*q+4): a(f"v_add_f32 v{O+r}, v{O+r}, v{O+32+r}")
    add3(3)
    a(f"v_mov_b32 v{T}, v{O+12}")
    a(f"v_mov_b32 v{T+1}, v{O+12}")
    add3(0)
    a(f"v_permlane32_swap_b32 v{T}, v{T+1}")
    add3(1)
    a(f"v_cmp_le_f32 vcc, s42, v{T+1}")
    a(f"v_cmp_ge_f32 s[56:57], s43, v{T+1}")
    a(f"v_rcp_f32 v{T}, v{T+1}")
    add3(2)
    a("s_and_b64 vcc, vcc, s[56:57]")
    a("s_cmp_eq_u64 vcc, -1")
    a("s_cbranch_scc0 L_slow")
    a("L_fin:")
    for r in range(8): a(f"v_mul_f32 v{O+r}, v{O+r}, v{T}")
    for r in range(4): a(f"v_cvt_pk_bf16_f32 v{PP+r}, v{O+2*r}, v{O+2*r+1}")
    a.vm(f"buffer_store_dwordx4 {vr(PP,4)}, {vr(vL)}, s[24:27], s67 offen {SC1}", "st")
    for r in range(8, 16): a(f"v_mul_f32 v{O+r}, v{O+r}, v{T}")
    for r in range(4, 8): a(f"v_cvt_pk_bf16_f32 v{PP+r}, v{O+2*r}, v{O+2*r+1}")
    a(f"v_cndmask_b32 v{PP+6}, v{PP+6}, 0, s[40:41]")
    a(f"v_cndmask_b32 v{PP+7}, v{PP+7}, 0, s[40:41]")
    a.vm(f"buffer_store_dwordx4 {vr(PP+4,4)}, {vr(vL)}, s[24:27], s67 offen offset:1024 {SC1}", "st")
    st(name="_prefl2")
    a("v_mov_b32 v13, 0")
    a.wait(vm="all")
    arrive(a, "v13", "v12", "v14", 2)
    a.wait(lg="all")
    flag_if_last(a, "v13", "v14", "s60")
    st(name="fl2")
    if asmlib.STAMP and cfg.ITS:
        assert st.n <= 10
        st.n = 14; st.names += ["it"]*4
    a("L_c_end:")
    st.flush(63, 8)
    a("L_end:")
    a("s_endpgm")
    a("L_go:")
    poll(a, "L_p0", "v223", "v222", "s[12:15]", "0", 1)
    a("s_branch L_go_x")
    lds_wait(a, "L_hd", "v12", f"v{T}", 4, off=HX)
    a("s_branch L_hd_x")
    S1 = S + 16
    a("L_slow:")
    a("s_lshl_b32 s56, s65, 18")
    a(f"s_add_u32 s56, s56, {WS_KV}")
    a("s_mov_b32 s57, s56")
    a("s_mov_b32 s55, 64")
    a(f"v_mov_b32 v{T+2}, 0xff800000")
    a("s_waitcnt vmcnt(0)")
    a("L_slow1:")
    for j in range(2): a(f"buffer_load_dwordx4 {vr(KV+4*j,4)}, {vr(vL)}, s[24:27], s57 offen offset:{1024*j} {SC1}")
    a("s_waitcnt vmcnt(0)")
    a(qk(3, 0)); a(qk(3, 1))
    a("s_nop 7"); a("s_nop 7")
    for r in range(8): a(f"v_max3_f32 v{T+2}, v{S1+2*r}, v{S1+2*r+1}, v{T+2}")
    a("s_add_u32 s57, s57, 4096")
    a("s_sub_u32 s55, s55, 1"); a("s_cmp_lg_u32 s55, 0")
    a("s_cbranch_scc1 L_slow1")
    a(f"v_mov_b32 v{T+3}, v{T+2}")
    a("s_nop 1")
    a(f"v_permlane32_swap_b32 v{T+3}, v{T+2}")
    a("s_nop 1")
    a(f"v_max_f32 v{T+2}, v{T+2}, v{T+3}")
    for r in range(16): a(f"v_mov_b32 v{O+r}, 0")
    a("s_mov_b32 s55, 64")
    a("L_slow2:")
    for j in range(4): a(f"buffer_load_dwordx4 {vr(KV+4*j,4)}, {vr(vL)}, s[24:27], s56 offen offset:{1024*j} {SC1}")
    a("s_waitcnt vmcnt(0)")
    a(qk(3, 0)); a(qk(3, 1))
    a("s_nop 7"); a("s_nop 7")
    for r in range(16): a(f"v_sub_f32 v{S1+r}, v{S1+r}, v{T+2}")
    for r in range(16): a(f"v_exp_f32 v{S1+r}, v{S1+r}")
    a("s_nop 0")
    for r in range(8): a(f"v_cvt_pk_bf16_f32 v{PP+r}, v{S1+2*r}, v{S1+2*r+1}")
    a("s_nop 1")
    a(pv(3, 0)); a(pv(3, 1))
    a("s_add_u32 s56, s56, 4096")
    a("s_sub_u32 s55, s55, 1"); a("s_cmp_lg_u32 s55, 0")
    a("s_cbranch_scc1 L_slow2")
    a("s_nop 7"); a("s_nop 7")
    a(f"v_mov_b32 v{T}, v{O+12}")
    a(f"v_mov_b32 v{T+1}, v{O+12}")
    a("s_nop 1")
    a(f"v_permlane32_swap_b32 v{T}, v{T+1}")
    a("s_nop 1")
    a(f"v_rcp_f32 v{T}, v{T+1}")
    a("s_nop 0")
    a("s_branch L_fin")
    a("L_code_end:")

def gen_h(a, st):
    X0 = 16; ACCF = 128; AQ = 192
    AS = 144; vR = 148; LT = 152; vXD = 160; vX = 164; vTQ = 168; t = 172
    vTF = 1; vC = 3; vOne = 4; vG = 5; vL = 7
    a("s_setprio 1")
    mapping(a)
    a(f"v_lshrrev_b32 v{t+2}, 3, v0")
    a("s_lshl_b32 s51, s52, 5")
    a(f"v_add_u32 v{t+2}, s51, v{t+2}")
    a(f"v_mul_u32_u24 v{t+2}, 896, v{t+2}")
    a(f"v_lshrrev_b32 v{t+3}, 4, v0")
    a(f"v_and_b32 v{t+4}, 7, v0")
    a(f"v_xor_b32 v{t+3}, v{t+3}, v{t+4}")
    a(f"v_lshl_add_u32 {vr(vXD)}, v{t+3}, 4, v{t+2}")
    a(f"v_xor_b32 v{t+3}, 64, {vr(vXD)}")
    a(f"v_add_u32 {vr(vXD+1)}, 6144, v{t+3}")
    a(f"v_add_u32 {vr(vXD+2)}, {2*6144}, {vr(vXD)}")
    a(f"v_add_u32 {vr(vXD+3)}, {3*6144}, v{t+3}")
    a(f"s_mul_i32 s53, s44, {AR}")
    a(f"s_add_u32 s53, s53, {XS}")
    a("s_lshl_b32 s55, s3, 7")
    a(f"s_mov_b32 s30, {2048*448*2}")
    a("s_mov_b32 s31, 0x00020000")
    a("s_mov_b32 m0, s53")
    a("s_waitcnt lgkmcnt(0)")
    a("s_mov_b32 s28, s4"); a("s_mov_b32 s29, s5")
    st(name="_h0")
    def xload(cb):
        for rg in range(4):
            a.vm(f"buffer_load_dwordx4 {vr(vXD+rg)}, s[28:31], s55 offen offset:{rg*1024} lds", ("x", cb))
        if cb < 6:
            a(f"s_add_u32 m0, s53, {(cb+1)*4096}")
            a("s_add_u32 s55, s55, 128"); a("s_cmp_ge_u32 s55, 896"); a("s_cselect_b32 s55, 0, s55")
    for cb in range(cfg.XA - 1): xload(cb)
    srd(a, 24, 22, WS_BYTES)
    xread_addr(a, vX, t)
    for i in range(4): a(f"v_mov_b32 v{AS+i}, 0")
    a(f"v_mov_b32 v{t+10}, 0")
    a(f"v_mov_b32 v{t+8}, 0x3f803f80")
    a("s_mov_b32 s61, 0xffff0000")
    a(f"v_mov_b32 {vr(vOne)}, 1")
    a(f"v_mov_b32 {vr(vC)}, {CNT}")
    a(f"v_lshlrev_b32 {vr(vL)}, 4, v0")
    a(f"v_and_b32 v{t+9}, 31, v0")
    a(f"v_cmp_eq_u32 vcc, 28, v{t+9}")
    a(f"v_lshl_add_u32 v{t+9}, v{t+9}, 2, {vr(vC)}")
    sigma(a, "s60", "s46")
    a(f"v_cndmask_b32 v6, 0, v{t+8}, vcc")
    a(f"v_lshrrev_b32 v{t+5}, 5, v0")
    a(f"v_bfe_u32 v{t+2}, v0, 2, 2")
    a(f"v_lshl_add_u32 v{t+2}, v{t+5}, 3, v{t+2}")
    a(f"v_and_b32 v{t+3}, 3, v0")
    a(f"v_bfe_u32 v{t+4}, v0, 4, 1")
    a(f"v_mul_u32_u24 v{t+5}, 224, v{t+2}")
    a(f"v_lshl_add_u32 v{t+5}, v{t+3}, 3, v{t+5}")
    a(f"v_mul_u32_u24 v{t+6}, {OU}, v{t+4}")
    a(f"v_add_u32 {vr(vTF)}, v{t+5}, v{t+6}")
    a(f"v_mul_u32_u24 v{t+6}, {2*AR+128}, v{t+4}")
    a(f"v_add_u32 v{t+5}, {XS-128}, v{t+5}")
    a(f"v_add_u32 {vr(vTF+1)}, v{t+5}, v{t+6}")
    a(f"v_mul_u32_u24 v{t+5}, 192, v{t+2}")
    a(f"v_lshl_add_u32 v{t+5}, v{t+3}, 3, v{t+5}")
    a(f"v_lshl_add_u32 v{t+5}, v{t+4}, 5, v{t+5}")
    a("s_and_b32 s51, s60, 1")
    a("s_lshl_b32 s51, s51, 3")
    a(f"v_add_u32 {vr(vTQ)}, s51, v{t+5}")
    a(f"v_add_u32 {vr(vTQ+1)}, {XS}, {vr(vTQ)}")
    a(f"v_add_u32 {vr(vTQ+2)}, {XS+2*AR}, {vr(vTQ)}")
    a("s_mul_i32 s54, s60, 3")
    for i in range(3):
        a(f"s_add_u32 s51, s54, {i}")
        a(f"s_lshr_b32 s62, s51, 4")
        a("s_and_b32 s51, s51, 15")
        a("s_lshl_b32 s51, s51, 6")
        a("s_add_u32 s51, s51, s52")
        a("s_lshl_b32 s56, s51, 11")
        a("s_lshl_b32 s57, s51, 12")
        a(f"s_lshl_b32 s58, s62, 11")
        a("s_add_u32 s57, s57, s58")
        a(f"s_add_u32 s57, s57, {WS_KV-2048}")
        a(f"s_cmp_eq_u32 s62, 0")
        a(f"s_cselect_b32 s{32+i}, s56, s57")
        a(f"s_cselect_b32 s{35+i}, {f2u(QSCALE):#x}, 1.0")
    a("s_mov_b32 s42, 0"); a("s_mov_b32 s43, -1")
    a("s_mov_b32 s38, 0x0fffffff"); a("s_mov_b32 s39, 0x0fffffff")
    st(name="_hsetup")
    xload(cfg.XA - 1)
    def dots(cb):
        for r in range(X0+16*cb, X0+16*cb+16):
            a(f"v_dot2c_f32_bf16 v{AS+(r&1)}, v{r}, v{t+8}")
            a(f"v_dot2c_f32_bf16 v{AS+2+(r&1)}, v{r}, v{r}")
    for cb in range(7):
        a.wait(vm=("x", cb))
        st(name=("" if cb == 6 else "_") + f"x{cb}")
        for sp in range(4): a.lg(f"ds_read_b128 {vr(X0+16*cb+4*sp,4)}, {vr(vX+sp)} offset:{cb*4096}", ("x", cb))
        if cb + cfg.XA < 7: xload(cb + cfg.XA)
        if cb == cfg.BX: a("s_barrier")
        if cb == 6:
            a("s_cmp_lg_u32 s44, 1")
            a("s_cbranch_scc1 L_nocnt")
            a(f"ds_write_b32 v{t+9}, v{t+10}")
            a("L_nocnt:")
        if cb:
            a.wait(lg=("x", cb-1)); dots(cb-1)
    a.wait(lg="all")
    a("s_barrier")
    dots(6)
    a(f"s_mov_b32 s51, {f2u(1/448):#x}")
    a(f"s_mov_b32 s55, {f2u(1e-5):#x}")
    a("s_nop 0")
    a(f"v_add_f32 v{AS}, v{AS}, v{AS+1}")
    a(f"v_add_f32 v{AS+2}, v{AS+2}, v{AS+3}")
    a(f"v_mov_b32 v{AS+1}, v{AS}")
    a(f"v_mov_b32 v{AS+3}, v{AS+2}")
    a("s_nop 1")
    a(f"v_permlane32_swap_b32 v{AS+1}, v{AS}")
    a(f"v_permlane32_swap_b32 v{AS+3}, v{AS+2}")
    a("s_nop 1")
    a(f"v_add_f32 v{AS}, v{AS}, v{AS+1}")
    a(f"v_add_f32 v{AS+2}, v{AS+2}, v{AS+3}")
    a(f"v_mul_f32 v{AS}, s51, v{AS}")
    a(f"v_mul_f32 v{AS+2}, s51, v{AS+2}")
    a(f"v_fma_f32 v{AS+2}, -v{AS}, v{AS}, v{AS+2}")
    a(f"v_max_f32 v{AS+2}, 0, v{AS+2}")
    a(f"v_add_f32 v{AS+2}, s55, v{AS+2}")
    a(f"v_rsq_f32 v{vR}, v{AS+2}")
    a("s_nop 0")
    a(f"v_mul_f32 v{vR+1}, -v{AS}, v{vR}")
    st(name="_t0")
    def ln_pk(k):
        for i in range(4):
            r = X0 + 4*k + i
            a(f"v_lshlrev_b32 v{LT+2*i}, 16, v{r}"); a(f"v_and_b32 v{LT+2*i+1}, s61, v{r}")
        for i in range(4): a(f"v_pk_fma_f32 {vr(LT+2*i,2)}, {vr(LT+2*i,2)}, {vr(vR,2)}, {vr(vR,2)} op_sel:[0,0,1] op_sel_hi:[1,0,1]")
        for i in range(4): a(f"v_cvt_pk_bf16_f32 v{X0+4*k+i}, v{LT+2*i}, v{LT+2*i+1}")
    K0 = cfg.K0; KT = 28 - K0; NA = 84
    order = [("q", k, tl) for k in range(28) for tl in range(3)]
    order += [("f", k, tl) for k in range(4) for tl in range(4)] + [("f", k, tl) for tl in (4, 5, 6) for k in range(4)]
    order += [("f", k, tl) for k in range(4, K0) for tl in range(7)] + [("f", k, tl) for tl in range(7) for k in range(K0, 28)]
    NM = len(order); SC = NA + 7*K0
    HP = 52
    ACC = 16; HR = 80; W = 112; WREG = 128
    vD = 12; vD2 = 2; vT0 = 8; vT1 = 9; vP = 10; vL1 = 11; u = 44
    SK = [70, 71, 72, 73, 74, 75, 76]
    late = ["s_and_b32 s40, s44, 1", "s_lshr_b32 s41, s44, 1", f"s_mul_i32 s77, s44, {RNG}",
            f"s_mul_i32 s65, s52, {144*1024}", f"s_mul_i32 s51, s46, {7*1024}", "s_add_u32 s65, s65, s51", f"s_add_u32 s65, s65, {WS_A}", "s_add_u32 s66, s65, 4096",
            "s_lshl_b32 s46, s50, 7", f"s_mul_i32 s0, s44, {448*896}", "s_add_u32 s0, s0, s46",
            f"s_mul_i32 s1, s40, {8*28*128}", f"s_add_u32 s1, s1, {WOS}", "s_sub_u32 s1, s1, s77",
            f"s_mul_i32 s51, s49, {2*144*1024}", f"s_mul_i32 s55, s44, {28*1024}", "s_add_u32 s55, s55, s51", f"s_add_u32 s55, s55, {WS_A}",
            f"s_mul_i32 s21, s41, {144*1024}", "s_add_u32 s20, s55, s21", "s_add_u32 s69, s51, s21", "s_sub_u32 s21, s55, s21", f"s_add_u32 s21, s21, {144*1024}",
            "s_lshl_b32 s51, s40, 14", "s_add_u32 s69, s69, s51", f"s_add_u32 s69, s69, {WS_A+112*1024}",
            "s_lshr_b32 s68, s49, 1", "s_lshl_b32 s68, s68, 11",
            "s_lshl_b32 s51, s44, 9", "s_add_u32 s47, s68, s51", f"s_add_u32 s47, s47, {WS_F+32768}",
            "s_lshl_b32 s51, s40, 10", "s_add_u32 s68, s68, s51", f"s_add_u32 s68, s68, {WS_F+65536}",
            "s_lshl_b32 s45, s49, 1", "s_add_u32 s45, s45, s41", "s_lshl_b32 s45, s45, 5",
            f"s_mul_i32 s7, s44, {14*1024}", f"s_mul_i32 s6, s44, {14*8*896}", "s_add_u32 s6, s6, s46",
            "s_lshl_b32 s51, s40, 6", "s_add_u32 s46, s46, s51", "s_mov_b32 s51, s64", "s_add_u32 s59, s59, 32768"]
    for g in range(7):
        late.append(f"s_lshl_b32 s{SK[g]}, s51, 12")
        if g < 6: late += ["s_add_u32 s51, s51, 1", "s_cmp_ge_u32 s51, 7", "s_cselect_b32 s51, 0, s51"]
    b_ = Asm(); srd(b_, 28, 16, 1792*448*2); srd(b_, 12, 8, 448*448*2); srd(b_, 8, 4, 2048*448*2)
    late += [l.strip() for l in b_.L]
    late += [f"v_lshrrev_b32 v{u}, 3, v0", f"v_bfe_u32 v{u+3}, v0, 4, 1", f"v_lshlrev_b32 v{u+1}, 2, v{u+3}", f"v_and_b32 v{u+2}, 7, v0",
             f"v_xor_b32 v{u+2}, v{u+2}, v{u+1}", f"v_mul_u32_u24 v{u}, 896, v{u}", f"v_lshl_add_u32 {vr(vD)}, v{u+2}, 4, v{u}",
             f"v_bfe_u32 v{u}, v0, 2, 2", f"v_lshrrev_b32 v{u+4}, 5, v0", f"v_lshl_add_u32 v{u+1}, v{u+4}, 2, v{u}", f"v_lshlrev_b32 v{u+1}, 7, v{u+1}",
             f"v_and_b32 v{u+2}, 3, v0", f"v_lshl_add_u32 v{u+1}, v{u+2}, 3, v{u+1}", f"v_lshl_add_u32 v{u+1}, v{u+3}, 5, v{u+1}", f"v_lshrrev_b32 v{u}, 1, v{u}",
             f"v_xor_b32 v{u}, s40, v{u}", f"v_lshl_add_u32 v{u+1}, v{u}, 6, v{u+1}", f"v_add_u32 {vr(vT0)}, s77, v{u+1}", f"v_xor_b32 {vr(vT1)}, 64, {vr(vT0)}",
             f"v_and_b32 v{u}, 31, v0", f"v_add_u32 v{u}, s45, v{u}", f"v_mul_u32_u24 v{u}, 896, v{u}", f"v_lshl_add_u32 v{u}, v{u+4}, 4, v{u}", f"v_add_u32 v6, s46, v{u}",
             f"v_add_u32 v13, s1, {vr(vT0)}", "v_xor_b32 v14, 64, v13",
             f"v_bfe_u32 {vr(vP)}, v0, 1, 2", f"v_lshlrev_b32 {vr(vP)}, 7, {vr(vP)}",
             f"v_add_u32 v15, s20, {vr(vL)}", f"v_add_u32 {vr(vL1)}, s21, {vr(vL)}"]
    early = ["s_lshl_b32 s59, s45, 4", "s_add_u32 s59, s59, s46", "s_lshl_b32 s59, s59, 7", f"s_add_u32 s59, s59, {WS_F}", "v_mov_b32 v6, 0"]
    class Z: pass
    z = Z()
    tmp = [128, 132, 136, 140]
    z.pool = [240, 244, 248, 252, 8, 12] + tmp; z.freg = {}; z.rp = 0; z.waited = -1; z.lim = 24; z.epiq = []
    z.lq = []
    for k in range(cfg.LPRE, 28): z.lq += [(k, o) for o in ln_ops(X0, k, LT, vR, 4)]
    checks = {24 - 7: ("gq24", GQ1, 48), 48 - 7: ("gq48", GQ2, 60), 60 - 7: ("gq60", GQ3, 72), 72 - 7: ("gq72", GQ4, 84), NA - 7: ("gate0", GATE(0), NA + 28)}
    GL = [1, 2, 3, 4, 5] + ([6] if K0 == 24 else [])
    for g in GL: checks[NA + 28*g - 8] = (f"gate{g}", GATE(g), NA + 28*(g+1) if g < GL[-1] else NM)
    ool = []
    def frag(f):
        p, k, tl = order[f]; g, sp = k // 4, k % 4
        c = [r_ for r_ in z.pool if not (r_ in tmp and f >= NA)]
        if not c: return False
        reg = c[0]; z.pool.remove(reg); z.freg[f] = reg
        for rd in range(2):
            if p == "q":
                if g < 4: ad, off = vTQ, g*12288 + 16*sp*192
                else: ad, off = vTQ + 1 + sp//2, (sp % 2)*AR + (g-4)*3072
                off += 4*rd*192 + tl*56
            else:
                if FSLOT[g] == "D": ad, off = vTF, 16*sp*224
                else: ad, off = vTF+1, FA[FSLOT[g]] + (sp//2)*AR + 16*(sp % 2)*224
                off += 4*rd*224 + tl*32
            a.lg(f"ds_read_b64_tr_b16 {vr(reg+2*rd,2)}, {vr(ad)} offset:{off}", ("f", f))
        return True
    def epi_q(tl, var):
        b = AQ + 16*tl
        o = [] if var else [f"v_mul_f32 v{b+r}, s{35+tl}, v{b+r}" for r in range(16)]
        o += [f"v_cvt_pk_bf16_f32 v{b+r}, v{b+2*r}, v{b+2*r+1}" for r in range(8)]
        o += [f"v_cndmask_b32 v{b+r}, v6, v{b+r}, s[38:39]" for r in range(8)] if var else [f"v_cndmask_b32 v{b+r}, v{b+r}, 0, s[42:43]" for r in (6, 7)]
        if tl == 2 and not var: o.append(("mix",))
        o += [("vm", f"buffer_store_dwordx4 {vr(b+4*q,4)}, {vr(vL)}, s[24:27], s{32+tl} offen offset:{1024*q} {SC1}") for q in range(2)]
        return [(tl, x) for x in o]
    def epi_f(tl):
        b = ACCF + 16*tl
        return [(None, x) for x in [f"v_max_f32 v{b+r}, 0, v{b+r}" for r in range(8)] + [f"v_mul_f32 v{b+r}, v{b+r}, v{b+8+r}" for r in range(8)] +
                [f"v_cvt_pk_bf16_f32 v{HP+4*tl+r}, v{b+2*r}, v{b+2*r+1}" for r in range(4)]]
    epi_at = {SC + KT*tl + KT - 1 + 3: epi_f(tl) for tl in range(7)}
    def put(x):
        if isinstance(x, str): a(x); return 1
        if x[0] == "vm": a.vm(x[1], "st"); return 4
        a("s_cmp_eq_u32 s60, 10"); a("s_cbranch_scc1 L_mix"); a("L_mix_x:"); return 2
    def stream(lo, hi, var):
        sfx = "v" if var else ""
        for f in range(lo, hi):
            p, k, tl = order[f]; ff = f - NA
            used = 0
            if p == "f" and tl >= 4 and k == 0:
                flushed = False
                while any(e[0] is not None and e[0] <= tl - 4 for e in z.epiq): put(z.epiq.pop(0)[1]); flushed = True
                if flushed: a("s_nop 1")
            if f > z.waited:
                z.waited = min(NM-1, f + (2 if p == "q" else 1 if z.rp - f < 7 else 3), z.rp-1)
                assert z.waited >= f
                wait_lg_tags(a, [("f", z.waited)])
            assert not z.lq or z.lq[0][0] > k
            acc = vr((AQ if p == "q" else ACCF) + 16*tl, 16)
            ab = [vr(z.freg[f], 4), vr(X0+4*k, 4)]
            sw = var if p == "q" else 0
            a(f"v_mfma_f32_32x32x16_bf16 {acc}, {ab[sw]}, {ab[1-sw]}, {'0' if k == 0 else acc}")
            st(name=f"_a{f}" if p == "q" else f"_f{ff}")
            if f == z.waited: used += 1
            if f >= 1 and not (z.freg[f-1] in (8, 12) and ff > 44): z.pool.append(z.freg[f-1])
            if 25 <= ff <= 28: z.pool.append(X0 + 4*(ff - 25))
            if ff in (35, 42): z.pool.append(X0 + 4*(ff//7 - 1))
            if ff == 1: z.epiq += epi_q(0, var) + epi_q(1, var) + epi_q(2, var)
            if ff == cfg.GL: z.epiq += [(None, x) for x in early]
            if f in epi_at: z.epiq += epi_at.pop(f)
            sig = {33: CQ2, 81: CE, NA+27: CONS(0), NA+55: CONS(1)}
            if cfg.EW: sig[NA+83] = CONS(2)
            if f in sig:
                if f == 81: assert z.waited >= 83
                lds_add(a, vr(vC), vr(vOne), sig[f], "c"); used += 3
            if f == 81: st(name="b7")
            if f + 3 in checks:
                a.lg(f"ds_read_b32 {vr(vG)}, {vr(vC)} offset:{checks[f+3][1]}", "g"); used += 1
            if f + 1 in checks:
                a.wait(lg="g"); a(f"v_cmp_gt_u32 vcc, 4, {vr(vG)}"); used += 2
            if f in checks:
                lab = f"L_{checks[f][0]}{sfx}"
                st(name=f"_pre{checks[f][0]}")
                a(f"s_cbranch_vccnz {lab}"); a(f"{lab}_x:"); used += 1
                ool.append((lab, checks[f][1]))
                z.lim = checks[f][2]
                st(name=f"_{checks[f][0]}")
            if ff == cfg.FL:
                assert not z.epiq
                assert ff > 48
                st(name="_prefl0")
                a.wait(vm="all")
                arrive(a, "v6", vr(vC), vr(vOne), 0, "ar"); used += 4
            if ff == cfg.FL + 3:
                a.wait(lg="ar")
                flag_if_last(a, "v6", vr(vOne), "s59"); used += 5
                st(name="fl0")
            n = 0
            while z.rp < z.lim and z.rp <= f + 8 and n < 2 and frag(z.rp):
                z.rp += 1; n += 1; used += 2
            take = -(-len(z.lq) // max(1, 79 - f))
            for q in range(min(take, len(z.lq))): a(z.lq.pop(0)[1])
            while z.epiq and used < cfg.SLOTS: used += put(z.epiq.pop(0)[1])
            if ff > max(cfg.FL + 5, 72):
                assert 8 not in z.pool and 12 not in z.pool and all(z.freg[q] not in (8, 12) for q in range(f, z.rp))
                n = 0
                while late and used < cfg.SLOTS - 1 and n < 2: a(late.pop(0)); used += 1; n += 1
    a.raw(".p2align 3")
    for k in range(cfg.LPRE - cfg.LP2 - 1): ln_pk(k)
    a(f"ds_read_b32 {vr(vG)}, {vr(vC)} offset:{GQ0}")
    ln_pk(cfg.LPRE - cfg.LP2 - 1)
    st(name="_p0")
    a("s_waitcnt lgkmcnt(0)")
    a(f"v_cmp_gt_u32 vcc, 4, {vr(vG)}")
    a("s_cmp_ge_u32 s60, 11")
    a("s_nop 2")
    a("s_cbranch_vccnz L_gq0"); a("L_gq0_x:"); ool.append(("L_gq0", GQ0))
    st(name="b0")
    for k in range(7): frag(k); z.rp += 1
    for k in range(cfg.LPRE - cfg.LP2, cfg.LPRE): ln_pk(k)
    a("s_cbranch_scc1 L_pav")
    import copy
    saved = (list(a.vmq), list(a.lgq), st.n, list(st.names), len(a.L), copy.deepcopy(z.__dict__))
    a.raw(".p2align 3")
    a("L_pav:")
    stream(0, NA + 28, 1)
    a("s_branch L_pav_x")
    endv = (list(a.vmq), list(a.lgq), copy.deepcopy(z.__dict__))
    vcode = a.L[saved[4]:]; a.L = a.L[:saved[4]]
    a.vmq, a.lgq, st.n, st.names = saved[0], saved[1], saved[2], saved[3]
    z.__dict__.update(saved[5])
    stream(0, NA + 28, 0)
    assert endv == (a.vmq, a.lgq, z.__dict__)
    a("L_pav_x:")
    stream(NA + 28, NM, 0)
    assert not late
    lds_add(a, vr(vC), vr(vOne), HD-CNT)
    for e in z.epiq: put(e[1])
    a(f"v_add_u32 {vr(vD2)}, {8*896-1024}, {vr(vD)}")
    a("v_mov_b32 v1, 0")
    a("s_nop 5")
    for k in sorted(epi_at):
        for e in epi_at[k]: put(e[1])
    st(name="hg1")
    assert cfg.HST == 0
    def pace(n):
        if len(a.vmq) > n:
            a(f"s_waitcnt vmcnt({n})"); a.vmq = a.vmq[len(a.vmq)-n:]
    def hstore(tl): a.vm(f"buffer_store_dwordx4 {vr(HP+4*tl,4)}, {vr(vL)}, s[24:27], {'s65' if tl < 4 else 's66'} offen offset:{1024*(tl%4)} {SC1}", "st")
    def hflag():
        arrive(a, "v1", vr(vC), vr(vOne), 1)
        a.wait(lg="all")
        flag_if_last(a, "v1", vr(vOne), "s59")
    if cfg.HST != 1: lds_wait(a, "L_ha", vr(vC), "v5", 4, sleep=2, off=HA-CNT)
    st(name="_ha")
    keep = list(a.vmq)
    a("s_cmp_lt_u32 s50, 7")
    a("s_cbranch_scc1 L_htile")
    lds_add(a, vr(vC), vr(vOne), HX)
    for tl in range(7 if cfg.HST == 0 else 0):
        pace(1); hstore(tl)
    a.wait(vm="all"); hflag()
    a("s_branch L_h_end")
    a("L_htile:")
    a.vmq = keep
    a(f"s_setprio {cfg.PH2}")
    for i in range(2): a.vm(f"buffer_load_dwordx4 {vr(HR+4*i,4)}, v6, s[8:11], 0 offen offset:{32*i}", "x")
    lds_wait(a, "L_hdh", vr(vC), "v5", 4, off=HD-CNT)
    def slot(i): return (CB1 + 2048*i) if i < 6 else RB + 2048*((i - 6) % 6 if i < 22 else i - 22)
    def wdma(i, half):
        if half == 0:
            a(f"s_add_u32 m0, s77, {slot(i)}")
            a(f"s_mul_i32 s4, s{SK[i//4]}, 14")
            a("s_add_u32 s4, s4, s0")
            if i % 4: a(f"s_add_u32 s4, s4, {(i%4)*16*896}")
            a.vm(f"buffer_load_dwordx4 {vr(vD)}, s[28:31], s4 offen lds", ("w", i))
        else:
            a.vm(f"buffer_load_dwordx4 {vr(vD2)}, s[28:31], s4 offen offset:1024 lds", ("w", i))
    def wodma(k):
        a(f"s_add_u32 m0, s7, {WOS+k*1024}")
        a(f"s_add_u32 s5, s6, {k*8*896}")
        a.vm(f"buffer_load_dwordx4 {vr(vD)}, s[12:15], s5 offen lds", "wo")
    wlate = {}
    def wreg(i): return wlate[i] if i >= 22 else WREG + 8*(i-6) if i >= 6 else W + 8*(i & 1)
    def reads(i):
        for ct in range(2):
            for r_ in range(2):
                a.lg(f"ds_read_b64_tr_b16 {vr(wreg(i)+4*ct+2*r_,2)}, {vr(vT0+ct)} offset:{slot(i)+r_*1024}", ("r", i))
    seq = list(range(6, 22)) + ([5] if cfg.EW else list(range(6))) + [("wo", k) for k in range(0, cfg.WOP, 2)]
    woq = list(range(cfg.WOP, 14))
    rd = 6; nst = 7 if cfg.HST else 0; flagged = False
    for n, it in enumerate(seq):
        V1 = cfg.V1 if n < cfg.VN else cfg.V1B
        for q in range(cfg.HSN):
            if nst < 7 and n % cfg.HSI == 0:
                pace(V1); hstore(nst); nst += 1
        if isinstance(it, tuple):
            for k in (it[1], it[1]+1):
                pace(V1); wodma(k)
        else:
            if 12 <= it < 22:
                while rd <= it - 6:
                    a.wait(vm=("w", rd)); reads(rd); rd += 1
                a.wait(lg=("r", it-6))
            for half in range(2):
                pace(V1); wdma(it, half)
        while rd < 22 and rd in seq[:n+1] and a._cnt(a.vmq, ("w", rd)) is None:
            if len(a.lgq) >= 12: a.wait(lg="all")
            reads(rd); rd += 1
        if nst == 7 and not flagged and a._cnt(a.vmq, "st") is None:
            hflag(); flagged = True
            st(name="hfl1")
    assert flagged
    st(name="hpre")
    poll(a, "L_p2", "v5", vr(vP), "s[24:27]", "s47", 1, sleep=8)
    st(name="hpoll2")
    while rd < 22:
        if len(a.lgq) >= 12: a.wait(lg="all")
        reads(rd); rd += 1
    for b in (0, 4):
        a(f"v_permlane32_swap_b32 v{HR+b}, v{HR+b+2}")
        a(f"v_permlane32_swap_b32 v{HR+b+1}, v{HR+b+3}")
    a("s_mov_b32 s51, 0xffff0000")
    for i in range(8):
        a(f"v_lshlrev_b32 v{ACC+2*i}, 16, v{HR+i}")
        a(f"v_and_b32 v{ACC+2*i+1}, s51, v{HR+i}")
    srd(a, 8, 18, 2048*448*2)
    a(f"v_and_b32 {vr(vP)}, 7, v0")
    a(f"v_lshlrev_b32 {vr(vP)}, 7, {vr(vP)}")
    a.wait(lg="all")
    hpool = [HR + 8*k for k in range(4)]
    hreg = {}
    opq = []
    nh = [0]
    def hload(i, tt):
        if tt == 0: hreg[i] = hpool.pop(0)
        a.vm(f"buffer_load_dwordx4 {vr(hreg[i]+4*tt,4)}, {vr(15 if tt == 0 else vL1)}, s[24:27], s{SK[i//4]} offen offset:{1024*(i%4)} {SC1}", ("h", i))
    ringq = [(i, half) for i in range(22, 28) for half in range(2)]
    def next_op(v):
        k = nh[0]
        if ringq and ringq[0][1] == 1: pace(v); wdma(*ringq.pop(0))
        elif k < 56 and (k % 2 or hpool): pace(v); hload(k // 2, k % 2); nh[0] += 1
        elif ringq: pace(v); wdma(*ringq.pop(0))
        elif woq: pace(v); wodma(woq.pop(0))
        else: return False
        return True
    for k in range(8): next_op(cfg.V2)
    reads(0)
    assert 15 <= cfg.N1 <= cfg.EP <= 19
    PA = [None, 12, 2, 11]
    def dmf(i, m):
        tt, ct = m // 2, m % 2
        acc = vr(ACC+16*m, 16)
        a(f"v_mfma_f32_32x32x16_bf16 {acc}, {vr(wreg(i)+4*ct,4)}, {vr(hreg[i]+4*tt,4)}, {'0' if (i == 0 and m) else acc}")
    nr = 22
    for i in range(22):
        if i == cfg.N1:
            while next_op(cfg.V3): pass
            assert nh[0] == 56 and not ringq and not woq
            a(f"v_add_u32 v1, s77, {vr(vL)}")
            for j in range(1, 4):
                a(f"s_xor_b32 s51, s44, {j}")
                a(f"s_mul_i32 s51, s51, {RNG}")
                a(f"v_add_u32 v{PA[j]}, s51, {vr(vL)}")
            a("s_lshl_b32 s51, s41, 2")
            a(f"v_add_u32 v15, s51, {vr(vC)}")
            a("s_mov_b32 s12, s22"); a("s_mov_b32 s13, s23")
            hpool += [W, W + 8]
            st(name="hN1")
            lds_wait(a, "L_ca", vr(vC), "v5", 1, sleep=1, off=CW)
        if i == cfg.EP: a.vm(f"buffer_load_dword v5, {vr(vP)}, s[24:27], s68 offen {SC1}", "p3")
        if i + 1 < 6:
            a.wait(vm=("w", i+1)); reads(i+1)
        assert nh[0] >= 2*i + 2
        a.wait(vm=("h", i), lg=("r", i))
        if i == 5: lds_add(a, vr(vC), vr(vOne), HX, "c")
        for m in range(4):
            dmf(i, m)
            if m == 0 and i >= 1:
                hpool.append(hreg[i-1])
                if 6 <= i-1: hpool.append(wreg(i-1))
            if i < cfg.N1:
                next_op(cfg.V2)
                if cfg.PAD: a(f"s_nop {cfg.PAD-1}")
            if i >= 19 and m in (0, 2):
                wlate[nr] = hpool.pop(0)
                a.wait(vm=("w", nr));
                if len(a.lgq) > 8: a.wait(lg=("r", nr-2))
                reads(nr); nr += 1
            if i == 21 and m == 1:
                a.wait(vm="all")
                a("v_cmp_gt_u32 vcc, 1, v5")
            if i == 21 and m == 3:
                a("s_cmp_eq_u64 vcc, 0")
                a(f"s_cselect_b32 s14, {WS_BYTES}, 0")
    assert nr == 28
    oreg = {}
    def oload(k, srd_):
        if k == 0: a("s_mov_b32 s4, s69")
        elif k % 4 == 0: a("s_add_u32 s4, s4, 4096")
        if k not in oreg:
            b = hpool.pop(0); oreg[k] = b; oreg[k+1] = b + 4
        a.vm(f"buffer_load_dwordx4 {vr(oreg[k],4)}, {vr(vL)}, {srd_}, s4 offen offset:{1024*(k%4)} {SC1}", ("o", k))
    a.wait(lg="all")
    no = 0
    for q, (i, m) in enumerate([(i, m) for i in range(22, 28) for m in (2, 3)]):
        dmf(i, m)
        if q == 0: hpool += [hreg[21], wreg(21)]
        oload(no, "s[12:15]"); no += 1
    for q, (i, m) in enumerate([(i, m) for i in range(22, 28) for m in (0, 1)]):
        dmf(i, m)
        if m == 0 and i > 22: hpool += [hreg[i-1], wreg(i-1)]
        if q < 2:
            for z in range(2): oload(no, "s[12:15]"); no += 1
        if q == 2: a("s_nop 3")
        if 2 <= q < 10: a(f"ds_write_b128 v1, {vr(ACC+32+4*(q-2),4)} offset:{RB+4096+(q-2)*1024}")
        if q == 10: lds_add(a, vr(vC), vr(vOne), R1)
    st(name="hdown")
    a("v_and_b32 v8, 0xfffffdff, v13"); a("v_and_b32 v9, 0xfffffdff, v14")
    WFB = [hpool.pop(0) for k in range(5)]
    def wf(k): return WFB[(k % 10)//2] + 4*(k % 2)
    morder = [(stp, 1) for stp in range(cfg.LAG)]
    for stp in range(16):
        if stp + cfg.LAG < 16: morder.append((stp + cfg.LAG, 1))
        morder.append((stp, 0))
    def wrd(k):
        stp, ct = morder[k]
        row = 28*(stp//2) + 16*(stp % 2)
        for r_ in range(2):
            ad = (8 if (stp == 15 and r_) else 13) + ct
            a.lg(f"ds_read_b64_tr_b16 {vr(wf(k)+2*r_,2)}, v{ad} offset:{(row+8*r_)*128}", ("w", k))
    lds_wait(a, "L_r1", vr(vC), "v5", 4, off=R1)
    for k in range(3): wrd(k)
    for j in (2, 3):
        for q in range(4): a.lg(f"ds_read_b128 {vr(ACC+16*j+4*q,4)}, v{PA[j]} offset:{RB+(j-1)*4096+q*1024}", ("p", j))
    st(name="hred")
    a("s_cmp_lg_u32 s14, 0")
    a("s_cbranch_scc1 L_early")
    poll(a, "L_p3", "v5", vr(vP), "s[24:27]", "s68", 1, sleep=cfg.PS3)
    for k in range(16): oload(k, "s[24:27]")
    a("L_early:")
    st(name="hpoll3")
    last1 = max(k for k in range(32) if morder[k][1] == 1)
    adds = [f"v_add_f32 v{ACC+32+r}, v{ACC+32+r}, v{ACC+48+r}" for r in range(16)] + [f"v_add_f32 v{ACC+r}, v{ACC+r}, v{ACC+32+r}" for r in range(16)]
    wp = 3
    for k in range(32):
        stp, ct = morder[k]
        if ct == 0: assert not adds
        a.wait(vm=("o", stp), lg=(("w", k) if k < 4 else ("w", min(31, k+1)) if k % 2 == 0 else None))
        acc = vr(ACC+16*ct, 16)
        a(f"v_mfma_f32_32x32x16_bf16 {acc}, {vr(wf(k),4)}, {vr(oreg[stp],4)}, {acc}")
        if k == 1: a.wait(lg=("p", 3))
        for z in range(2 if k else 0):
            if wp < 32 and wp <= k + 6: wrd(wp); wp += 1
        if 1 <= k < cfg.LAG:
            for z in range(-(-len(adds) // (cfg.LAG - k))): a(adds.pop(0))
        if k == cfg.LAG + 2 and cfg.OT:
            for s_ in ("s_xor_b32 s51, s44, 2", f"s_mul_i32 s51, s51, {RNG}", "s_add_u32 s51, s51, 4096", "v_and_b32 v2, 31, v0", "v_mul_u32_u24 v2, 80, v2"): a(s_)
        if k == cfg.LAG + 3 and cfg.OT:
            for s_ in ("v_lshrrev_b32 v5, 5, v0", "v_lshl_add_u32 v2, v5, 3, v2", "v_add_u32 v2, s51, v2", "v_lshrrev_b32 v5, 2, v0"): a(s_)
        if k == cfg.LAG + 4 and cfg.OT:
            for s_ in ("v_mul_u32_u24 v11, 80, v5", "v_and_b32 v10, 3, v0", "v_lshl_add_u32 v11, v10, 4, v11", "v_add_u32 v11, s51, v11"): a(s_)
        if k == cfg.LAG + 5 and cfg.OT:
            for s_ in ("v_add_u32 v5, s45, v5", "v_mul_u32_u24 v5, 896, v5", "v_lshl_add_u32 v5, v10, 4, v5", "v_add_u32 v6, s46, v5", f"s_mov_b32 s51, {16*896}"): a(s_)
        if k == last1 + 2:
            a("s_nop 7")
            for q in range(4): a.lg(f"ds_write_b128 v1, {vr(ACC+16+4*q,4)} offset:{RB+q*1024}", "e")
            lds_add(a, "v15", vr(vOne), RX, "e")
    st(name="homf")
    PT = ACC + 32; OF = ACC + 48
    lds_wait(a, "L_rx", "v15", "v5", 2, off=RX)
    for q in range(4): a.lg(f"ds_read_b128 {vr(PT+4*q,4)}, v{PA[1]} offset:{RB+q*1024}", ("e", q))
    for hq in range(2):
        a.wait(lg=("e", 2*hq+1))
        for r in range(8*hq, 8*hq+8): a(f"v_add_f32 v{ACC+r}, v{ACC+r}, v{PT+r}")
        for r in range(4*hq, 4*hq+4): a(f"v_cvt_pk_bf16_f32 v{OF+r}, v{ACC+2*r}, v{ACC+2*r+1}")
        b = 4*hq
        if cfg.OT:
            for z in range(2): a(f"ds_write_b64 v2, {vr(OF+b+2*z,2)} offset:{RB+32*hq+16*z}")
            continue
        a("s_nop 1")
        a(f"v_permlane32_swap_b32 v{OF+b}, v{OF+b+2}")
        a(f"v_permlane32_swap_b32 v{OF+b+1}, v{OF+b+3}")
        a(f"buffer_store_dwordx4 {vr(OF+b,4)}, v6, s[8:11], 0 offen offset:{32*hq}")
    if cfg.OT:
        for z in range(2): a.lg(f"ds_read_b128 {vr(PT+4*z,4)}, v11 offset:{RB+16*80*z}", ("t", z))
        for z in range(2):
            a.wait(lg=("t", z))
            a(f"buffer_store_dwordx4 {vr(PT+4*z,4)}, v6, s[8:11], {'s51' if z else '0'} offen {cfg.OFL}")
    a("L_h_end:")
    st.flush(63, 8)
    a("s_endpgm")
    a.L += vcode
    for lab, off in ool:
        lds_wait(a, lab, vr(vC), vr(vG), 4, off=off)
        a(f"s_branch {lab}_x")
    a("L_mix:")
    b = AQ + 32; m = b + 8
    for s_ in (f"v_mov_b32 v{m}, 0x3f80", f"v_cndmask_b32 v{b+6}, v{b+6}, v{m}, s[42:43]", "s_lshl_b32 s51, s44, 11", f"s_add_u32 s51, s51, {VS0}",
               f"v_lshrrev_b32 v{m+5}, 5, v0", f"v_and_b32 v{m}, 31, v0", f"v_lshlrev_b32 v{m}, 6, v{m}", f"v_lshl_add_u32 v{m}, v{m+5}, 3, v{m}",
               f"v_bfe_u32 v{m+1}, v0, 1, 2", f"v_lshl_add_u32 v{m}, v{m+1}, 4, v{m}", f"v_add_u32 v{m}, s51, v{m}",
               f"v_xor_b32 v{m+1}, 16, v{m}", f"v_xor_b32 v{m+2}, 32, v{m}", f"v_xor_b32 v{m+3}, 48, v{m}",
               f"v_bfe_u32 v{m+4}, v0, 2, 2", f"v_lshl_add_u32 v{m+4}, v{m+5}, 2, v{m+4}", f"v_lshrrev_b32 v{m+5}, 1, v{m+4}", f"v_lshlrev_b32 v{m+5}, 4, v{m+5}",
               f"v_and_b32 v{m+6}, 3, v0", f"v_lshlrev_b32 v{m+6}, 3, v{m+6}", f"v_bfe_u32 v{m+7}, v0, 4, 1", f"v_lshl_add_u32 v{m+6}, v{m+7}, 5, v{m+6}",
               f"v_xor_b32 v{m+5}, v{m+5}, v{m+6}", f"v_lshlrev_b32 v{m+4}, 6, v{m+4}", f"v_add3_u32 v{m+4}, v{m+4}, v{m+5}, s51"): a(s_)
    a("s_mov_b64 s[56:57], vcc")
    lds_wait(a, "L_mixw", vr(vC), f"v{m+5}", 4, off=CE)
    a("s_mov_b64 vcc, s[56:57]")
    for i in range(4): a(f"ds_write_b64 v{m+i}, {vr(b+2*i,2)}")
    for i in range(4): a(f"ds_read_b64_tr_b16 {vr(b+2*i,2)}, v{m+4} offset:{512*i}")
    a("s_waitcnt lgkmcnt(0)")
    a("s_branch L_mix_x")

def build():
    a = Asm()
    st = Stamps(a, 0, 22)
    common(a, st)
    n0 = st.n
    gen_h(a, st)
    hn = st.names[1:]
    st.n = n0; st.names = st.names[:n0]
    gen_c(a, st)
    if asmlib.STAMP: a.raw(f"; STAMPS C {st.names[1:]}\n; STAMPS H {hn}")
    s = f"; @launch grid=(256,1,1) block=(512,1,1) lds={LDS}\n"
    s += '.amdgcn_target "amdgcn-amd-amdhsa--gfx950"\n.text\n' + kernel_head(NAME) + a.text()
    s += '.section .rodata,"a"\n' + kernel_desc(NAME, 256, 256, 102)
    if cfg.ALIGN:
        import align
        s, f_, m_ = align.align(s, nop=cfg.ALIGN if cfg.ALIGN > 1 else False)
    return s
def set_args(args):
    for x in args:
        if x.startswith("sel="): asmlib.STAMP_SEL = x[4:].split(",")
        elif "=" in x:
            k, v = x.split("="); setattr(cfg, k, eval(v))
if __name__ == "__main__":
    asmlib.STAMP = "--stamp" in sys.argv
    asmlib.STAMP_REAL = "--real" in sys.argv
    set_args(sys.argv[2:])
    open(sys.argv[1], "w").write(build())
```

```python
import sys, math, struct
import asmlib
from asmlib import *
def f2u(x): return struct.unpack("<I", struct.pack("<f", x))[0]
NAME = "parallel_sum__softmax_full_mha__glu_gated_reglu__prompt_kernel"
WS_KV, WS_A, WS_F = 2<<20, 6<<20, 16<<20
WS_BYTES = WS_F + 3*32768
QSCALE = math.log2(math.e) / math.sqrt(28.0)
LDS = 163840
XS = 49152; AR = 28672
OU = 14336 + 128
QA = {4: 0, 5: 7168, 6: 10240}
FA = {"A": 14336, "B": 21504, "C": 0, "E": 7168}
FSLOT = ["A", "B", "D", "C", "E", "A", "B"]
STO = 24576
CNT = XS + 2*AR - 128
GATE = lambda g: 4*g
CONS = lambda g: 32 + 4*g
HD = CNT + 48; HA = CNT + 52
GQ1 = 56; GQ2 = 60; GQ0 = 28; CQ2 = 88; CE = 92; GQ3 = 104; GQ4 = 108; CL = 112; AF = 116; HX = 100
CA = 64; CW = 68; R1 = 72; RX = 80
VS0 = 32768; VS2 = 25600
WOS = XS + 2*AR; NS = 6; RNG = NS*2048
CB1 = 0; RB = 49152
WS_Q = 0
class P: pass
cfg = P()
cfg.N1 = 16
cfg.N2 = 4
cfg.SPIN = 1 << 16
cfg.ROT = 0
cfg.V1 = 3; cfg.V2 = 4; cfg.V3 = 12
cfg.XA = 4; cfg.BX = 2
cfg.Q0 = 2; cfg.Q1 = 0
cfg.LPRE = 13
cfg.HPRE = 4
cfg.HSI = 1; cfg.HSN = 1; cfg.PE = 2; cfg.WDP = [0, 0, 0]; cfg.F3 = 1
cfg.SLOTS = 6
cfg.SPF = 0; cfg.SPQ = 0; cfg.SPS = 0
cfg.LP2 = 2; cfg.T6 = 0; cfg.HST = 0; cfg.VN = 9; cfg.V1B = 5; cfg.NOM = 0; cfg.ITS = 0; cfg.CQF = 3; cfg.LN0 = 0; cfg.PF = 0; cfg.ZM = 0; cfg.MAP = 1
cfg.OT = 1; cfg.OFL = ''; cfg.KQ = 24; cfg.AV = [8, 18, 28]; cfg.LP0 = 999; cfg.LPN = 11; cfg.FT = 0; cfg.WSB = 0; cfg.F3L = 0; cfg.CF = 1; cfg.AS = 3; cfg.SA = 1; cfg.EW = 0; cfg.GL = 30; cfg.F4E = 0; cfg.PS1 = 4; cfg.FL = 54; cfg.SPW = 0; cfg.P1F = 1; cfg.LAG = 8; cfg.EP = 18; cfg.PS3 = 1; cfg.WOP = 0
cfg.W2 = 1
cfg.K0 = 24; cfg.LNG = 3
cfg.ALIGN = 5
cfg.PC = 0; cfg.PH2 = 1; cfg.PAD = 8
cfg.SIG = 1
SC1 = "sc1"

def poll(a, lab, vdst, voff, srd_, soff, want_ge, cnt="s62", sleep=2):
    a(f"s_mov_b32 {cnt}, 0")
    a(f"{lab}:")
    a(f"buffer_load_dword {vdst}, {voff}, {srd_}, {soff} offen sc1")
    a(f"s_add_u32 {cnt}, {cnt}, 1")
    a(f"s_waitcnt vmcnt(0)")
    a(f"v_cmp_le_u32 vcc, {want_ge}, {vdst}")
    a(f"s_cmp_gt_u32 {cnt}, {cfg.SPIN}")
    a(f"s_cbranch_scc1 {lab}_x")
    a(f"s_nop 1")
    a(f"s_cmp_eq_u64 vcc, -1")
    a(f"s_cbranch_scc1 {lab}_x")
    a(f"s_sleep {sleep}")
    a(f"s_branch {lab}")
    a(f"{lab}_x:")
    a.vmq = []
def lds_wait(a, lab, vaddr, vdst, n, sleep=0, off=0):
    a(f"{lab}:")
    if sleep: a(f"s_sleep {sleep}")
    a(f"ds_read_b32 {vdst}, {vaddr} offset:{off}")
    a("s_waitcnt lgkmcnt(0)")
    a(f"v_cmp_gt_u32 vcc, {n}, {vdst}")
    a("s_nop 3")
    a(f"s_cbranch_vccnz {lab}")
    a.lgq = []

def common(a, st):
    a("s_cmp_ge_u32 s2, 256")
    a("s_cbranch_scc1 L_end")
    st(wait=False, real=True); st(wait=False)
    a("s_load_dwordx8 s[4:11], s[0:1], 0")
    a("s_load_dwordx8 s[12:19], s[0:1], 32")
    a("s_load_dwordx4 s[20:23], s[0:1], 64")
    a("s_getpc_b64 s[56:57]")
    a("L_pc:")
    a("v_lshrrev_b32 v1, 5, v0")
    a("s_lshr_b32 s55, s2, 3")
    a("s_lshl_b32 s55, s55, 4")
    a("v_add_u32 v2, s55, v1")
    a("v_lshlrev_b32 v2, 7, v2")
    a("v_min_u32 v2, L_code_end-L_pc-4, v2")
    a("global_load_dword v255, v2, s[56:57]")
    a("v_lshrrev_b32 v1, 6, v0")
    a("v_and_b32 v0, 63, v0")
    a("v_readfirstlane_b32 s63, v1")
    a("s_and_b32 s48, s2, 7")
    a("s_lshr_b32 s47, s2, 3")
    a("s_lshr_b32 s50, s47, 2")
    a("s_and_b32 s51, s47, 3")
    a("s_and_b32 s44, s63, 3")
    a("s_cmp_lt_u32 s63, 4")
    a("s_cbranch_scc1 L_compute")
def mapping(a):
    if cfg.MAP == 0:
        a("s_and_b32 s46, s48, 3")
        a("s_lshl_b32 s46, s46, 2")
        a("s_add_u32 s46, s46, s51")
        a("s_lshr_b32 s45, s48, 2")
        a("s_lshl_b32 s45, s45, 3")
        a("s_add_u32 s45, s45, s50")
    else:
        a("s_and_b32 s46, s48, 1")
        a("s_lshl_b32 s46, s46, 3")
        a("s_add_u32 s46, s46, s50")
        a("s_lshr_b32 s45, s48, 1")
        a("s_lshl_b32 s45, s45, 2")
        a("s_add_u32 s45, s45, s51")
    a("s_lshl_b32 s49, s48, 2")
    a("s_add_u32 s49, s49, s51")
    a("s_lshl_b32 s3, s51, 1")
    a("s_add_u32 s64, s3, s50")
    a("s_cmp_ge_u32 s64, 7")
    a("s_cselect_b32 s62, 7, 0")
    a("s_sub_u32 s64, s64, s62")
    if cfg.ROT == 2: a("s_mov_b32 s3, s64")
    if cfg.ROT == 0: a("s_mov_b32 s3, 0")
    a("s_lshl_b32 s52, s45, 2")
    a("s_add_u32 s52, s52, s44")
def emit(a, op):
    if op[1] == "vm": a.vm(op[0], op[2])
    elif op[1] == "lg": a.lg(op[0], op[2])
    else: a(op[0])
def wait_lg_tags(a, tags):
    n = min([c for c in (a._cnt(a.lgq, tg) for tg in tags) if c is not None], default=None)
    if n is not None:
        assert n <= 15
        a(f"s_waitcnt lgkmcnt({n})")
        a.lgq = a.lgq[len(a.lgq)-n:] if n else []
V = lambda s: (s, "v")

def lds_add(a, vaddr, vone, off, tag=None):
    a("s_mov_b64 exec, 1")
    a.lg(f"ds_add_u32 {vaddr}, {vone} offset:{off}", tag)
    a("s_mov_b64 exec, -1")
def arrive(a, vdst, vaddr, vone, p, tag=None):
    a("s_mov_b64 exec, 1")
    a.lg(f"ds_add_rtn_u32 {vdst}, {vaddr}, {vone} offset:{AF+4*p}", tag)
    a("s_mov_b64 exec, -1")
def flag_if_last(a, v, vone, soff):
    a(f"v_xor_b32 {v}, 3, {v}")
    a(f"v_lshlrev_b32 {v}, 25, {v}")
    a.vm(f"buffer_store_dword {vone}, {v}, s[24:27], {soff} offen {SC1}", "fl")
def ws_srd(a):
    if cfg.WSB:
        a(f"s_add_u32 s22, s22, {cfg.WSB << 20}")
        a("s_addc_u32 s23, s23, 0")
    srd(a, 24, 22, WS_BYTES)
def ffn_setup(a, vDF, t):
    a("s_cmp_ge_u32 s44, 2")
    a("s_cselect_b32 s32, s14, s12")
    a("s_cselect_b32 s33, s15, s13")
    a(f"s_mov_b32 s34, {448*1792*2}")
    a("s_mov_b32 s35, 0x00020000")
    a("s_cselect_b32 s51, 128, 0")
    a(f"s_mul_i32 s53, s44, {AR}")
    a("s_add_u32 s53, s53, s51")
    a(f"s_add_u32 s53, s53, {XS-128}")
    a("s_mul_i32 s42, s44, 7168")
    a("s_add_u32 s42, s42, s51")
    a("s_and_b32 s51, s44, 1")
    a(f"s_mul_i32 s54, s51, {32*3584}")
    a("s_mul_i32 s51, s46, 224")
    for j in range(7):
        a(f"v_add_u32 v{t}, {64*j}, v0")
        a(f"v_mul_u32_u24 v{t+1}, 4682, v{t}")
        a(f"v_lshrrev_b32 v{t+1}, 16, v{t+1}")
        a(f"v_mul_u32_u24 v{t+2}, {3584-14*16}, v{t+1}")
        a(f"v_lshl_add_u32 v{t+2}, v{t}, 4, v{t+2}")
        if j % 4: a(f"v_subrev_u32 v{t+2}, {1024*(j%4)}, v{t+2}")
        a(f"v_add_u32 {vr(vDF+j)}, s51, v{t+2}")
def gap(a, n):
    while n > 0:
        a(f"s_nop {min(n, 16) - 1}"); n -= 16
def ffn_dma(a, g, vDF, lo=0, hi=7, sp=None):
    sp = cfg.SPF if sp is None else sp
    if lo:
        base, off = ("s42", 0) if FSLOT[g] == "D" else ("s53", FA[FSLOT[g]])
        assert lo == 4
        a(f"s_add_u32 m0, {base}, {off+4096}")
        a(f"s_add_u32 s43, s3, {g}")
        a("s_cmp_ge_u32 s43, 7")
        a("s_cselect_b32 s62, 7, 0")
        a("s_sub_u32 s43, s43, s62")
        a(f"s_mul_i32 s43, s43, {64*3584}")
        a("s_add_u32 s43, s43, s54")
        for j in range(4, 7):
            a.vm(f"buffer_load_dwordx4 {vr(vDF+j)}, s[32:35], s43 offen offset:{1024*(j%4)} lds", ("F", g))
            if j < 6: gap(a, sp)
        return
    base, off = ("s42", 0) if FSLOT[g] == "D" else ("s53", FA[FSLOT[g]])
    a(f"s_add_u32 m0, {base}, {off}")
    a(f"s_add_u32 s43, s3, {g}")
    a("s_cmp_ge_u32 s43, 7")
    a("s_cselect_b32 s62, 7, 0")
    a("s_sub_u32 s43, s43, s62")
    a(f"s_mul_i32 s43, s43, {64*3584}")
    a("s_add_u32 s43, s43, s54")
    for j in range(hi):
        if j == 4:
            a(f"s_add_u32 m0, {base}, {off+4096}"); a("s_nop 0")
        a.vm(f"buffer_load_dwordx4 {vr(vDF+j)}, s[32:35], s43 offen offset:{1024*(j%4)} lds", ("F", g))
        if j < hi - 1: gap(a, sp)
def xread_addr(a, vX, t):
    a(f"s_mul_i32 s56, s44, {AR}")
    a(f"s_add_u32 s56, s56, {XS}")
    a(f"v_and_b32 v{t}, 31, v0")
    a(f"v_lshlrev_b32 v{t+1}, 7, v{t}")
    a(f"v_add_u32 v{t+1}, s56, v{t+1}")
    a(f"v_bfe_u32 v{t}, v0, 1, 3")
    a(f"v_lshrrev_b32 v{t+2}, 5, v0")
    a(f"v_xor_b32 v{t}, v{t}, v{t+2}")
    a(f"v_lshl_add_u32 {vr(vX)}, v{t}, 4, v{t+1}")
    for sp in range(1, 4): a(f"v_xor_b32 {vr(vX+sp)}, {32*sp}, {vr(vX)}")
def ln_ops(X0, k, LT, vR, nt=2):
    ops = []
    for b in range(0, 4, nt):
        for i in range(nt):
            r = X0 + 4*k + b + i
            ops += [f"v_lshlrev_b32 v{LT+2*i}, 16, v{r}", f"v_and_b32 v{LT+2*i+1}, s61, v{r}"]
        ops += [f"v_fma_f32 v{LT+i}, v{LT+i}, v{vR}, v{vR+1}" for i in range(2*nt)]
        ops += [f"v_cvt_pk_bf16_f32 v{X0+4*k+b+i}, v{LT+2*i}, v{LT+2*i+1}" for i in range(nt)]
    return ops
def sigma(a, dst, src):
    tab = [0, 1, 2, 3, 4, 5, 7, 6, 9, 8, 15, 11, 12, 13, 14, 10]
    assert all(tab[tab[k]] == k for k in range(16))
    lo = sum(tab[k] << (4*k) for k in range(8)); hi = sum(tab[8+k] << (4*k) for k in range(8))
    a(f"s_cmp_ge_u32 {src}, 8")
    a(f"s_cselect_b32 s62, {lo ^ hi:#x}, 0")
    a(f"s_xor_b32 s62, s62, {lo:#x}")
    a(f"s_lshl_b32 {dst}, {src}, 2")
    a(f"s_lshr_b32 {dst}, s62, {dst}")
    a(f"s_and_b32 {dst}, {dst}, 15")

def gen_c(a, st):
    a.vmq = []; a.lgq = []
    vDQ = 216; t = 240; SINK = 221; vL = 15; vDF = 208
    O = 16; S = 80; PP = 192; KV = 128; T = 200
    QL = [248, 224, 232, 240]
    a("L_compute:")
    mapping(a)
    for r in range(4): a(f"v_mov_b32 v{PP+4+r}, 0")
    a(f"v_min_u32 v{t}, 11, v0")
    a(f"v_and_b32 v{t+1}, 3, v{t}")
    a(f"v_lshrrev_b32 v{t}, 2, v{t}")
    a(f"v_lshlrev_b32 v{t}, 15, v{t}")
    a(f"v_lshl_add_u32 v{t}, v{t+1}, 7, v{t}")
    a("s_lshl_b32 s51, s52, 9")
    a(f"s_add_u32 s51, s51, {WS_F}")
    a("s_waitcnt lgkmcnt(0)")
    ws_srd(a)
    a("s_xor_b32 s59, s46, 7")
    a("s_cbranch_scc1 L_noclr")
    a(f"buffer_store_dword v{PP+4}, v{t}, s[24:27], s51 offen {SC1}")
    a("L_noclr:")
    srd(a, 28, 6, 448*1344*2)
    sigma(a, "s51", "s46")
    a("s_mul_i32 s51, s51, 168")
    a("s_and_b32 s51, s51, -16")
    for j in range(3):
        a(f"v_add_u32 v{t}, {64*j}, v0")
        a(f"v_mul_u32_u24 v{t+1}, 5462, v{t}")
        a(f"v_lshrrev_b32 v{t+1}, 16, v{t+1}")
        a(f"v_mul_u32_u24 v{t+2}, 12, v{t+1}")
        a(f"v_sub_u32 v{t+2}, v{t}, v{t+2}")
        a(f"v_min_u32 v{t+2}, 10, v{t+2}")
        a(f"v_mul_u32_u24 v{t+1}, 2688, v{t+1}")
        a(f"v_lshl_add_u32 v{t+1}, v{t+2}, 4, v{t+1}")
        if j: a(f"v_subrev_u32 v{t+1}, {1024*j}, v{t+1}")
        a(f"v_add_u32 {vr(vDQ+j)}, s51, v{t+1}")
    a(f"s_mul_i32 s70, s44, {16*2688}")
    a(f"s_mul_i32 s71, s44, {16*192}")
    a(f"s_mul_i32 s72, s3, {64*2688}")
    a(f"s_mul_i32 s73, s44, {AR}")
    a(f"s_add_u32 s73, s73, {XS}")
    def qkv_dma(g):
        a(f"s_add_u32 m0, s71, {g*12288}" if g < 4 else f"s_add_u32 m0, s73, {QA[g]}")
        a("s_add_u32 s51, s72, s70")
        for j in range(3):
            a.vm(f"buffer_load_dwordx4 {vr(vDQ+j)}, s[28:31], s51 offen offset:{1024*j} lds", ("Q", g))
        if g < 6:
            a(f"s_add_u32 s72, s72, {64*2688}"); a(f"s_cmp_ge_u32 s72, {448*2688}"); a("s_cselect_b32 s72, 0, s72")
    ffn_setup(a, vDF, t)
    srd(a, 12, 20, 256)
    srd(a, 36, 16, 1792*448*2)
    a("s_mov_b32 s40, 0"); a("s_mov_b32 s41, -1")
    for s_ in (f"v_lshlrev_b32 {vr(vL)}, 4, v0", "v_lshlrev_b32 v13, 25, v0", "v_mov_b32 v14, 1", f"v_mov_b32 v12, {CNT}",
               "v_and_b32 v222, 15, v0", "v_lshlrev_b32 v222, 4, v222", "s_lshl_b32 s74, s45, 4"): a(s_)
    for r in range(4): a(f"v_mov_b32 v{KV+48+12+r}, 0")
    for r in range(64): a(f"v_mov_b32 v{O+r}, 0")
    def att_setup():
        a("s_setprio 0")
        a("s_lshl_b32 s65, s48, 1")
        a("s_and_b32 s51, s47, 1")
        a("s_add_u32 s65, s65, s51")
        a("s_lshr_b32 s66, s47, 1")
        a(f"v_bfe_u32 v{t+2}, v0, 2, 2")
        a(f"v_bfe_u32 v{t+4}, v0, 4, 1")
        for s_ in ("s_lshl_b32 s51, s66, 2", "s_add_u32 s51, s51, s44", f"s_mul_i32 s67, s51, {144*1024}", "s_lshl_b32 s51, s65, 11", "s_add_u32 s67, s67, s51",
                   f"s_add_u32 s67, s67, {WS_A+112*1024}",
                   "s_lshl_b32 s51, s44, 2",
                   "s_lshl_b32 s60, s66, 4", "s_add_u32 s60, s60, s65", "s_lshl_b32 s60, s60, 7", f"s_add_u32 s60, s60, {WS_F+65536}",
                   "s_lshl_b32 s51, s65, 18", "s_lshl_b32 s58, s44, 16", "s_add_u32 s51, s51, s58", f"s_add_u32 s51, s51, {WS_KV}",
                   "s_add_u32 s4, s22, s51", "s_addc_u32 s5, s23, 0", "s_mov_b32 s6, 0x10000", "s_mov_b32 s7, 0x00020000",
                   "s_lshl_b32 s69, s66, 12"): a(s_)
        for k, (add, dst) in enumerate(((0, "s56"), (16, "s57"), (32, "s58"))):
            a(f"s_add_u32 s51, s65, {add}")
            a("s_mul_i32 s51, s51, 43")
            a("s_lshr_b32 s51, s51, 7")
            sigma(a, "s51", "s51")
            a(f"s_lshl_b32 {dst}, s51, 7")
        a("s_lshl_b32 s51, s66, 11")
        a("s_add_u32 s56, s56, s51")
        a("s_lshl_b32 s51, s44, 13")
        a("s_add_u32 s57, s57, s51")
        a("s_add_u32 s58, s58, s51")
        a(f"v_lshlrev_b32 v1, 11, v{t+2}")
        a(f"v_add_u32 v{t+6}, s58, v1")
        a(f"v_add_u32 v1, s57, v1")
        a(f"v_cmp_eq_u32 vcc, 1, v{t+4}")
        a(f"v_mov_b32 v{t+7}, s56")
        a(f"v_and_b32 v{t+3}, 3, v0")
        a(f"v_cndmask_b32 v1, v1, v{t+6}, vcc")
        a(f"v_cndmask_b32 v1, v1, v{t+7}, s[40:41]")
        a(f"s_mov_b32 s68, {WS_F}")
        for j in range(4):
            for s_ in (f"s_add_u32 s51, s44, {j}", "s_and_b32 s51, s51, 3", f"s_mul_i32 s55, s51, 12288", f"s_add_u32 s55, s55, {CB1}", f"v_add_u32 v{T+4+j}, s55, {vr(vL)}",
                       "s_lshl_b32 s55, s65, 4", "s_add_u32 s55, s55, s66", "s_lshl_b32 s55, s55, 2", "s_add_u32 s55, s55, s51", f"s_lshl_b32 s{8+j}, s55, 11"): a(s_)
        a("s_mov_b32 s55, 0")
        if cfg.EW:
            a("s_cmp_lt_u32 s50, 7")
            a("s_cselect_b32 s38, s38, 0")
            for s_ in ("v_lshrrev_b32 v3, 3, v0", "v_bfe_u32 v4, v0, 4, 1", "v_lshlrev_b32 v4, 2, v4", "v_and_b32 v7, 7, v0", "v_xor_b32 v7, v7, v4",
                       "v_mul_u32_u24 v3, 896, v3", "v_lshl_add_u32 v3, v7, 4, v3", f"v_add_u32 v4, {8*896-1024}, v3",
                       f"s_mul_i32 s56, s44, {448*896}", "s_lshl_b32 s57, s50, 7", "s_add_u32 s56, s56, s57", f"s_mul_i32 s57, s64, {64*896}", "s_add_u32 s57, s57, s56",
                       "s_add_u32 s51, s64, 1", "s_cmp_ge_u32 s51, 7", "s_cselect_b32 s51, 0, s51", f"s_mul_i32 s58, s51, {64*896}", "s_add_u32 s58, s58, s56",
                       f"s_mul_i32 s56, s44, {RNG}"): a(s_)
        a(f"s_setprio {cfg.PF}")
    def landed(tag, off):
        a.wait(vm=tag); lds_add(a, "v12", "v14", off)
    def free(lab, off): lds_wait(a, lab, "v12", "v2", 4, sleep=1, off=off)
    st(name="setup")
    a("s_barrier")
    a(f"s_setprio {cfg.PF}")
    for g in range(cfg.Q0): qkv_dma(g)
    a("s_barrier")
    st(name="bx2")
    for g in range(cfg.Q0, 4): qkv_dma(g)
    landed(("Q", 1), GQ0)
    qkv_dma(4); qkv_dma(5)
    landed(("Q", 3), GQ1)
    qkv_dma(6)
    landed(("Q", 4), GQ2)
    ffn_dma(a, 0, vDF, 0, 4)
    landed(("Q", 5), GQ3)
    ffn_dma(a, 0, vDF, 4)
    landed(("Q", 6), GQ4)
    st(name="_q6")
    ffn_dma(a, 1, vDF)
    a("s_or_b32 s59, s59, s44")
    a("s_cbranch_scc1 L_nogo")
    free("L_clr", GQ0)
    a(f"buffer_store_dword v14, v13, s[12:15], s74 offen {SC1}")
    a("L_nogo:")
    landed(("F", 0), GATE(0))
    st(name="_g0")
    free("L_cq2", CQ2)
    def ftouch():
        assert cfg.MAP == 1 and cfg.ROT == 0
        for s_ in ("v_lshrrev_b32 v5, 4, v0", "v_mul_u32_u24 v5, 3584, v5", "v_and_b32 v6, 15, v0", "v_min_u32 v6, 13, v6", "v_lshl_add_u32 v5, v6, 7, v5",
                   "s_lshl_b32 s51, s47, 1", "s_and_b32 s62, s44, 1", "s_add_u32 s51, s51, s62", "s_add_u32 s51, s51, 48", f"s_mul_i32 s51, s51, {4*3584}",
                   "s_and_b32 s62, s48, 1", "s_mul_i32 s62, s62, 1792", "s_add_u32 s51, s51, s62"): a(s_)
        a.vm(f"buffer_load_dword v{SINK}, v5, s[32:35], s51 offen", "pf")
    if cfg.FT == 1: ftouch()
    ffn_dma(a, 2, vDF)
    if cfg.FT == 2: ftouch()
    landed(("F", 1), GATE(1))
    if cfg.AS == 2: att_setup()
    free("L_ce", CE)
    st(name="ce")
    assert not cfg.F3L and not cfg.F4E
    ffn_dma(a, 3, vDF)
    if cfg.AS == 3: att_setup()
    a.vm(f"buffer_load_dword v223, v222, s[12:15], 0 offen {SC1}", "go")
    a.wait(vm="go")
    a("v_cmp_gt_u32 vcc, 1, v223")
    a("s_nop 3")
    a("s_cbranch_vccnz L_go"); a("L_go_x:")
    lds_add(a, "v12", "v14", GATE(2))
    st(name="_g2")
    if cfg.F4E: ffn_dma(a, 4, vDF)
    if cfg.AS == 0: att_setup()
    free("L_cons5", CONS(0))
    st(name="_c5")
    def cflag():
        a("s_cmp_lg_u32 s44, 0")
        a("s_cbranch_scc1 L_nofl")
        for s_ in ("s_lshl_b32 s59, s45, 4", "s_add_u32 s59, s59, s46", "s_lshl_b32 s59, s59, 7", f"s_add_u32 s59, s59, {WS_F}"): a(s_)
        lds_wait(a, "L_af", "v12", "v2", 4, off=AF)
        a(f"buffer_store_dword v14, v13, s[24:27], s59 offen {SC1}")
        a("L_nofl:")
        st(name="cfl0")
    if cfg.F3L:
        ffn_dma(a, 3, vDF)
        ffn_dma(a, 4, vDF, 0, 4)
        if cfg.CF == 2: cflag()
        landed(("F", 3), GATE(3))
        ffn_dma(a, 4, vDF, 4)
        if cfg.CF == 1: cflag()
        ffn_dma(a, 5, vDF, 0, 4)
        landed(("F", 4), GATE(4))
        ffn_dma(a, 5, vDF, 4)
    else:
        if not cfg.F4E: ffn_dma(a, 4, vDF)
        ffn_dma(a, 5, vDF, 0, 4)
        if cfg.CF: cflag()
        landed(("F", 4), GATE(4))
        ffn_dma(a, 5, vDF, 4)
    free("L_cons6", CONS(1))
    st(name="_c6")
    ffn_dma(a, 6, vDF)
    if cfg.AS == 1: att_setup()
    if cfg.K0 == 24: landed(("F", 5), GATE(5))
    landed(("F", 6), GATE(5 if cfg.K0 == 20 else 6))
    if cfg.EW:
        free("L_consw", CONS(2))
        for i in range(5):
            a(f"s_add_u32 m0, s56, {CB1 + 2048*i}")
            a(f"s_add_u32 s51, s{57 + i//4}, {(i%4)*16*896}")
            a.vm(f"buffer_load_dwordx4 v3, s[36:39], s51 offen lds", "wx")
            a.vm(f"buffer_load_dwordx4 v4, s[36:39], s51 offen offset:1024 lds", "wx")
    st(name="_cf6")
    def kvload(slot, j): return f"buffer_load_dwordx4 {vr(KV+16*slot+4*j,4)}, {vr(vL)}, s[4:7], s69 offen offset:{1024*j} {SC1}"
    kvadv = ["s_add_u32 s69, s69, 4096", "s_and_b32 s69, s69, 0xffff"]
    poll(a, "L_p1", "v2", "v1", "s[24:27]", "s68", 1, sleep=cfg.PS1)
    st(name="poll1")
    for j in (1, 2, 3, 0):
        for ks in range(2): a.vm(f"buffer_load_dwordx4 {vr(QL[j]+4*ks,4)}, {vr(vL)}, s[24:27], s{8+j} offen offset:{1024*ks} {SC1}", "q")
    for sl in range(3):
        for j in range(4): a.vm(kvload(sl, j), ("kv", sl))
        for x in kvadv: a(x)
    a(f"s_setprio {cfg.PC}")
    QO = [1, 2, 3, 0]
    def qk(n, ks):
        kt, qt = (n//4) % 4, n % 4
        s = vr(S+16*(n&1), 16)
        return f"v_mfma_f32_32x32x16_bf16 {s}, {vr(KV+16*kt+4*ks,4)}, {vr(QL[QO[qt]]+4*ks,4)}, {'0' if ks==0 else s}"
    def pv(n, ks):
        kt, qt = (n//4) % 4, n % 4
        o = vr(O+16*QO[qt], 16)
        return f"v_mfma_f32_32x32x16_bf16 {o}, {vr(KV+16*kt+8+4*ks,4)}, {vr(PP+4*ks,4)}, {o}"
    a.wait(vm=("kv", 0))
    lds_add(a, "v12", "v14", HA-CNT)
    st(name="att0")
    a(qk(0, 0)); a(qk(0, 1))
    a("s_nop 7"); a("s_nop 3")
    a.raw(".p2align 3")
    a("L_att:")
    def softmax(n, m, odd):
        sb = S + 16*(n & 1)
        for j in range(4):
            a(f"v_exp_f32{'_e64' if (odd and j == 1) else ''} v{sb+4*m+j}, v{sb+4*m+j}")
        for j in range(2): a(f"v_cvt_pk_bf16_f32 v{PP+2*m+j}, v{sb+4*m+2*j}, v{sb+4*m+2*j+1}")
    for n in range(16):
        kt, qt = n//4, n % 4
        ms = [qk(n+1, 0), qk(n+1, 1), pv(n-1, 1), pv(n, 0)]
        for m in range(4):
            a(ms[m])
            odd = False
            if n == 12 and m == 0:
                a("s_cbranch_scc1 L_last"); a("s_nop 0")
            if m == 0: a(kvload((kt+3) % 4, qt))
            if qt == 2 and m == 2 and kt == 0:
                a("s_add_u32 s55, s55, 1"); odd = True
            if n == 0 and m == 1 and asmlib.STAMP and cfg.ITS:
                a("s_mov_b64 s[96:97], s[94:95]"); a("s_mov_b64 s[94:95], s[92:93]"); a("s_mov_b64 s[92:93], s[90:91]"); a("s_memtime s[90:91]")
            if qt == 2 and m == 3: a("s_waitcnt vmcnt(9)"); odd = True
            if qt == 0 and m == 2: a("s_waitcnt vmcnt(9)"); odd = True
            if qt == 3 and m == 1: a(kvadv[0])
            if qt == 3 and m == 2: a(kvadv[1])
            if qt == 3 and m == 3 and kt == 0:
                a("s_cmp_eq_u32 s55, 4"); a("s_cselect_b32 s6, 0, s6")
            if qt == 3 and m == 3 and kt == 2: a("s_cmp_eq_u32 s55, 4"); odd = True
            softmax(n, m, odd)
    a("s_branch L_att")
    a.raw(".p2align 3")
    a("L_last:")
    def cwr(j, q): a(f"ds_write_b128 v{T+4+j}, {vr(O+16*j+4*q,4)} offset:{(j-1)*4096+q*1024}")
    for n in range(12, 16):
        ms = [qk(n+1, 0), qk(n+1, 1), pv(n-1, 1), pv(n, 0)] if n < 15 else [pv(14, 1), None, None, pv(15, 0)]
        for m in range(4):
            if n == 15 and m == 0: cwr(2, 0); cwr(2, 1)
            if ms[m] and not (n == 12 and m == 0): a(ms[m])
            odd = False
            if n == 12 and m == 0: a(f"ds_read_b32 v{T}, v12 offset:{HX}")
            if n == 12 and m == 2: a("s_waitcnt vmcnt(8) lgkmcnt(0)"); a(f"v_cmp_gt_u32 vcc, 4, v{T}")
            if n == 13 and m == 0:
                a("s_cbranch_vccnz L_hd"); a("L_hd_x:"); odd = True
            if n == 13 and m == 1: a(f"s_mov_b32 s42, {f2u(2.0**-64):#x}")
            if n == 13 and m == 2: a(f"s_mov_b32 s43, {f2u(2.0**64):#x}")
            if n == 14: cwr(1, m)
            if n == 15 and m == 1: cwr(2, 2); cwr(2, 3)
            if n == 15 and m >= 2: cwr(3, 2*m-4); cwr(3, 2*m-3)
            softmax(n, m, odd)
    a("s_setprio 2")
    a("s_waitcnt lgkmcnt(0)")
    a(pv(15, 1))
    st(name="attend")
    lds_add(a, "v12", "v14", CW)
    lds_wait(a, "L_cw", "v12", f"v{T}", 4, off=CW)
    st(name="_Tc")
    for q in (3, 0, 1, 2):
        for j in range(3):
            a.lg(f"ds_read_b128 {vr(O+16+16*j+4*q,4)}, v{T+4} offset:{j*4096+q*1024}", q)
    def add3(q):
        a.wait(lg=q)
        for r in range(4*q, 4*q+4): a(f"v_add_f32 v{O+r}, v{O+r}, v{O+16+r}")
        for r in range(4*q, 4*q+4): a(f"v_add_f32 v{O+32+r}, v{O+32+r}, v{O+48+r}")
        for r in range(4*q, 4*q+4): a(f"v_add_f32 v{O+r}, v{O+r}, v{O+32+r}")
    add3(3)
    a(f"v_mov_b32 v{T}, v{O+12}")
    a(f"v_mov_b32 v{T+1}, v{O+12}")
    add3(0)
    a(f"v_permlane32_swap_b32 v{T}, v{T+1}")
    add3(1)
    a(f"v_cmp_le_f32 vcc, s42, v{T+1}")
    a(f"v_cmp_ge_f32 s[56:57], s43, v{T+1}")
    a(f"v_rcp_f32 v{T}, v{T+1}")
    add3(2)
    a("s_and_b64 vcc, vcc, s[56:57]")
    a("s_cmp_eq_u64 vcc, -1")
    a("s_cbranch_scc0 L_slow")
    a("L_fin:")
    for r in range(8): a(f"v_mul_f32 v{O+r}, v{O+r}, v{T}")
    for r in range(4): a(f"v_cvt_pk_bf16_f32 v{PP+r}, v{O+2*r}, v{O+2*r+1}")
    a.vm(f"buffer_store_dwordx4 {vr(PP,4)}, {vr(vL)}, s[24:27], s67 offen {SC1}", "st")
    for r in range(8, 16): a(f"v_mul_f32 v{O+r}, v{O+r}, v{T}")
    for r in range(4, 8): a(f"v_cvt_pk_bf16_f32 v{PP+r}, v{O+2*r}, v{O+2*r+1}")
    a(f"v_cndmask_b32 v{PP+6}, v{PP+6}, 0, s[40:41]")
    a(f"v_cndmask_b32 v{PP+7}, v{PP+7}, 0, s[40:41]")
    a.vm(f"buffer_store_dwordx4 {vr(PP+4,4)}, {vr(vL)}, s[24:27], s67 offen offset:1024 {SC1}", "st")
    st(name="_prefl2")
    a("v_mov_b32 v13, 0")
    a.wait(vm="all")
    arrive(a, "v13", "v12", "v14", 2)
    a.wait(lg="all")
    flag_if_last(a, "v13", "v14", "s60")
    st(name="fl2")
    if asmlib.STAMP and cfg.ITS:
        assert st.n <= 10
        st.n = 14; st.names += ["it"]*4
    a("L_c_end:")
    st.flush(63, 8)
    a("L_end:")
    a("s_endpgm")
    a("L_go:")
    poll(a, "L_p0", "v223", "v222", "s[12:15]", "0", 1)
    a("s_branch L_go_x")
    lds_wait(a, "L_hd", "v12", f"v{T}", 4, off=HX)
    a("s_branch L_hd_x")
    S1 = S + 16
    a("L_slow:")
    a("s_lshl_b32 s56, s65, 18")
    a(f"s_add_u32 s56, s56, {WS_KV}")
    a("s_mov_b32 s57, s56")
    a("s_mov_b32 s55, 64")
    a(f"v_mov_b32 v{T+2}, 0xff800000")
    a("s_waitcnt vmcnt(0)")
    a("L_slow1:")
    for j in range(2): a(f"buffer_load_dwordx4 {vr(KV+4*j,4)}, {vr(vL)}, s[24:27], s57 offen offset:{1024*j} {SC1}")
    a("s_waitcnt vmcnt(0)")
    a(qk(3, 0)); a(qk(3, 1))
    a("s_nop 7"); a("s_nop 7")
    for r in range(8): a(f"v_max3_f32 v{T+2}, v{S1+2*r}, v{S1+2*r+1}, v{T+2}")
    a("s_add_u32 s57, s57, 4096")
    a("s_sub_u32 s55, s55, 1"); a("s_cmp_lg_u32 s55, 0")
    a("s_cbranch_scc1 L_slow1")
    a(f"v_mov_b32 v{T+3}, v{T+2}")
    a("s_nop 1")
    a(f"v_permlane32_swap_b32 v{T+3}, v{T+2}")
    a("s_nop 1")
    a(f"v_max_f32 v{T+2}, v{T+2}, v{T+3}")
    for r in range(16): a(f"v_mov_b32 v{O+r}, 0")
    a("s_mov_b32 s55, 64")
    a("L_slow2:")
    for j in range(4): a(f"buffer_load_dwordx4 {vr(KV+4*j,4)}, {vr(vL)}, s[24:27], s56 offen offset:{1024*j} {SC1}")
    a("s_waitcnt vmcnt(0)")
    a(qk(3, 0)); a(qk(3, 1))
    a("s_nop 7"); a("s_nop 7")
    for r in range(16): a(f"v_sub_f32 v{S1+r}, v{S1+r}, v{T+2}")
    for r in range(16): a(f"v_exp_f32 v{S1+r}, v{S1+r}")
    a("s_nop 0")
    for r in range(8): a(f"v_cvt_pk_bf16_f32 v{PP+r}, v{S1+2*r}, v{S1+2*r+1}")
    a("s_nop 1")
    a(pv(3, 0)); a(pv(3, 1))
    a("s_add_u32 s56, s56, 4096")
    a("s_sub_u32 s55, s55, 1"); a("s_cmp_lg_u32 s55, 0")
    a("s_cbranch_scc1 L_slow2")
    a("s_nop 7"); a("s_nop 7")
    a(f"v_mov_b32 v{T}, v{O+12}")
    a(f"v_mov_b32 v{T+1}, v{O+12}")
    a("s_nop 1")
    a(f"v_permlane32_swap_b32 v{T}, v{T+1}")
    a("s_nop 1")
    a(f"v_rcp_f32 v{T}, v{T+1}")
    a("s_nop 0")
    a("s_branch L_fin")
    a("L_code_end:")

def gen_h(a, st):
    X0 = 16; ACCF = 128; AQ = 192
    AS = 144; vR = 148; LT = 152; vXD = 160; vX = 164; vTQ = 168; t = 172
    vTF = 1; vC = 3; vOne = 4; vG = 5; vL = 7
    a("s_setprio 1")
    mapping(a)
    a(f"v_lshrrev_b32 v{t+2}, 3, v0")
    a("s_lshl_b32 s51, s52, 5")
    a(f"v_add_u32 v{t+2}, s51, v{t+2}")
    a(f"v_mul_u32_u24 v{t+2}, 896, v{t+2}")
    a(f"v_lshrrev_b32 v{t+3}, 4, v0")
    a(f"v_and_b32 v{t+4}, 7, v0")
    a(f"v_xor_b32 v{t+3}, v{t+3}, v{t+4}")
    a(f"v_lshl_add_u32 {vr(vXD)}, v{t+3}, 4, v{t+2}")
    a(f"v_xor_b32 v{t+3}, 64, {vr(vXD)}")
    a(f"v_add_u32 {vr(vXD+1)}, 6144, v{t+3}")
    a(f"v_add_u32 {vr(vXD+2)}, {2*6144}, {vr(vXD)}")
    a(f"v_add_u32 {vr(vXD+3)}, {3*6144}, v{t+3}")
    a(f"s_mul_i32 s53, s44, {AR}")
    a(f"s_add_u32 s53, s53, {XS}")
    a("s_lshl_b32 s55, s3, 7")
    a(f"s_mov_b32 s30, {2048*448*2}")
    a("s_mov_b32 s31, 0x00020000")
    a("s_mov_b32 m0, s53")
    a("s_waitcnt lgkmcnt(0)")
    a("s_mov_b32 s28, s4"); a("s_mov_b32 s29, s5")
    st(name="_h0")
    def xload(cb):
        for rg in range(4):
            a.vm(f"buffer_load_dwordx4 {vr(vXD+rg)}, s[28:31], s55 offen offset:{rg*1024} lds", ("x", cb))
        if cb < 6:
            a(f"s_add_u32 m0, s53, {(cb+1)*4096}")
            a("s_add_u32 s55, s55, 128"); a("s_cmp_ge_u32 s55, 896"); a("s_cselect_b32 s55, 0, s55")
    for cb in range(cfg.XA - 1): xload(cb)
    ws_srd(a)
    xread_addr(a, vX, t)
    for i in range(4): a(f"v_mov_b32 v{AS+i}, 0")
    a(f"v_mov_b32 v{t+10}, 0")
    a(f"v_mov_b32 v{t+8}, 0x3f803f80")
    a("s_mov_b32 s61, 0xffff0000")
    a(f"v_mov_b32 {vr(vOne)}, 1")
    a(f"v_mov_b32 {vr(vC)}, {CNT}")
    a(f"v_lshlrev_b32 {vr(vL)}, 4, v0")
    a(f"v_and_b32 v{t+9}, 31, v0")
    a(f"v_cmp_eq_u32 vcc, 28, v{t+9}")
    a(f"v_lshl_add_u32 v{t+9}, v{t+9}, 2, {vr(vC)}")
    sigma(a, "s60", "s46")
    a(f"v_cndmask_b32 v6, 0, v{t+8}, vcc")
    a(f"v_lshrrev_b32 v{t+5}, 5, v0")
    a(f"v_bfe_u32 v{t+2}, v0, 2, 2")
    a(f"v_lshl_add_u32 v{t+2}, v{t+5}, 3, v{t+2}")
    a(f"v_and_b32 v{t+3}, 3, v0")
    a(f"v_bfe_u32 v{t+4}, v0, 4, 1")
    a(f"v_mul_u32_u24 v{t+5}, 224, v{t+2}")
    a(f"v_lshl_add_u32 v{t+5}, v{t+3}, 3, v{t+5}")
    a(f"v_mul_u32_u24 v{t+6}, {OU}, v{t+4}")
    a(f"v_add_u32 {vr(vTF)}, v{t+5}, v{t+6}")
    a(f"v_mul_u32_u24 v{t+6}, {2*AR+128}, v{t+4}")
    a(f"v_add_u32 v{t+5}, {XS-128}, v{t+5}")
    a(f"v_add_u32 {vr(vTF+1)}, v{t+5}, v{t+6}")
    a(f"v_mul_u32_u24 v{t+5}, 192, v{t+2}")
    a(f"v_lshl_add_u32 v{t+5}, v{t+3}, 3, v{t+5}")
    a(f"v_lshl_add_u32 v{t+5}, v{t+4}, 5, v{t+5}")
    a("s_and_b32 s51, s60, 1")
    a("s_lshl_b32 s51, s51, 3")
    a(f"v_add_u32 {vr(vTQ)}, s51, v{t+5}")
    a(f"v_add_u32 {vr(vTQ+1)}, {XS}, {vr(vTQ)}")
    a(f"v_add_u32 {vr(vTQ+2)}, {XS+2*AR}, {vr(vTQ)}")
    a("s_mul_i32 s54, s60, 3")
    for i in range(3):
        a(f"s_add_u32 s51, s54, {i}")
        a(f"s_lshr_b32 s62, s51, 4")
        a("s_and_b32 s51, s51, 15")
        a("s_lshl_b32 s51, s51, 6")
        a("s_add_u32 s51, s51, s52")
        a("s_lshl_b32 s56, s51, 11")
        a("s_lshl_b32 s57, s51, 12")
        a(f"s_lshl_b32 s58, s62, 11")
        a("s_add_u32 s57, s57, s58")
        a(f"s_add_u32 s57, s57, {WS_KV-2048}")
        a(f"s_cmp_eq_u32 s62, 0")
        a(f"s_cselect_b32 s{32+i}, s56, s57")
        a(f"s_cselect_b32 s{35+i}, {f2u(QSCALE):#x}, 1.0")
    a("s_mov_b32 s42, 0"); a("s_mov_b32 s43, -1")
    a("s_mov_b32 s38, 0x0fffffff"); a("s_mov_b32 s39, 0x0fffffff")
    st(name="_hsetup")
    xload(cfg.XA - 1)
    def dots(cb):
        for r in range(X0+16*cb, X0+16*cb+16):
            a(f"v_dot2c_f32_bf16 v{AS+(r&1)}, v{r}, v{t+8}")
            a(f"v_dot2c_f32_bf16 v{AS+2+(r&1)}, v{r}, v{r}")
    for cb in range(7):
        a.wait(vm=("x", cb))
        st(name=("" if cb == 6 else "_") + f"x{cb}")
        for sp in range(4): a.lg(f"ds_read_b128 {vr(X0+16*cb+4*sp,4)}, {vr(vX+sp)} offset:{cb*4096}", ("x", cb))
        if cb + cfg.XA < 7: xload(cb + cfg.XA)
        if cb == cfg.BX: a("s_barrier")
        if cb == 6:
            a("s_cmp_lg_u32 s44, 1")
            a("s_cbranch_scc1 L_nocnt")
            a(f"ds_write_b32 v{t+9}, v{t+10}")
            a("L_nocnt:")
        if cb:
            a.wait(lg=("x", cb-1)); dots(cb-1)
    a.wait(lg="all")
    a("s_barrier")
    dots(6)
    a(f"s_mov_b32 s51, {f2u(1/448):#x}")
    a(f"s_mov_b32 s55, {f2u(1e-5):#x}")
    a("s_nop 0")
    a(f"v_add_f32 v{AS}, v{AS}, v{AS+1}")
    a(f"v_add_f32 v{AS+2}, v{AS+2}, v{AS+3}")
    a(f"v_mov_b32 v{AS+1}, v{AS}")
    a(f"v_mov_b32 v{AS+3}, v{AS+2}")
    a("s_nop 1")
    a(f"v_permlane32_swap_b32 v{AS+1}, v{AS}")
    a(f"v_permlane32_swap_b32 v{AS+3}, v{AS+2}")
    a("s_nop 1")
    a(f"v_add_f32 v{AS}, v{AS}, v{AS+1}")
    a(f"v_add_f32 v{AS+2}, v{AS+2}, v{AS+3}")
    a(f"v_mul_f32 v{AS}, s51, v{AS}")
    a(f"v_mul_f32 v{AS+2}, s51, v{AS+2}")
    a(f"v_fma_f32 v{AS+2}, -v{AS}, v{AS}, v{AS+2}")
    a(f"v_max_f32 v{AS+2}, 0, v{AS+2}")
    a(f"v_add_f32 v{AS+2}, s55, v{AS+2}")
    a(f"v_rsq_f32 v{vR}, v{AS+2}")
    a("s_nop 0")
    a(f"v_mul_f32 v{vR+1}, -v{AS}, v{vR}")
    st(name="_t0")
    def ln_pk(k):
        for i in range(4):
            r = X0 + 4*k + i
            a(f"v_lshlrev_b32 v{LT+2*i}, 16, v{r}"); a(f"v_and_b32 v{LT+2*i+1}, s61, v{r}")
        for i in range(4): a(f"v_pk_fma_f32 {vr(LT+2*i,2)}, {vr(LT+2*i,2)}, {vr(vR,2)}, {vr(vR,2)} op_sel:[0,0,1] op_sel_hi:[1,0,1]")
        for i in range(4): a(f"v_cvt_pk_bf16_f32 v{X0+4*k+i}, v{LT+2*i}, v{LT+2*i+1}")
    K0 = cfg.K0; KT = 28 - K0; NA = 84
    KQ = cfg.KQ
    order = [("q", k, tl) for k in range(KQ) for tl in range(3)] + [("q", k, tl) for tl in range(3) for k in range(KQ, 28)]
    nxt = [0]*7; AV = [0, 0, 0, 0] + list(cfg.AV)
    for ff in range(7*K0):
        tl = min((t_ for t_ in range(7) if ff >= AV[t_] and nxt[t_] < K0), key=lambda t_: (nxt[t_], t_))
        order.append(("f", nxt[tl], tl)); nxt[tl] += 1
    order += [("f", k, tl) for tl in range(7) for k in range(K0, 28)]
    lastq = {tl: max(f for f in range(NA) if order[f][2] == tl) for tl in range(3)}
    chunk = lambda f: order[f][1] // 4 + (7 if order[f][0] == "f" else 0)
    first = {c: min(f for f in range(len(order)) if chunk(f) == c) for c in range(14)}
    last = {c: max(f for f in range(len(order)) if chunk(f) == c) for c in range(14)}
    xlast = {max(f for f in range(len(order)) if order[f][1] == k): k for k in range(6)}
    LE = min(79, lastq[0] - 2 - (1 if KQ < 26 else 0))
    JOIN = last[7] + 1
    NM = len(order); SC = NA + 7*K0
    HP = 52
    ACC = 16; HR = 80; W = 112; WREG = 128
    vD = 12; vD2 = 2; vT0 = 8; vT1 = 9; vP = 10; vL1 = 11; u = 44
    SK = [70, 71, 72, 73, 74, 75, 76]
    late = ["s_and_b32 s40, s44, 1", "s_lshr_b32 s41, s44, 1", f"s_mul_i32 s77, s44, {RNG}",
            f"s_mul_i32 s65, s52, {144*1024}", f"s_mul_i32 s51, s46, {7*1024}", "s_add_u32 s65, s65, s51", f"s_add_u32 s65, s65, {WS_A}", "s_add_u32 s66, s65, 4096",
            "s_lshl_b32 s46, s50, 7", f"s_mul_i32 s0, s44, {448*896}", "s_add_u32 s0, s0, s46",
            f"s_mul_i32 s1, s40, {8*28*128}", f"s_add_u32 s1, s1, {WOS}", "s_sub_u32 s1, s1, s77",
            f"s_mul_i32 s51, s49, {2*144*1024}", f"s_mul_i32 s55, s44, {28*1024}", "s_add_u32 s55, s55, s51", f"s_add_u32 s55, s55, {WS_A}",
            f"s_mul_i32 s21, s41, {144*1024}", "s_add_u32 s20, s55, s21", "s_add_u32 s69, s51, s21", "s_sub_u32 s21, s55, s21", f"s_add_u32 s21, s21, {144*1024}",
            "s_lshl_b32 s51, s40, 14", "s_add_u32 s69, s69, s51", f"s_add_u32 s69, s69, {WS_A+112*1024}",
            "s_lshr_b32 s68, s49, 1", "s_lshl_b32 s68, s68, 11",
            "s_lshl_b32 s51, s44, 9", "s_add_u32 s47, s68, s51", f"s_add_u32 s47, s47, {WS_F+32768}",
            "s_lshl_b32 s51, s40, 10", "s_add_u32 s68, s68, s51", f"s_add_u32 s68, s68, {WS_F+65536}",
            "s_lshl_b32 s45, s49, 1", "s_add_u32 s45, s45, s41", "s_lshl_b32 s45, s45, 5",
            f"s_mul_i32 s7, s44, {14*1024}", f"s_mul_i32 s6, s44, {14*8*896}", "s_add_u32 s6, s6, s46",
            "s_lshl_b32 s51, s40, 6", "s_add_u32 s46, s46, s51", "s_mov_b32 s51, s64", "s_add_u32 s59, s59, 32768"]
    for g in range(7):
        late.append(f"s_lshl_b32 s{SK[g]}, s51, 12")
        if g < 6: late += ["s_add_u32 s51, s51, 1", "s_cmp_ge_u32 s51, 7", "s_cselect_b32 s51, 0, s51"]
    b_ = Asm(); srd(b_, 28, 16, 1792*448*2); srd(b_, 12, 8, 448*448*2); srd(b_, 8, 4, 2048*448*2)
    late += [l.strip() for l in b_.L]
    late += [f"v_lshrrev_b32 v{u}, 3, v0", f"v_bfe_u32 v{u+3}, v0, 4, 1", f"v_lshlrev_b32 v{u+1}, 2, v{u+3}", f"v_and_b32 v{u+2}, 7, v0",
             f"v_xor_b32 v{u+2}, v{u+2}, v{u+1}", f"v_mul_u32_u24 v{u}, 896, v{u}", f"v_lshl_add_u32 {vr(vD)}, v{u+2}, 4, v{u}",
             f"v_bfe_u32 v{u}, v0, 2, 2", f"v_lshrrev_b32 v{u+4}, 5, v0", f"v_lshl_add_u32 v{u+1}, v{u+4}, 2, v{u}", f"v_lshlrev_b32 v{u+1}, 7, v{u+1}",
             f"v_and_b32 v{u+2}, 3, v0", f"v_lshl_add_u32 v{u+1}, v{u+2}, 3, v{u+1}", f"v_lshl_add_u32 v{u+1}, v{u+3}, 5, v{u+1}", f"v_lshrrev_b32 v{u}, 1, v{u}",
             f"v_xor_b32 v{u}, s40, v{u}", f"v_lshl_add_u32 v{u+1}, v{u}, 6, v{u+1}", f"v_add_u32 {vr(vT0)}, s77, v{u+1}", f"v_xor_b32 {vr(vT1)}, 64, {vr(vT0)}",
             f"v_and_b32 v{u}, 31, v0", f"v_add_u32 v{u}, s45, v{u}", f"v_mul_u32_u24 v{u}, 896, v{u}", f"v_lshl_add_u32 v{u}, v{u+4}, 4, v{u}", f"v_add_u32 v6, s46, v{u}",
             f"v_add_u32 v13, s1, {vr(vT0)}", "v_xor_b32 v14, 64, v13",
             f"v_bfe_u32 {vr(vP)}, v0, 1, 2", f"v_lshlrev_b32 {vr(vP)}, 7, {vr(vP)}",
             f"v_add_u32 v15, s20, {vr(vL)}", f"v_add_u32 {vr(vL1)}, s21, {vr(vL)}"]
    early = ["s_lshl_b32 s59, s45, 4", "s_add_u32 s59, s59, s46", "s_lshl_b32 s59, s59, 7", f"s_add_u32 s59, s59, {WS_F}", "v_mov_b32 v6, 0"]
    class Z: pass
    z = Z()
    tmp = [128, 132, 136, 140]
    z.pool = [240, 244, 248, 252, 8, 12] + tmp; z.freg = {}; z.rp = 0; z.waited = -1; z.lim = 1; z.epiq = []
    z.lq = []
    for k in range(cfg.LPRE, 28): z.lq += [(k, o) for o in ln_ops(X0, k, LT, vR, 4)]
    checks = {first[2] - 7: ("gq24", GQ1, 3), first[4] - 7: ("gq48", GQ2, 4), first[5] - 7: ("gq60", GQ3, 5), first[6] - 7: ("gq72", GQ4, 6), NA - 7: ("gate0", GATE(0), 7)}
    GL = [1, 2, 4, 5] + ([6] if K0 == 24 else [])
    for g in GL: checks[first[7+g] - 8] = (f"gate{g}", GATE(g), 10 if g == 2 else 7 + g if g < GL[-1] else 13)
    assert all(b - a_ >= 4 for a_, b in zip(sorted(checks), sorted(checks)[1:]))
    ool = []
    def frag(f):
        p, k, tl = order[f]; g, sp = k // 4, k % 4
        c = [r_ for r_ in z.pool if not (r_ in tmp and f >= NA)]
        if not c: return False
        reg = c[0]; z.pool.remove(reg); z.freg[f] = reg
        for rd in range(2):
            if p == "q":
                if g < 4: ad, off = vTQ, g*12288 + 16*sp*192
                else: ad, off = vTQ + 1 + sp//2, (sp % 2)*AR + QA[g]
                off += 4*rd*192 + tl*56
            else:
                if FSLOT[g] == "D": ad, off = vTF, 16*sp*224
                else: ad, off = vTF+1, FA[FSLOT[g]] + (sp//2)*AR + 16*(sp % 2)*224
                off += 4*rd*224 + tl*32
            a.lg(f"ds_read_b64_tr_b16 {vr(reg+2*rd,2)}, {vr(ad)} offset:{off}", ("f", f))
        return True
    def epi_q(tl, var):
        b = AQ + 16*tl
        o = [] if var else [f"v_mul_f32 v{b+r}, s{35+tl}, v{b+r}" for r in range(16)]
        o += [f"v_cvt_pk_bf16_f32 v{b+r}, v{b+2*r}, v{b+2*r+1}" for r in range(8)]
        o += [f"v_cndmask_b32 v{b+r}, v6, v{b+r}, s[38:39]" for r in range(8)] if var else [f"v_cndmask_b32 v{b+r}, v{b+r}, 0, s[42:43]" for r in (6, 7)]
        if tl == 2 and not var: o.append(("mix",))
        o += [("vm", f"buffer_store_dwordx4 {vr(b+4*q,4)}, {vr(vL)}, s[24:27], s{32+tl} offen offset:{1024*q} {SC1}") for q in range(2)]
        return [(tl, x) for x in o]
    def epi_f(tl):
        b = ACCF + 16*tl
        return [(None, x) for x in [f"v_max_f32 v{b+r}, 0, v{b+r}" for r in range(8)] + [f"v_mul_f32 v{b+r}, v{b+r}, v{b+8+r}" for r in range(8)] +
                [f"v_cvt_pk_bf16_f32 v{HP+4*tl+r}, v{b+2*r}, v{b+2*r+1}" for r in range(4)]]
    epi_at = {SC + KT*tl + KT - 1 + 3: epi_f(tl) for tl in range(7)}
    def put(x):
        if isinstance(x, str): a(x); return 1
        if x[0] == "vm": a.vm(x[1], "st"); return 4
        a("s_cmp_eq_u32 s60, 10"); a("s_cbranch_scc1 L_mix"); a("L_mix_x:"); return 2
    def stream(lo, hi, var):
        sfx = "v" if var else ""
        for f in range(lo, hi):
            p, k, tl = order[f]; ff = f - NA
            used = 0
            if p == "f" and tl >= 4 and k == 0:
                flushed = False
                while any(e[0] is not None and e[0] <= tl - 4 for e in z.epiq): put(z.epiq.pop(0)[1]); flushed = True
                if flushed: a("s_nop 1")
            if f > z.waited:
                z.waited = min(NM-1, f + (2 if p == "q" else 1 if z.rp - f < 7 else 3), z.rp-1)
                assert z.waited >= f
                wait_lg_tags(a, [("f", z.waited)])
            assert not z.lq or z.lq[0][0] > k
            acc = vr((AQ if p == "q" else ACCF) + 16*tl, 16)
            ab = [vr(z.freg[f], 4), vr(X0+4*k, 4)]
            sw = var if p == "q" else 0
            a(f"v_mfma_f32_32x32x16_bf16 {acc}, {ab[sw]}, {ab[1-sw]}, {'0' if k == 0 else acc}")
            st(name=f"_a{f}" if p == "q" else f"_f{ff}")
            if f == z.waited: used += 1
            if f >= 1 and not (z.freg[f-1] in (8, 12) and f > max(xlast)): z.pool.append(z.freg[f-1])
            if f - 1 in xlast: z.pool.append(X0 + 4*xlast[f-1])
            for t_ in range(3):
                if f == lastq[t_] + 3: z.epiq += epi_q(t_, var)
            if f == JOIN + 2: z.epiq += [(None, x) for x in early]
            if f in epi_at: z.epiq += epi_at.pop(f)
            sig = {33: CQ2, 57: CE, last[7]: CONS(0), last[8]: CONS(1)}
            if cfg.EW: sig[last[9]] = CONS(2)
            if f in sig:
                if f < NA: assert z.waited >= f + 2
                lds_add(a, vr(vC), vr(vOne), sig[f], "c"); used += 3
            if f == 81: st(name="b7")
            if f + 3 in checks:
                a.lg(f"ds_read_b32 {vr(vG)}, {vr(vC)} offset:{checks[f+3][1]}", "g"); used += 1
            if f + 1 in checks:
                a.wait(lg="g"); a(f"v_cmp_gt_u32 vcc, 4, {vr(vG)}"); used += 2
            if f in checks:
                lab = f"L_{checks[f][0]}{sfx}"
                st(name=f"_pre{checks[f][0]}")
                a(f"s_cbranch_vccnz {lab}"); a(f"{lab}_x:"); used += 1
                ool.append((lab, checks[f][1]))
                z.lim = checks[f][2]
                st(name=f"_{checks[f][0]}")
            if ff == cfg.FL:
                assert not z.epiq
                assert z.lim >= 9
                st(name="_prefl0")
                a.wait(vm="all")
                if cfg.CF: lds_add(a, vr(vC), vr(vOne), AF, "c"); st(name="fl0")
                else: arrive(a, "v6", vr(vC), vr(vOne), 0, "ar")
                used += 4
            if ff == cfg.FL + 3 and not cfg.CF:
                a.wait(lg="ar")
                flag_if_last(a, "v6", vr(vOne), "s59"); used += 5
                st(name="fl0")
            if cfg.SA and used <= 1 and z.epiq and isinstance(z.epiq[0][1], tuple) and z.epiq[0][1][0] == "vm" and z.rp > f + 3 and f < JOIN - 4:
                put(z.epiq.pop(0)[1]); continue
            n = 0
            while z.rp < NM and chunk(z.rp) <= z.lim and z.rp <= f + 8 and n < 2 and frag(z.rp):
                z.rp += 1; n += 1; used += 2
            take = -(-len(z.lq) // max(1, LE - f))
            for q in range(min(take, len(z.lq))): a(z.lq.pop(0)[1]); used += 1
            while z.epiq and used < (cfg.SLOTS if ff < cfg.LP0 else 8):
                if cfg.SA and isinstance(z.epiq[0][1], tuple) and z.epiq[0][1][0] == "vm":
                    c = [q for q, e in enumerate(z.epiq) if isinstance(e[1], str)]
                    if not c: break
                    used += put(z.epiq.pop(c[0])[1])
                else: used += put(z.epiq.pop(0)[1])
            if ff >= cfg.LP0 and used < cfg.LPN: a(f"s_nop {cfg.LPN - used - 1}")
            if ff > max(cfg.FL + 5, 72):
                assert 8 not in z.pool and 12 not in z.pool and all(z.freg[q] not in (8, 12) for q in range(f, z.rp))
                n = 0
                while late and used < cfg.SLOTS - 1 and n < 2: a(late.pop(0)); used += 1; n += 1
    a.raw(".p2align 3")
    for k in range(cfg.LPRE - cfg.LP2 - 1): ln_pk(k)
    a(f"ds_read_b32 {vr(vG)}, {vr(vC)} offset:{GQ0}")
    ln_pk(cfg.LPRE - cfg.LP2 - 1)
    st(name="_p0")
    a("s_waitcnt lgkmcnt(0)")
    a(f"v_cmp_gt_u32 vcc, 4, {vr(vG)}")
    a("s_cmp_ge_u32 s60, 11")
    a("s_nop 2")
    a("s_cbranch_vccnz L_gq0"); a("L_gq0_x:"); ool.append(("L_gq0", GQ0))
    st(name="b0")
    for k in range(7): frag(k); z.rp += 1
    for k in range(cfg.LPRE - cfg.LP2, cfg.LPRE): ln_pk(k)
    a("s_cbranch_scc1 L_pav")
    import copy
    saved = (list(a.vmq), list(a.lgq), st.n, list(st.names), len(a.L), copy.deepcopy(z.__dict__))
    a.raw(".p2align 3")
    a("L_pav:")
    stream(0, JOIN, 1)
    a("s_branch L_pav_x")
    endv = (list(a.vmq), list(a.lgq), copy.deepcopy(z.__dict__))
    vcode = a.L[saved[4]:]; a.L = a.L[:saved[4]]
    a.vmq, a.lgq, st.n, st.names = saved[0], saved[1], saved[2], saved[3]
    z.__dict__.update(saved[5])
    stream(0, JOIN, 0)
    assert endv == (a.vmq, a.lgq, z.__dict__)
    a("L_pav_x:")
    stream(JOIN, NM, 0)
    assert not late
    lds_add(a, vr(vC), vr(vOne), HD-CNT)
    for e in z.epiq: put(e[1])
    a(f"v_add_u32 {vr(vD2)}, {8*896-1024}, {vr(vD)}")
    a("v_mov_b32 v1, 0")
    a("s_nop 5")
    for k in sorted(epi_at):
        for e in epi_at[k]: put(e[1])
    st(name="hg1")
    assert cfg.HST == 0
    def pace(n):
        if len(a.vmq) > n:
            a(f"s_waitcnt vmcnt({n})"); a.vmq = a.vmq[len(a.vmq)-n:]
    def hstore(tl): a.vm(f"buffer_store_dwordx4 {vr(HP+4*tl,4)}, {vr(vL)}, s[24:27], {'s65' if tl < 4 else 's66'} offen offset:{1024*(tl%4)} {SC1}", "st")
    def hflag():
        arrive(a, "v1", vr(vC), vr(vOne), 1)
        a.wait(lg="all")
        flag_if_last(a, "v1", vr(vOne), "s59")
    if cfg.HST != 1: lds_wait(a, "L_ha", vr(vC), "v5", 4, sleep=2, off=HA-CNT)
    st(name="_ha")
    keep = list(a.vmq)
    a("s_cmp_lt_u32 s50, 7")
    a("s_cbranch_scc1 L_htile")
    lds_add(a, vr(vC), vr(vOne), HX)
    for tl in range(7 if cfg.HST == 0 else 0):
        pace(1); hstore(tl)
    a.wait(vm="all"); hflag()
    a("s_branch L_h_end")
    a("L_htile:")
    a.vmq = keep
    a(f"s_setprio {cfg.PH2}")
    for i in range(2): a.vm(f"buffer_load_dwordx4 {vr(HR+4*i,4)}, v6, s[8:11], 0 offen offset:{32*i}", "x")
    lds_wait(a, "L_hdh", vr(vC), "v5", 4, off=HD-CNT)
    def slot(i): return (CB1 + 2048*i) if i < 6 else RB + 2048*((i - 6) % 6 if i < 22 else i - 22)
    def wdma(i, half):
        if half == 0:
            a(f"s_add_u32 m0, s77, {slot(i)}")
            a(f"s_mul_i32 s4, s{SK[i//4]}, 14")
            a("s_add_u32 s4, s4, s0")
            if i % 4: a(f"s_add_u32 s4, s4, {(i%4)*16*896}")
            a.vm(f"buffer_load_dwordx4 {vr(vD)}, s[28:31], s4 offen lds", ("w", i))
        else:
            a.vm(f"buffer_load_dwordx4 {vr(vD2)}, s[28:31], s4 offen offset:1024 lds", ("w", i))
    def wodma(k):
        a(f"s_add_u32 m0, s7, {WOS+k*1024}")
        a(f"s_add_u32 s5, s6, {k*8*896}")
        a.vm(f"buffer_load_dwordx4 {vr(vD)}, s[12:15], s5 offen lds", "wo")
    wlate = {}
    def wreg(i): return wlate[i] if i >= 22 else WREG + 8*(i-6) if i >= 6 else W + 8*(i & 1)
    def reads(i):
        for ct in range(2):
            for r_ in range(2):
                a.lg(f"ds_read_b64_tr_b16 {vr(wreg(i)+4*ct+2*r_,2)}, {vr(vT0+ct)} offset:{slot(i)+r_*1024}", ("r", i))
    seq = list(range(6, 22)) + ([5] if cfg.EW else list(range(6))) + [("wo", k) for k in range(0, cfg.WOP, 2)]
    woq = list(range(cfg.WOP, 14))
    rd = 6; nst = 7 if cfg.HST else 0; flagged = False
    for n, it in enumerate(seq):
        V1 = cfg.V1 if n < cfg.VN else cfg.V1B
        for q in range(cfg.HSN):
            if nst < 7 and n % cfg.HSI == 0:
                pace(V1); hstore(nst); nst += 1
        if isinstance(it, tuple):
            for k in (it[1], it[1]+1):
                pace(V1); wodma(k)
        else:
            if 12 <= it < 22:
                while rd <= it - 6:
                    a.wait(vm=("w", rd)); reads(rd); rd += 1
                a.wait(lg=("r", it-6))
            for half in range(2):
                pace(V1); wdma(it, half)
        while rd < 22 and rd in seq[:n+1] and a._cnt(a.vmq, ("w", rd)) is None:
            if len(a.lgq) >= 12: a.wait(lg="all")
            reads(rd); rd += 1
        if nst == 7 and not flagged and a._cnt(a.vmq, "st") is None:
            hflag(); flagged = True
            st(name="hfl1")
    assert flagged
    st(name="hpre")
    poll(a, "L_p2", "v5", vr(vP), "s[24:27]", "s47", 1, sleep=8)
    st(name="hpoll2")
    while rd < 22:
        if len(a.lgq) >= 12: a.wait(lg="all")
        reads(rd); rd += 1
    for b in (0, 4):
        a(f"v_permlane32_swap_b32 v{HR+b}, v{HR+b+2}")
        a(f"v_permlane32_swap_b32 v{HR+b+1}, v{HR+b+3}")
    a("s_mov_b32 s51, 0xffff0000")
    for i in range(8):
        a(f"v_lshlrev_b32 v{ACC+2*i}, 16, v{HR+i}")
        a(f"v_and_b32 v{ACC+2*i+1}, s51, v{HR+i}")
    srd(a, 8, 18, 2048*448*2)
    a(f"v_and_b32 {vr(vP)}, 7, v0")
    a(f"v_lshlrev_b32 {vr(vP)}, 7, {vr(vP)}")
    a.wait(lg="all")
    hpool = [HR + 8*k for k in range(4)]
    hreg = {}
    opq = []
    nh = [0]
    def hload(i, tt):
        if tt == 0: hreg[i] = hpool.pop(0)
        a.vm(f"buffer_load_dwordx4 {vr(hreg[i]+4*tt,4)}, {vr(15 if tt == 0 else vL1)}, s[24:27], s{SK[i//4]} offen offset:{1024*(i%4)} {SC1}", ("h", i))
    ringq = [(i, half) for i in range(22, 28) for half in range(2)]
    def next_op(v):
        k = nh[0]
        if ringq and ringq[0][1] == 1: pace(v); wdma(*ringq.pop(0))
        elif k < 56 and (k % 2 or hpool): pace(v); hload(k // 2, k % 2); nh[0] += 1
        elif ringq: pace(v); wdma(*ringq.pop(0))
        elif woq: pace(v); wodma(woq.pop(0))
        else: return False
        return True
    for k in range(8): next_op(cfg.V2)
    reads(0)
    assert 15 <= cfg.N1 <= cfg.EP <= 19
    PA = [None, 12, 2, 11]
    def dmf(i, m):
        tt, ct = m // 2, m % 2
        acc = vr(ACC+16*m, 16)
        a(f"v_mfma_f32_32x32x16_bf16 {acc}, {vr(wreg(i)+4*ct,4)}, {vr(hreg[i]+4*tt,4)}, {'0' if (i == 0 and m) else acc}")
    nr = 22
    for i in range(22):
        if i == cfg.N1:
            while next_op(cfg.V3): pass
            assert nh[0] == 56 and not ringq and not woq
            a(f"v_add_u32 v1, s77, {vr(vL)}")
            for j in range(1, 4):
                a(f"s_xor_b32 s51, s44, {j}")
                a(f"s_mul_i32 s51, s51, {RNG}")
                a(f"v_add_u32 v{PA[j]}, s51, {vr(vL)}")
            a("s_lshl_b32 s51, s41, 2")
            a(f"v_add_u32 v15, s51, {vr(vC)}")
            a("s_mov_b32 s12, s22"); a("s_mov_b32 s13, s23")
            hpool += [W, W + 8]
            st(name="hN1")
            lds_wait(a, "L_ca", vr(vC), "v5", 1, sleep=1, off=CW)
        if i == cfg.EP: a.vm(f"buffer_load_dword v5, {vr(vP)}, s[24:27], s68 offen {SC1}", "p3")
        if i + 1 < 6:
            a.wait(vm=("w", i+1)); reads(i+1)
        assert nh[0] >= 2*i + 2
        a.wait(vm=("h", i), lg=("r", i))
        if i == 5: lds_add(a, vr(vC), vr(vOne), HX, "c")
        for m in range(4):
            dmf(i, m)
            if m == 0 and i >= 1:
                hpool.append(hreg[i-1])
                if 6 <= i-1: hpool.append(wreg(i-1))
            if i < cfg.N1:
                next_op(cfg.V2)
                if cfg.PAD: a(f"s_nop {cfg.PAD-1}")
            if i >= 19 and m in (0, 2):
                wlate[nr] = hpool.pop(0)
                a.wait(vm=("w", nr));
                if len(a.lgq) > 8: a.wait(lg=("r", nr-2))
                reads(nr); nr += 1
            if i == 21 and m == 1:
                a.wait(vm="all")
                a("v_cmp_gt_u32 vcc, 1, v5")
            if i == 21 and m == 3:
                a("s_cmp_eq_u64 vcc, 0")
                a(f"s_cselect_b32 s14, {WS_BYTES}, 0")
    assert nr == 28
    oreg = {}
    def oload(k, srd_):
        if k == 0: a("s_mov_b32 s4, s69")
        elif k % 4 == 0: a("s_add_u32 s4, s4, 4096")
        if k not in oreg:
            b = hpool.pop(0); oreg[k] = b; oreg[k+1] = b + 4
        a.vm(f"buffer_load_dwordx4 {vr(oreg[k],4)}, {vr(vL)}, {srd_}, s4 offen offset:{1024*(k%4)} {SC1}", ("o", k))
    a.wait(lg="all")
    no = 0
    for q, (i, m) in enumerate([(i, m) for i in range(22, 28) for m in (2, 3)]):
        dmf(i, m)
        if q == 0: hpool += [hreg[21], wreg(21)]
        oload(no, "s[12:15]"); no += 1
    for q, (i, m) in enumerate([(i, m) for i in range(22, 28) for m in (0, 1)]):
        dmf(i, m)
        if m == 0 and i > 22: hpool += [hreg[i-1], wreg(i-1)]
        if q < 2:
            for z in range(2): oload(no, "s[12:15]"); no += 1
        if q == 2: a("s_nop 3")
        if 2 <= q < 10: a(f"ds_write_b128 v1, {vr(ACC+32+4*(q-2),4)} offset:{RB+4096+(q-2)*1024}")
        if q == 10: lds_add(a, vr(vC), vr(vOne), R1)
    st(name="hdown")
    a("v_and_b32 v8, 0xfffffdff, v13"); a("v_and_b32 v9, 0xfffffdff, v14")
    WFB = [hpool.pop(0) for k in range(5)]
    def wf(k): return WFB[(k % 10)//2] + 4*(k % 2)
    morder = [(stp, 1) for stp in range(cfg.LAG)]
    for stp in range(16):
        if stp + cfg.LAG < 16: morder.append((stp + cfg.LAG, 1))
        morder.append((stp, 0))
    def wrd(k):
        stp, ct = morder[k]
        row = 28*(stp//2) + 16*(stp % 2)
        for r_ in range(2):
            ad = (8 if (stp == 15 and r_) else 13) + ct
            a.lg(f"ds_read_b64_tr_b16 {vr(wf(k)+2*r_,2)}, v{ad} offset:{(row+8*r_)*128}", ("w", k))
    lds_wait(a, "L_r1", vr(vC), "v5", 4, off=R1)
    for k in range(3): wrd(k)
    for j in (2, 3):
        for q in range(4): a.lg(f"ds_read_b128 {vr(ACC+16*j+4*q,4)}, v{PA[j]} offset:{RB+(j-1)*4096+q*1024}", ("p", j))
    st(name="hred")
    a("s_cmp_lg_u32 s14, 0")
    a("s_cbranch_scc1 L_early")
    poll(a, "L_p3", "v5", vr(vP), "s[24:27]", "s68", 1, sleep=cfg.PS3)
    for k in range(16): oload(k, "s[24:27]")
    a("L_early:")
    st(name="hpoll3")
    last1 = max(k for k in range(32) if morder[k][1] == 1)
    adds = [f"v_add_f32 v{ACC+32+r}, v{ACC+32+r}, v{ACC+48+r}" for r in range(16)] + [f"v_add_f32 v{ACC+r}, v{ACC+r}, v{ACC+32+r}" for r in range(16)]
    wp = 3
    for k in range(32):
        stp, ct = morder[k]
        if ct == 0: assert not adds
        a.wait(vm=("o", stp), lg=(("w", k) if k < 4 else ("w", min(31, k+1)) if k % 2 == 0 else None))
        acc = vr(ACC+16*ct, 16)
        a(f"v_mfma_f32_32x32x16_bf16 {acc}, {vr(wf(k),4)}, {vr(oreg[stp],4)}, {acc}")
        if k == 1: a.wait(lg=("p", 3))
        for z in range(2 if k else 0):
            if wp < 32 and wp <= k + 6: wrd(wp); wp += 1
        if 1 <= k < cfg.LAG:
            for z in range(-(-len(adds) // (cfg.LAG - k))): a(adds.pop(0))
        if k == cfg.LAG + 2 and cfg.OT:
            for s_ in ("s_xor_b32 s51, s44, 2", f"s_mul_i32 s51, s51, {RNG}", "s_add_u32 s51, s51, 4096", "v_and_b32 v2, 31, v0", "v_mul_u32_u24 v2, 80, v2"): a(s_)
        if k == cfg.LAG + 3 and cfg.OT:
            for s_ in ("v_lshrrev_b32 v5, 5, v0", "v_lshl_add_u32 v2, v5, 3, v2", "v_add_u32 v2, s51, v2", "v_lshrrev_b32 v5, 2, v0"): a(s_)
        if k == cfg.LAG + 4 and cfg.OT:
            for s_ in ("v_mul_u32_u24 v11, 80, v5", "v_and_b32 v10, 3, v0", "v_lshl_add_u32 v11, v10, 4, v11", "v_add_u32 v11, s51, v11"): a(s_)
        if k == cfg.LAG + 5 and cfg.OT:
            for s_ in ("v_add_u32 v5, s45, v5", "v_mul_u32_u24 v5, 896, v5", "v_lshl_add_u32 v5, v10, 4, v5", "v_add_u32 v6, s46, v5", f"s_mov_b32 s51, {16*896}"): a(s_)
        if k == last1 + 2:
            a("s_nop 7")
            for q in range(4): a.lg(f"ds_write_b128 v1, {vr(ACC+16+4*q,4)} offset:{RB+q*1024}", "e")
            lds_add(a, "v15", vr(vOne), RX, "e")
    st(name="homf")
    PT = ACC + 32; OF = ACC + 48
    lds_wait(a, "L_rx", "v15", "v5", 2, off=RX)
    for q in range(4): a.lg(f"ds_read_b128 {vr(PT+4*q,4)}, v{PA[1]} offset:{RB+q*1024}", ("e", q))
    for hq in range(2):
        a.wait(lg=("e", 2*hq+1))
        for r in range(8*hq, 8*hq+8): a(f"v_add_f32 v{ACC+r}, v{ACC+r}, v{PT+r}")
        for r in range(4*hq, 4*hq+4): a(f"v_cvt_pk_bf16_f32 v{OF+r}, v{ACC+2*r}, v{ACC+2*r+1}")
        b = 4*hq
        if cfg.OT:
            for z in range(2): a(f"ds_write_b64 v2, {vr(OF+b+2*z,2)} offset:{RB+32*hq+16*z}")
            continue
        a("s_nop 1")
        a(f"v_permlane32_swap_b32 v{OF+b}, v{OF+b+2}")
        a(f"v_permlane32_swap_b32 v{OF+b+1}, v{OF+b+3}")
        a(f"buffer_store_dwordx4 {vr(OF+b,4)}, v6, s[8:11], 0 offen offset:{32*hq}")
    if cfg.OT:
        for z in range(2): a.lg(f"ds_read_b128 {vr(PT+4*z,4)}, v11 offset:{RB+16*80*z}", ("t", z))
        for z in range(2):
            a.wait(lg=("t", z))
            a(f"buffer_store_dwordx4 {vr(PT+4*z,4)}, v6, s[8:11], {'s51' if z else '0'} offen {cfg.OFL}")
    a("L_h_end:")
    st.flush(63, 8)
    a("s_endpgm")
    a.L += vcode
    for lab, off in ool:
        lds_wait(a, lab, vr(vC), vr(vG), 4, off=off)
        a(f"s_branch {lab}_x")
    a("L_mix:")
    b = AQ + 32; m = b + 8
    for s_ in (f"v_mov_b32 v{m}, 0x3f80", f"v_cndmask_b32 v{b+6}, v{b+6}, v{m}, s[42:43]", "s_lshl_b32 s51, s44, 11", f"s_add_u32 s51, s51, {VS0}",
               f"v_lshrrev_b32 v{m+5}, 5, v0", f"v_and_b32 v{m}, 31, v0", f"v_lshlrev_b32 v{m}, 6, v{m}", f"v_lshl_add_u32 v{m}, v{m+5}, 3, v{m}",
               f"v_bfe_u32 v{m+1}, v0, 1, 2", f"v_lshl_add_u32 v{m}, v{m+1}, 4, v{m}", f"v_add_u32 v{m}, s51, v{m}",
               f"v_xor_b32 v{m+1}, 16, v{m}", f"v_xor_b32 v{m+2}, 32, v{m}", f"v_xor_b32 v{m+3}, 48, v{m}",
               f"v_bfe_u32 v{m+4}, v0, 2, 2", f"v_lshl_add_u32 v{m+4}, v{m+5}, 2, v{m+4}", f"v_lshrrev_b32 v{m+5}, 1, v{m+4}", f"v_lshlrev_b32 v{m+5}, 4, v{m+5}",
               f"v_and_b32 v{m+6}, 3, v0", f"v_lshlrev_b32 v{m+6}, 3, v{m+6}", f"v_bfe_u32 v{m+7}, v0, 4, 1", f"v_lshl_add_u32 v{m+6}, v{m+7}, 5, v{m+6}",
               f"v_xor_b32 v{m+5}, v{m+5}, v{m+6}", f"v_lshlrev_b32 v{m+4}, 6, v{m+4}", f"v_add3_u32 v{m+4}, v{m+4}, v{m+5}, s51"): a(s_)
    a("s_mov_b64 s[56:57], vcc")
    lds_wait(a, "L_mixw", vr(vC), f"v{m+5}", 4, off=CE)
    a("s_mov_b64 vcc, s[56:57]")
    for i in range(4): a(f"ds_write_b64 v{m+i}, {vr(b+2*i,2)}")
    for i in range(4): a(f"ds_read_b64_tr_b16 {vr(b+2*i,2)}, v{m+4} offset:{512*i}")
    a("s_waitcnt lgkmcnt(0)")
    a("s_branch L_mix_x")

def build():
    a = Asm()
    st = Stamps(a, 0, 22)
    common(a, st)
    n0 = st.n
    gen_h(a, st)
    hn = st.names[1:]
    st.n = n0; st.names = st.names[:n0]
    gen_c(a, st)
    if asmlib.STAMP: a.raw(f"; STAMPS C {st.names[1:]}\n; STAMPS H {hn}")
    s = f"; @launch grid=(256,1,1) block=(512,1,1) lds={LDS}\n"
    s += '.amdgcn_target "amdgcn-amd-amdhsa--gfx950"\n.text\n' + kernel_head(NAME) + a.text()
    s += '.section .rodata,"a"\n' + kernel_desc(NAME, 256, 256, 102)
    if cfg.ALIGN:
        import align
        s, f_, m_ = align.align(s, nop=cfg.ALIGN if cfg.ALIGN > 1 else False)
    return s
def set_args(args):
    for x in args:
        if x.startswith("sel="): asmlib.STAMP_SEL = x[4:].split(",")
        elif "=" in x:
            k, v = x.split("="); setattr(cfg, k, eval(v))
if __name__ == "__main__":
    asmlib.STAMP = "--stamp" in sys.argv
    asmlib.STAMP_REAL = "--real" in sys.argv
    set_args(sys.argv[2:])
    open(sys.argv[1], "w").write(build())
```

```python
import sys, math, struct
import asmlib
from asmlib import *
def f2u(x): return struct.unpack("<I", struct.pack("<f", x))[0]
NAME = "parallel_sum__softmax_full_mha__glu_gated_reglu__prompt_kernel"
WS_KV, WS_A, WS_F = 2<<20, 6<<20, 16<<20
WS_BYTES = WS_F + 3*32768
QSCALE = math.log2(math.e) / math.sqrt(28.0)
LDS = 163840
XS = 49152; AR = 28672
OU = 14336 + 128
QA = {4: 0, 5: 7168, 6: 10240}
FA = {"A": 14336, "B": 21504, "C": 0, "E": 7168}
FSLOT = ["A", "B", "D", "C", "E", "A", "B"]
STO = 24576
CNT = XS + 2*AR - 128
GATE = lambda g: 4*g
CONS = lambda g: 32 + 4*g
HD = CNT + 48; HA = CNT + 52
GQ1 = 56; GQ2 = 60; GQ0 = 28; CQ2 = 88; CE = 92; GQ3 = 104; GQ4 = 108; CL = 112; AF = 116; HX = 100
CA = 64; CW = 68; R1 = 72; RX = 80
VS0 = 32768; VS2 = 25600
WOS = XS + 2*AR; NS = 6; RNG = NS*2048
CB1 = 0; RB = 49152
WS_Q = 0
class P: pass
cfg = P()
cfg.N1 = 16
cfg.N2 = 4
cfg.SPIN = 1 << 16
cfg.ROT = 0
cfg.V1 = 3; cfg.V2 = 4; cfg.V3 = 12
cfg.XA = 4; cfg.BX = 2
cfg.Q0 = 2; cfg.Q1 = 0
cfg.LPRE = 13
cfg.HPRE = 4
cfg.HSI = 1; cfg.HSN = 1; cfg.PE = 2; cfg.WDP = [0, 0, 0]; cfg.F3 = 1
cfg.SLOTS = 6
cfg.SPF = 0; cfg.SPQ = 0; cfg.SPS = 0
cfg.LP2 = 2; cfg.T6 = 0; cfg.HST = 0; cfg.VN = 9; cfg.V1B = 5; cfg.NOM = 0; cfg.ITS = 0; cfg.CQF = 3; cfg.LN0 = 0; cfg.PF = 0; cfg.ZM = 0; cfg.MAP = 1
cfg.OT = 1; cfg.OFL = ''; cfg.KQ = 24; cfg.AV = [8, 18, 28]; cfg.LP0 = 999; cfg.LPN = 11; cfg.MT = [9, 9]; cfg.MR = 256; cfg.FT = 0; cfg.MQ = 9; cfg.MQR = 0; cfg.G23 = 1; cfg.GP = 1; cfg.WSB = 0; cfg.F3L = 0; cfg.CF = 1; cfg.AS = 3; cfg.SA = 1; cfg.EW = 0; cfg.GL = 30; cfg.F4E = 0; cfg.PS1 = 4; cfg.FL = 54; cfg.SPW = 0; cfg.P1F = 1; cfg.LAG = 8; cfg.EP = 18; cfg.PS3 = 1; cfg.WOP = 0
cfg.W2 = 1
cfg.K0 = 24; cfg.LNG = 3
cfg.ALIGN = 5
cfg.PC = 0; cfg.PH2 = 1; cfg.PAD = 8
cfg.SIG = 1
SC1 = "sc1"

def poll(a, lab, vdst, voff, srd_, soff, want_ge, cnt="s62", sleep=2):
    a(f"s_mov_b32 {cnt}, 0")
    a(f"{lab}:")
    a(f"buffer_load_dword {vdst}, {voff}, {srd_}, {soff} offen sc1")
    a(f"s_add_u32 {cnt}, {cnt}, 1")
    a(f"s_waitcnt vmcnt(0)")
    a(f"v_cmp_le_u32 vcc, {want_ge}, {vdst}")
    a(f"s_cmp_gt_u32 {cnt}, {cfg.SPIN}")
    a(f"s_cbranch_scc1 {lab}_x")
    a(f"s_nop 1")
    a(f"s_cmp_eq_u64 vcc, -1")
    a(f"s_cbranch_scc1 {lab}_x")
    a(f"s_sleep {sleep}")
    a(f"s_branch {lab}")
    a(f"{lab}_x:")
    a.vmq = []
def lds_wait(a, lab, vaddr, vdst, n, sleep=0, off=0):
    a(f"{lab}:")
    if sleep: a(f"s_sleep {sleep}")
    a(f"ds_read_b32 {vdst}, {vaddr} offset:{off}")
    a("s_waitcnt lgkmcnt(0)")
    a(f"v_cmp_gt_u32 vcc, {n}, {vdst}")
    a("s_nop 3")
    a(f"s_cbranch_vccnz {lab}")
    a.lgq = []

def common(a, st):
    a("s_cmp_ge_u32 s2, 256")
    a("s_cbranch_scc1 L_end")
    st(wait=False, real=True); st(wait=False)
    a("s_load_dwordx8 s[4:11], s[0:1], 0")
    a("s_load_dwordx8 s[12:19], s[0:1], 32")
    a("s_load_dwordx4 s[20:23], s[0:1], 64")
    a("s_getpc_b64 s[56:57]")
    a("L_pc:")
    a("v_lshrrev_b32 v1, 5, v0")
    a("s_lshr_b32 s55, s2, 3")
    a("s_lshl_b32 s55, s55, 4")
    a("v_add_u32 v2, s55, v1")
    a("v_lshlrev_b32 v2, 7, v2")
    a("v_min_u32 v2, L_code_end-L_pc-4, v2")
    a("global_load_dword v255, v2, s[56:57]")
    a("v_lshrrev_b32 v1, 6, v0")
    a("v_and_b32 v0, 63, v0")
    a("v_readfirstlane_b32 s63, v1")
    a("s_and_b32 s48, s2, 7")
    a("s_lshr_b32 s47, s2, 3")
    a("s_lshr_b32 s50, s47, 2")
    a("s_and_b32 s51, s47, 3")
    a("s_and_b32 s44, s63, 3")
    a("s_cmp_lt_u32 s63, 4")
    a("s_cbranch_scc1 L_compute")
def mapping(a):
    if cfg.MAP == 0:
        a("s_and_b32 s46, s48, 3")
        a("s_lshl_b32 s46, s46, 2")
        a("s_add_u32 s46, s46, s51")
        a("s_lshr_b32 s45, s48, 2")
        a("s_lshl_b32 s45, s45, 3")
        a("s_add_u32 s45, s45, s50")
    else:
        a("s_and_b32 s46, s48, 1")
        a("s_lshl_b32 s46, s46, 3")
        a("s_add_u32 s46, s46, s50")
        a("s_lshr_b32 s45, s48, 1")
        a("s_lshl_b32 s45, s45, 2")
        a("s_add_u32 s45, s45, s51")
    a("s_lshl_b32 s49, s48, 2")
    a("s_add_u32 s49, s49, s51")
    a("s_lshl_b32 s3, s51, 1")
    a("s_add_u32 s64, s3, s50")
    a("s_cmp_ge_u32 s64, 7")
    a("s_cselect_b32 s62, 7, 0")
    a("s_sub_u32 s64, s64, s62")
    if cfg.ROT == 2: a("s_mov_b32 s3, s64")
    if cfg.ROT == 0: a("s_mov_b32 s3, 0")
    a("s_lshl_b32 s52, s45, 2")
    a("s_add_u32 s52, s52, s44")
def emit(a, op):
    if op[1] == "vm": a.vm(op[0], op[2])
    elif op[1] == "lg": a.lg(op[0], op[2])
    else: a(op[0])
def wait_lg_tags(a, tags):
    n = min([c for c in (a._cnt(a.lgq, tg) for tg in tags) if c is not None], default=None)
    if n is not None:
        assert n <= 15
        a(f"s_waitcnt lgkmcnt({n})")
        a.lgq = a.lgq[len(a.lgq)-n:] if n else []
V = lambda s: (s, "v")

def lds_add(a, vaddr, vone, off, tag=None):
    a("s_mov_b64 exec, 1")
    a.lg(f"ds_add_u32 {vaddr}, {vone} offset:{off}", tag)
    a("s_mov_b64 exec, -1")
def arrive(a, vdst, vaddr, vone, p, tag=None):
    a("s_mov_b64 exec, 1")
    a.lg(f"ds_add_rtn_u32 {vdst}, {vaddr}, {vone} offset:{AF+4*p}", tag)
    a("s_mov_b64 exec, -1")
def flag_if_last(a, v, vone, soff):
    a(f"v_xor_b32 {v}, 3, {v}")
    a(f"v_lshlrev_b32 {v}, 25, {v}")
    a.vm(f"buffer_store_dword {vone}, {v}, s[24:27], {soff} offen {SC1}", "fl")
def ws_srd(a):
    if cfg.WSB:
        a(f"s_add_u32 s22, s22, {cfg.WSB << 20}")
        a("s_addc_u32 s23, s23, 0")
    srd(a, 24, 22, WS_BYTES)
def ffn_setup(a, vDF, t):
    a("s_cmp_ge_u32 s44, 2")
    a("s_cselect_b32 s32, s14, s12")
    a("s_cselect_b32 s33, s15, s13")
    a(f"s_mov_b32 s34, {448*1792*2}")
    a("s_mov_b32 s35, 0x00020000")
    a("s_cselect_b32 s51, 128, 0")
    a(f"s_mul_i32 s53, s44, {AR}")
    a("s_add_u32 s53, s53, s51")
    a(f"s_add_u32 s53, s53, {XS-128}")
    a("s_mul_i32 s42, s44, 7168")
    a("s_add_u32 s42, s42, s51")
    a("s_and_b32 s51, s44, 1")
    a(f"s_mul_i32 s54, s51, {32*3584}")
    a("s_mul_i32 s51, s46, 224")
    for j in range(7):
        a(f"v_add_u32 v{t}, {64*j}, v0")
        a(f"v_mul_u32_u24 v{t+1}, 4682, v{t}")
        a(f"v_lshrrev_b32 v{t+1}, 16, v{t+1}")
        a(f"v_mul_u32_u24 v{t+2}, {3584-14*16}, v{t+1}")
        a(f"v_lshl_add_u32 v{t+2}, v{t}, 4, v{t+2}")
        if j % 4: a(f"v_subrev_u32 v{t+2}, {1024*(j%4)}, v{t+2}")
        a(f"v_add_u32 {vr(vDF+j)}, s51, v{t+2}")
def gap(a, n):
    while n > 0:
        a(f"s_nop {min(n, 16) - 1}"); n -= 16
def ffn_dma(a, g, vDF, lo=0, hi=7, sp=None):
    sp = cfg.SPF if sp is None else sp
    if lo:
        base, off = ("s42", 0) if FSLOT[g] == "D" else ("s53", FA[FSLOT[g]])
        assert lo == 4
        a(f"s_add_u32 m0, {base}, {off+4096}")
        a(f"s_add_u32 s43, s3, {g}")
        a("s_cmp_ge_u32 s43, 7")
        a("s_cselect_b32 s62, 7, 0")
        a("s_sub_u32 s43, s43, s62")
        a(f"s_mul_i32 s43, s43, {64*3584}")
        a("s_add_u32 s43, s43, s54")
        for j in range(4, 7):
            a.vm(f"buffer_load_dwordx4 {vr(vDF+j)}, s[32:35], s43 offen offset:{1024*(j%4)} lds", ("F", g))
            if j < 6: gap(a, sp)
        return
    base, off = ("s42", 0) if FSLOT[g] == "D" else ("s53", FA[FSLOT[g]])
    a(f"s_add_u32 m0, {base}, {off}")
    a(f"s_add_u32 s43, s3, {g}")
    a("s_cmp_ge_u32 s43, 7")
    a("s_cselect_b32 s62, 7, 0")
    a("s_sub_u32 s43, s43, s62")
    a(f"s_mul_i32 s43, s43, {64*3584}")
    a("s_add_u32 s43, s43, s54")
    for j in range(hi):
        if j == 4:
            a(f"s_add_u32 m0, {base}, {off+4096}"); a("s_nop 0")
        a.vm(f"buffer_load_dwordx4 {vr(vDF+j)}, s[32:35], s43 offen offset:{1024*(j%4)} lds", ("F", g))
        if j < hi - 1: gap(a, sp)
def xread_addr(a, vX, t):
    a(f"s_mul_i32 s56, s44, {AR}")
    a(f"s_add_u32 s56, s56, {XS}")
    a(f"v_and_b32 v{t}, 31, v0")
    a(f"v_lshlrev_b32 v{t+1}, 7, v{t}")
    a(f"v_add_u32 v{t+1}, s56, v{t+1}")
    a(f"v_bfe_u32 v{t}, v0, 1, 3")
    a(f"v_lshrrev_b32 v{t+2}, 5, v0")
    a(f"v_xor_b32 v{t}, v{t}, v{t+2}")
    a(f"v_lshl_add_u32 {vr(vX)}, v{t}, 4, v{t+1}")
    for sp in range(1, 4): a(f"v_xor_b32 {vr(vX+sp)}, {32*sp}, {vr(vX)}")
def ln_ops(X0, k, LT, vR, nt=2):
    ops = []
    for b in range(0, 4, nt):
        for i in range(nt):
            r = X0 + 4*k + b + i
            ops += [f"v_lshlrev_b32 v{LT+2*i}, 16, v{r}", f"v_and_b32 v{LT+2*i+1}, s61, v{r}"]
        ops += [f"v_fma_f32 v{LT+i}, v{LT+i}, v{vR}, v{vR+1}" for i in range(2*nt)]
        ops += [f"v_cvt_pk_bf16_f32 v{X0+4*k+b+i}, v{LT+2*i}, v{LT+2*i+1}" for i in range(nt)]
    return ops
def sigma(a, dst, src):
    tab = [0, 1, 2, 3, 4, 5, 7, 6, 9, 8, 15, 11, 12, 13, 14, 10]
    assert all(tab[tab[k]] == k for k in range(16))
    lo = sum(tab[k] << (4*k) for k in range(8)); hi = sum(tab[8+k] << (4*k) for k in range(8))
    a(f"s_cmp_ge_u32 {src}, 8")
    a(f"s_cselect_b32 s62, {lo ^ hi:#x}, 0")
    a(f"s_xor_b32 s62, s62, {lo:#x}")
    a(f"s_lshl_b32 {dst}, {src}, 2")
    a(f"s_lshr_b32 {dst}, s62, {dst}")
    a(f"s_and_b32 {dst}, {dst}, 15")

def gen_c(a, st):
    a.vmq = []; a.lgq = []
    vDQ = 216; t = 240; SINK = 221; vL = 15; vDF = 208
    O = 16; S = 80; PP = 192; KV = 128; T = 200
    QL = [248, 224, 232, 240]
    a("L_compute:")
    mapping(a)
    for r in range(4): a(f"v_mov_b32 v{PP+4+r}, 0")
    a(f"v_min_u32 v{t}, 11, v0")
    a(f"v_and_b32 v{t+1}, 3, v{t}")
    a(f"v_lshrrev_b32 v{t}, 2, v{t}")
    a(f"v_lshlrev_b32 v{t}, 15, v{t}")
    a(f"v_lshl_add_u32 v{t}, v{t+1}, 7, v{t}")
    a("s_lshl_b32 s51, s52, 9")
    a(f"s_add_u32 s51, s51, {WS_F}")
    a("s_waitcnt lgkmcnt(0)")
    ws_srd(a)
    a("s_xor_b32 s59, s46, 7")
    a("s_cbranch_scc1 L_noclr")
    a(f"buffer_store_dword v{PP+4}, v{t}, s[24:27], s51 offen {SC1}")
    a("L_noclr:")
    srd(a, 28, 6, 448*1344*2)
    sigma(a, "s51", "s46")
    a("s_mul_i32 s51, s51, 168")
    a("s_and_b32 s51, s51, -16")
    for j in range(3):
        a(f"v_add_u32 v{t}, {64*j}, v0")
        a(f"v_mul_u32_u24 v{t+1}, 5462, v{t}")
        a(f"v_lshrrev_b32 v{t+1}, 16, v{t+1}")
        a(f"v_mul_u32_u24 v{t+2}, 12, v{t+1}")
        a(f"v_sub_u32 v{t+2}, v{t}, v{t+2}")
        a(f"v_min_u32 v{t+2}, 10, v{t+2}")
        a(f"v_mul_u32_u24 v{t+1}, 2688, v{t+1}")
        a(f"v_lshl_add_u32 v{t+1}, v{t+2}, 4, v{t+1}")
        if j: a(f"v_subrev_u32 v{t+1}, {1024*j}, v{t+1}")
        a(f"v_add_u32 {vr(vDQ+j)}, s51, v{t+1}")
    a(f"s_mul_i32 s70, s44, {16*2688}")
    a(f"s_mul_i32 s71, s44, {16*192}")
    a(f"s_mul_i32 s72, s3, {64*2688}")
    a(f"s_mul_i32 s73, s44, {AR}")
    a(f"s_add_u32 s73, s73, {XS}")
    def qkv_dma(g):
        a(f"s_add_u32 m0, s71, {g*12288}" if g < 4 else f"s_add_u32 m0, s73, {QA[g]}")
        a("s_add_u32 s51, s72, s70")
        for j in range(3):
            a.vm(f"buffer_load_dwordx4 {vr(vDQ+j)}, s[28:31], s51 offen offset:{1024*j} lds", ("Q", g))
        if g < 6:
            a(f"s_add_u32 s72, s72, {64*2688}"); a(f"s_cmp_ge_u32 s72, {448*2688}"); a("s_cselect_b32 s72, 0, s72")
    ffn_setup(a, vDF, t)
    srd(a, 12, 20, 256)
    srd(a, 36, 16, 1792*448*2)
    srd(a, 16, 8, 448*448*2)
    a("s_mov_b32 s40, 0"); a("s_mov_b32 s41, -1")
    for s_ in (f"v_lshlrev_b32 {vr(vL)}, 4, v0", "v_lshlrev_b32 v13, 25, v0", "v_mov_b32 v14, 1", f"v_mov_b32 v12, {CNT}",
               "v_and_b32 v222, 15, v0", "v_lshlrev_b32 v222, 4, v222", "s_lshl_b32 s74, s45, 4"): a(s_)
    for r in range(4): a(f"v_mov_b32 v{KV+48+12+r}, 0")
    for r in range(64): a(f"v_mov_b32 v{O+r}, 0")
    def att_setup():
        a("s_setprio 0")
        a("s_lshl_b32 s65, s48, 1")
        a("s_and_b32 s51, s47, 1")
        a("s_add_u32 s65, s65, s51")
        a("s_lshr_b32 s66, s47, 1")
        a(f"v_bfe_u32 v{t+2}, v0, 2, 2")
        a(f"v_bfe_u32 v{t+4}, v0, 4, 1")
        for s_ in ("s_lshl_b32 s51, s66, 2", "s_add_u32 s51, s51, s44", f"s_mul_i32 s67, s51, {144*1024}", "s_lshl_b32 s51, s65, 11", "s_add_u32 s67, s67, s51",
                   f"s_add_u32 s67, s67, {WS_A+112*1024}",
                   "s_lshl_b32 s51, s44, 2",
                   "s_lshl_b32 s60, s66, 4", "s_add_u32 s60, s60, s65", "s_lshl_b32 s60, s60, 7", f"s_add_u32 s60, s60, {WS_F+65536}",
                   "s_lshl_b32 s51, s65, 18", "s_lshl_b32 s58, s44, 16", "s_add_u32 s51, s51, s58", f"s_add_u32 s51, s51, {WS_KV}",
                   "s_add_u32 s4, s22, s51", "s_addc_u32 s5, s23, 0", "s_mov_b32 s6, 0x10000", "s_mov_b32 s7, 0x00020000",
                   "s_lshl_b32 s69, s66, 12"): a(s_)
        for k, (add, dst) in enumerate(((0, "s56"), (16, "s57"), (32, "s58"))):
            a(f"s_add_u32 s51, s65, {add}")
            a("s_mul_i32 s51, s51, 43")
            a("s_lshr_b32 s51, s51, 7")
            sigma(a, "s51", "s51")
            a(f"s_lshl_b32 {dst}, s51, 7")
        a("s_lshl_b32 s51, s66, 11")
        a("s_add_u32 s56, s56, s51")
        a("s_lshl_b32 s51, s44, 13")
        a("s_add_u32 s57, s57, s51")
        a("s_add_u32 s58, s58, s51")
        a(f"v_lshlrev_b32 v1, 11, v{t+2}")
        a(f"v_add_u32 v{t+6}, s58, v1")
        a(f"v_add_u32 v1, s57, v1")
        a(f"v_cmp_eq_u32 vcc, 1, v{t+4}")
        a(f"v_mov_b32 v{t+7}, s56")
        a(f"v_and_b32 v{t+3}, 3, v0")
        a(f"v_cndmask_b32 v1, v1, v{t+6}, vcc")
        a(f"v_cndmask_b32 v1, v1, v{t+7}, s[40:41]")
        a(f"s_mov_b32 s68, {WS_F}")
        for j in range(4):
            for s_ in (f"s_add_u32 s51, s44, {j}", "s_and_b32 s51, s51, 3", f"s_mul_i32 s55, s51, 12288", f"s_add_u32 s55, s55, {CB1}", f"v_add_u32 v{T+4+j}, s55, {vr(vL)}",
                       "s_lshl_b32 s55, s65, 4", "s_add_u32 s55, s55, s66", "s_lshl_b32 s55, s55, 2", "s_add_u32 s55, s55, s51", f"s_lshl_b32 s{8+j}, s55, 11"): a(s_)
        a("s_mov_b32 s55, 0")
        if cfg.EW:
            a("s_cmp_lt_u32 s50, 7")
            a("s_cselect_b32 s38, s38, 0")
            for s_ in ("v_lshrrev_b32 v3, 3, v0", "v_bfe_u32 v4, v0, 4, 1", "v_lshlrev_b32 v4, 2, v4", "v_and_b32 v7, 7, v0", "v_xor_b32 v7, v7, v4",
                       "v_mul_u32_u24 v3, 896, v3", "v_lshl_add_u32 v3, v7, 4, v3", f"v_add_u32 v4, {8*896-1024}, v3",
                       f"s_mul_i32 s56, s44, {448*896}", "s_lshl_b32 s57, s50, 7", "s_add_u32 s56, s56, s57", f"s_mul_i32 s57, s64, {64*896}", "s_add_u32 s57, s57, s56",
                       "s_add_u32 s51, s64, 1", "s_cmp_ge_u32 s51, 7", "s_cselect_b32 s51, 0, s51", f"s_mul_i32 s58, s51, {64*896}", "s_add_u32 s58, s58, s56",
                       f"s_mul_i32 s56, s44, {RNG}"): a(s_)
        a(f"s_setprio {cfg.PF}")
    def mtouch(pos):
        if pos == cfg.MQ:
            r0 = cfg.MQR; by = (448 - r0) * 2688 // 1024
            assert by % 4 == 0
            for s_ in (f"v_min_u32 v8, {by // 128}, v0", "v_lshlrev_b32 v8, 7, v8", "s_lshl_b32 s51, s2, 2", "s_add_u32 s51, s51, s44",
                       f"s_mul_i32 s51, s51, {by}", f"s_add_u32 s51, s51, {r0*2688}"): a(s_)
            a.vm(f"buffer_load_dword v{SINK}, v8, s[28:31], s51 offen", "pf")
        if pos == cfg.MT[0]:
            r0 = cfg.MR
            nl = (448 - r0) * 28 // 512 + 1
            for s_ in (f"v_min_u32 v5, {nl-1}, v0", "v_lshlrev_b32 v5, 7, v5", "s_lshl_b32 s51, s2, 1", "s_and_b32 s62, s44, 1", "s_add_u32 s51, s51, s62",
                       f"s_mul_i32 s51, s51, {(448 - r0) * 7}", f"s_add_u32 s51, s51, {r0*3584}"): a(s_)
            a.vm(f"buffer_load_dword v{SINK}, v5, s[32:35], s51 offen", "pf")
        if pos == cfg.MT[1]:
            for s_ in ("v_min_u32 v6, 12, v0", "v_lshlrev_b32 v6, 7, v6", "s_lshl_b32 s51, s2, 2", "s_add_u32 s51, s51, s44", "s_mul_i32 s62, s51, 1568"): a(s_)
            a.vm(f"buffer_load_dword v{SINK}, v6, s[36:39], s62 offen", "pf")
            for s_ in ("v_min_u32 v7, 3, v0", "v_lshlrev_b32 v7, 7, v7", "s_mul_i32 s62, s51, 392"): a(s_)
            a.vm(f"buffer_load_dword v{SINK}, v7, s[16:19], s62 offen", "pf")
    def landed(tag, off):
        a.wait(vm=tag); lds_add(a, "v12", "v14", off)
    def free(lab, off): lds_wait(a, lab, "v12", "v2", 4, sleep=1, off=off)
    mtouch(-1)
    def gostore(pos):
        if pos != cfg.GP: return
        a("s_or_b32 s59, s59, s44")
        a("s_cbranch_scc1 L_nogo")
        free("L_clr", GQ0)
        a(f"buffer_store_dword v14, v13, s[12:15], s74 offen {SC1}")
        a("L_nogo:")
    st(name="setup")
    a("s_barrier")
    a(f"s_setprio {cfg.PF}")
    for g in range(cfg.Q0): qkv_dma(g)
    mtouch(-2)
    a("s_barrier")
    st(name="bx2")
    mtouch(-3)
    for g in range(cfg.Q0, 4): qkv_dma(g)
    mtouch(-4)
    landed(("Q", 1), GQ0)
    qkv_dma(4); qkv_dma(5)
    landed(("Q", 3), GQ1)
    qkv_dma(6)
    landed(("Q", 4), GQ2)
    ffn_dma(a, 0, vDF, 0, 4)
    landed(("Q", 5), GQ3)
    ffn_dma(a, 0, vDF, 4)
    mtouch(0)
    gostore(0)
    landed(("Q", 6), GQ4)
    st(name="_q6")
    ffn_dma(a, 1, vDF)
    mtouch(1)
    gostore(1)
    landed(("F", 0), GATE(0))
    st(name="_g0")
    free("L_cq2", CQ2)
    def ftouch():
        assert cfg.MAP == 1 and cfg.ROT == 0
        for s_ in ("v_lshrrev_b32 v5, 4, v0", "v_mul_u32_u24 v5, 3584, v5", "v_and_b32 v6, 15, v0", "v_min_u32 v6, 13, v6", "v_lshl_add_u32 v5, v6, 7, v5",
                   "s_lshl_b32 s51, s47, 1", "s_and_b32 s62, s44, 1", "s_add_u32 s51, s51, s62", "s_add_u32 s51, s51, 48", f"s_mul_i32 s51, s51, {4*3584}",
                   "s_and_b32 s62, s48, 1", "s_mul_i32 s62, s62, 1792", "s_add_u32 s51, s51, s62"): a(s_)
        a.vm(f"buffer_load_dword v{SINK}, v5, s[32:35], s51 offen", "pf")
    if cfg.FT == 1: ftouch()
    ffn_dma(a, 2, vDF)
    if cfg.FT == 2: ftouch()
    mtouch(2)
    landed(("F", 1), GATE(1))
    st(name="_g1")
    if cfg.AS == 2: att_setup()
    free("L_ce", CE)
    st(name="ce")
    assert cfg.CF
    ffn_dma(a, 3, vDF)
    mtouch(3)
    st(name="_i3")
    if cfg.G23: landed(("F", 2), GATE(2))
    if cfg.AS == 3: att_setup()
    st(name="_as")
    landed(("F", 3), GATE(3 if cfg.G23 else 2))
    st(name="_g2")
    free("L_cons5", CONS(0))
    st(name="_c5")
    a.vm(f"buffer_load_dword v223, v222, s[12:15], 0 offen {SC1}", "go")
    ffn_dma(a, 4, vDF)
    ffn_dma(a, 5, vDF, 0, 4)
    a.wait(vm="go")
    a("v_cmp_gt_u32 vcc, 1, v223")
    a("s_nop 3")
    a("s_cbranch_vccnz L_go"); a("L_go_x:")
    a("s_cmp_lg_u32 s44, 0")
    a("s_cbranch_scc1 L_nofl")
    for s_ in ("s_lshl_b32 s59, s45, 4", "s_add_u32 s59, s59, s46", "s_lshl_b32 s59, s59, 7", f"s_add_u32 s59, s59, {WS_F}"): a(s_)
    lds_wait(a, "L_af", "v12", "v2", 4, off=AF)
    a(f"buffer_store_dword v14, v13, s[24:27], s59 offen {SC1}")
    a("L_nofl:")
    st(name="cfl0")
    landed(("F", 4), GATE(4))
    ffn_dma(a, 5, vDF, 4)
    free("L_cons6", CONS(1))
    st(name="_c6")
    ffn_dma(a, 6, vDF)
    mtouch(6)
    if cfg.AS == 1: att_setup()
    if cfg.K0 == 24: landed(("F", 5), GATE(5))
    landed(("F", 6), GATE(5 if cfg.K0 == 20 else 6))
    if cfg.EW:
        free("L_consw", CONS(2))
        for i in range(5):
            a(f"s_add_u32 m0, s56, {CB1 + 2048*i}")
            a(f"s_add_u32 s51, s{57 + i//4}, {(i%4)*16*896}")
            a.vm(f"buffer_load_dwordx4 v3, s[36:39], s51 offen lds", "wx")
            a.vm(f"buffer_load_dwordx4 v4, s[36:39], s51 offen offset:1024 lds", "wx")
    st(name="_cf6")
    def kvload(slot, j): return f"buffer_load_dwordx4 {vr(KV+16*slot+4*j,4)}, {vr(vL)}, s[4:7], s69 offen offset:{1024*j} {SC1}"
    kvadv = ["s_add_u32 s69, s69, 4096", "s_and_b32 s69, s69, 0xffff"]
    poll(a, "L_p1", "v2", "v1", "s[24:27]", "s68", 1, sleep=cfg.PS1)
    st(name="poll1")
    for j in (1, 2, 3, 0):
        for ks in range(2): a.vm(f"buffer_load_dwordx4 {vr(QL[j]+4*ks,4)}, {vr(vL)}, s[24:27], s{8+j} offen offset:{1024*ks} {SC1}", "q")
    for sl in range(3):
        for j in range(4): a.vm(kvload(sl, j), ("kv", sl))
        for x in kvadv: a(x)
    a(f"s_setprio {cfg.PC}")
    QO = [1, 2, 3, 0]
    def qk(n, ks):
        kt, qt = (n//4) % 4, n % 4
        s = vr(S+16*(n&1), 16)
        return f"v_mfma_f32_32x32x16_bf16 {s}, {vr(KV+16*kt+4*ks,4)}, {vr(QL[QO[qt]]+4*ks,4)}, {'0' if ks==0 else s}"
    def pv(n, ks):
        kt, qt = (n//4) % 4, n % 4
        o = vr(O+16*QO[qt], 16)
        return f"v_mfma_f32_32x32x16_bf16 {o}, {vr(KV+16*kt+8+4*ks,4)}, {vr(PP+4*ks,4)}, {o}"
    a.wait(vm=("kv", 0))
    lds_add(a, "v12", "v14", HA-CNT)
    st(name="att0")
    a(qk(0, 0)); a(qk(0, 1))
    a("s_nop 7"); a("s_nop 3")
    a.raw(".p2align 3")
    a("L_att:")
    def softmax(n, m, odd):
        sb = S + 16*(n & 1)
        for j in range(4):
            a(f"v_exp_f32{'_e64' if (odd and j == 1) else ''} v{sb+4*m+j}, v{sb+4*m+j}")
        for j in range(2): a(f"v_cvt_pk_bf16_f32 v{PP+2*m+j}, v{sb+4*m+2*j}, v{sb+4*m+2*j+1}")
    for n in range(16):
        kt, qt = n//4, n % 4
        ms = [qk(n+1, 0), qk(n+1, 1), pv(n-1, 1), pv(n, 0)]
        for m in range(4):
            a(ms[m])
            odd = False
            if n == 12 and m == 0:
                a("s_cbranch_scc1 L_last"); a("s_nop 0")
            if m == 0: a(kvload((kt+3) % 4, qt))
            if qt == 2 and m == 2 and kt == 0:
                a("s_add_u32 s55, s55, 1"); odd = True
            if n == 0 and m == 1 and asmlib.STAMP and cfg.ITS:
                a("s_mov_b64 s[96:97], s[94:95]"); a("s_mov_b64 s[94:95], s[92:93]"); a("s_mov_b64 s[92:93], s[90:91]"); a("s_memtime s[90:91]")
            if qt == 2 and m == 3: a("s_waitcnt vmcnt(9)"); odd = True
            if qt == 0 and m == 2: a("s_waitcnt vmcnt(9)"); odd = True
            if qt == 3 and m == 1: a(kvadv[0])
            if qt == 3 and m == 2: a(kvadv[1])
            if qt == 3 and m == 3 and kt == 0:
                a("s_cmp_eq_u32 s55, 4"); a("s_cselect_b32 s6, 0, s6")
            if qt == 3 and m == 3 and kt == 2: a("s_cmp_eq_u32 s55, 4"); odd = True
            softmax(n, m, odd)
    a("s_branch L_att")
    a.raw(".p2align 3")
    a("L_last:")
    def cwr(j, q): a(f"ds_write_b128 v{T+4+j}, {vr(O+16*j+4*q,4)} offset:{(j-1)*4096+q*1024}")
    for n in range(12, 16):
        ms = [qk(n+1, 0), qk(n+1, 1), pv(n-1, 1), pv(n, 0)] if n < 15 else [pv(14, 1), None, None, pv(15, 0)]
        for m in range(4):
            if n == 15 and m == 0: cwr(2, 0); cwr(2, 1)
            if ms[m] and not (n == 12 and m == 0): a(ms[m])
            odd = False
            if n == 12 and m == 0: a(f"ds_read_b32 v{T}, v12 offset:{HX}")
            if n == 12 and m == 2: a("s_waitcnt vmcnt(8) lgkmcnt(0)"); a(f"v_cmp_gt_u32 vcc, 4, v{T}")
            if n == 13 and m == 0:
                a("s_cbranch_vccnz L_hd"); a("L_hd_x:"); odd = True
            if n == 13 and m == 1: a(f"s_mov_b32 s42, {f2u(2.0**-64):#x}")
            if n == 13 and m == 2: a(f"s_mov_b32 s43, {f2u(2.0**64):#x}")
            if n == 14: cwr(1, m)
            if n == 15 and m == 1: cwr(2, 2); cwr(2, 3)
            if n == 15 and m >= 2: cwr(3, 2*m-4); cwr(3, 2*m-3)
            softmax(n, m, odd)
    a("s_setprio 2")
    a("s_waitcnt lgkmcnt(0)")
    a(pv(15, 1))
    st(name="attend")
    lds_add(a, "v12", "v14", CW)
    lds_wait(a, "L_cw", "v12", f"v{T}", 4, off=CW)
    st(name="_Tc")
    for q in (3, 0, 1, 2):
        for j in range(3):
            a.lg(f"ds_read_b128 {vr(O+16+16*j+4*q,4)}, v{T+4} offset:{j*4096+q*1024}", q)
    def add3(q):
        a.wait(lg=q)
        for r in range(4*q, 4*q+4): a(f"v_add_f32 v{O+r}, v{O+r}, v{O+16+r}")
        for r in range(4*q, 4*q+4): a(f"v_add_f32 v{O+32+r}, v{O+32+r}, v{O+48+r}")
        for r in range(4*q, 4*q+4): a(f"v_add_f32 v{O+r}, v{O+r}, v{O+32+r}")
    add3(3)
    a(f"v_mov_b32 v{T}, v{O+12}")
    a(f"v_mov_b32 v{T+1}, v{O+12}")
    add3(0)
    a(f"v_permlane32_swap_b32 v{T}, v{T+1}")
    add3(1)
    a(f"v_cmp_le_f32 vcc, s42, v{T+1}")
    a(f"v_cmp_ge_f32 s[56:57], s43, v{T+1}")
    a(f"v_rcp_f32 v{T}, v{T+1}")
    add3(2)
    a("s_and_b64 vcc, vcc, s[56:57]")
    a("s_cmp_eq_u64 vcc, -1")
    a("s_cbranch_scc0 L_slow")
    a("L_fin:")
    for r in range(8): a(f"v_mul_f32 v{O+r}, v{O+r}, v{T}")
    for r in range(4): a(f"v_cvt_pk_bf16_f32 v{PP+r}, v{O+2*r}, v{O+2*r+1}")
    a.vm(f"buffer_store_dwordx4 {vr(PP,4)}, {vr(vL)}, s[24:27], s67 offen {SC1}", "st")
    for r in range(8, 16): a(f"v_mul_f32 v{O+r}, v{O+r}, v{T}")
    for r in range(4, 8): a(f"v_cvt_pk_bf16_f32 v{PP+r}, v{O+2*r}, v{O+2*r+1}")
    a(f"v_cndmask_b32 v{PP+6}, v{PP+6}, 0, s[40:41]")
    a(f"v_cndmask_b32 v{PP+7}, v{PP+7}, 0, s[40:41]")
    a.vm(f"buffer_store_dwordx4 {vr(PP+4,4)}, {vr(vL)}, s[24:27], s67 offen offset:1024 {SC1}", "st")
    st(name="_prefl2")
    a("v_mov_b32 v13, 0")
    a.wait(vm="all")
    arrive(a, "v13", "v12", "v14", 2)
    a.wait(lg="all")
    flag_if_last(a, "v13", "v14", "s60")
    st(name="fl2")
    if asmlib.STAMP and cfg.ITS:
        assert st.n <= 10
        st.n = 14; st.names += ["it"]*4
    a("L_c_end:")
    st.flush(63, 8)
    a("L_end:")
    a("s_endpgm")
    a("L_go:")
    poll(a, "L_p0", "v223", "v222", "s[12:15]", "0", 1)
    a("s_branch L_go_x")
    lds_wait(a, "L_hd", "v12", f"v{T}", 4, off=HX)
    a("s_branch L_hd_x")
    S1 = S + 16
    a("L_slow:")
    a("s_lshl_b32 s56, s65, 18")
    a(f"s_add_u32 s56, s56, {WS_KV}")
    a("s_mov_b32 s57, s56")
    a("s_mov_b32 s55, 64")
    a(f"v_mov_b32 v{T+2}, 0xff800000")
    a("s_waitcnt vmcnt(0)")
    a("L_slow1:")
    for j in range(2): a(f"buffer_load_dwordx4 {vr(KV+4*j,4)}, {vr(vL)}, s[24:27], s57 offen offset:{1024*j} {SC1}")
    a("s_waitcnt vmcnt(0)")
    a(qk(3, 0)); a(qk(3, 1))
    a("s_nop 7"); a("s_nop 7")
    for r in range(8): a(f"v_max3_f32 v{T+2}, v{S1+2*r}, v{S1+2*r+1}, v{T+2}")
    a("s_add_u32 s57, s57, 4096")
    a("s_sub_u32 s55, s55, 1"); a("s_cmp_lg_u32 s55, 0")
    a("s_cbranch_scc1 L_slow1")
    a(f"v_mov_b32 v{T+3}, v{T+2}")
    a("s_nop 1")
    a(f"v_permlane32_swap_b32 v{T+3}, v{T+2}")
    a("s_nop 1")
    a(f"v_max_f32 v{T+2}, v{T+2}, v{T+3}")
    for r in range(16): a(f"v_mov_b32 v{O+r}, 0")
    a("s_mov_b32 s55, 64")
    a("L_slow2:")
    for j in range(4): a(f"buffer_load_dwordx4 {vr(KV+4*j,4)}, {vr(vL)}, s[24:27], s56 offen offset:{1024*j} {SC1}")
    a("s_waitcnt vmcnt(0)")
    a(qk(3, 0)); a(qk(3, 1))
    a("s_nop 7"); a("s_nop 7")
    for r in range(16): a(f"v_sub_f32 v{S1+r}, v{S1+r}, v{T+2}")
    for r in range(16): a(f"v_exp_f32 v{S1+r}, v{S1+r}")
    a("s_nop 0")
    for r in range(8): a(f"v_cvt_pk_bf16_f32 v{PP+r}, v{S1+2*r}, v{S1+2*r+1}")
    a("s_nop 1")
    a(pv(3, 0)); a(pv(3, 1))
    a("s_add_u32 s56, s56, 4096")
    a("s_sub_u32 s55, s55, 1"); a("s_cmp_lg_u32 s55, 0")
    a("s_cbranch_scc1 L_slow2")
    a("s_nop 7"); a("s_nop 7")
    a(f"v_mov_b32 v{T}, v{O+12}")
    a(f"v_mov_b32 v{T+1}, v{O+12}")
    a("s_nop 1")
    a(f"v_permlane32_swap_b32 v{T}, v{T+1}")
    a("s_nop 1")
    a(f"v_rcp_f32 v{T}, v{T+1}")
    a("s_nop 0")
    a("s_branch L_fin")
    a("L_code_end:")

def gen_h(a, st):
    X0 = 16; ACCF = 128; AQ = 192
    AS = 144; vR = 148; LT = 152; vXD = 160; vX = 164; vTQ = 168; t = 172
    vTF = 1; vC = 3; vOne = 4; vG = 5; vL = 7
    a("s_setprio 1")
    mapping(a)
    a(f"v_lshrrev_b32 v{t+2}, 3, v0")
    a("s_lshl_b32 s51, s52, 5")
    a(f"v_add_u32 v{t+2}, s51, v{t+2}")
    a(f"v_mul_u32_u24 v{t+2}, 896, v{t+2}")
    a(f"v_lshrrev_b32 v{t+3}, 4, v0")
    a(f"v_and_b32 v{t+4}, 7, v0")
    a(f"v_xor_b32 v{t+3}, v{t+3}, v{t+4}")
    a(f"v_lshl_add_u32 {vr(vXD)}, v{t+3}, 4, v{t+2}")
    a(f"v_xor_b32 v{t+3}, 64, {vr(vXD)}")
    a(f"v_add_u32 {vr(vXD+1)}, 6144, v{t+3}")
    a(f"v_add_u32 {vr(vXD+2)}, {2*6144}, {vr(vXD)}")
    a(f"v_add_u32 {vr(vXD+3)}, {3*6144}, v{t+3}")
    a(f"s_mul_i32 s53, s44, {AR}")
    a(f"s_add_u32 s53, s53, {XS}")
    a("s_lshl_b32 s55, s3, 7")
    a(f"s_mov_b32 s30, {2048*448*2}")
    a("s_mov_b32 s31, 0x00020000")
    a("s_mov_b32 m0, s53")
    a("s_waitcnt lgkmcnt(0)")
    a("s_mov_b32 s28, s4"); a("s_mov_b32 s29, s5")
    st(name="_h0")
    def xload(cb):
        for rg in range(4):
            a.vm(f"buffer_load_dwordx4 {vr(vXD+rg)}, s[28:31], s55 offen offset:{rg*1024} lds", ("x", cb))
        if cb < 6:
            a(f"s_add_u32 m0, s53, {(cb+1)*4096}")
            a("s_add_u32 s55, s55, 128"); a("s_cmp_ge_u32 s55, 896"); a("s_cselect_b32 s55, 0, s55")
    for cb in range(cfg.XA - 1): xload(cb)
    ws_srd(a)
    xread_addr(a, vX, t)
    for i in range(4): a(f"v_mov_b32 v{AS+i}, 0")
    a(f"v_mov_b32 v{t+10}, 0")
    a(f"v_mov_b32 v{t+8}, 0x3f803f80")
    a("s_mov_b32 s61, 0xffff0000")
    a(f"v_mov_b32 {vr(vOne)}, 1")
    a(f"v_mov_b32 {vr(vC)}, {CNT}")
    a(f"v_lshlrev_b32 {vr(vL)}, 4, v0")
    a(f"v_and_b32 v{t+9}, 31, v0")
    a(f"v_cmp_eq_u32 vcc, 28, v{t+9}")
    a(f"v_lshl_add_u32 v{t+9}, v{t+9}, 2, {vr(vC)}")
    sigma(a, "s60", "s46")
    a(f"v_cndmask_b32 v6, 0, v{t+8}, vcc")
    a(f"v_lshrrev_b32 v{t+5}, 5, v0")
    a(f"v_bfe_u32 v{t+2}, v0, 2, 2")
    a(f"v_lshl_add_u32 v{t+2}, v{t+5}, 3, v{t+2}")
    a(f"v_and_b32 v{t+3}, 3, v0")
    a(f"v_bfe_u32 v{t+4}, v0, 4, 1")
    a(f"v_mul_u32_u24 v{t+5}, 224, v{t+2}")
    a(f"v_lshl_add_u32 v{t+5}, v{t+3}, 3, v{t+5}")
    a(f"v_mul_u32_u24 v{t+6}, {OU}, v{t+4}")
    a(f"v_add_u32 {vr(vTF)}, v{t+5}, v{t+6}")
    a(f"v_mul_u32_u24 v{t+6}, {2*AR+128}, v{t+4}")
    a(f"v_add_u32 v{t+5}, {XS-128}, v{t+5}")
    a(f"v_add_u32 {vr(vTF+1)}, v{t+5}, v{t+6}")
    a(f"v_mul_u32_u24 v{t+5}, 192, v{t+2}")
    a(f"v_lshl_add_u32 v{t+5}, v{t+3}, 3, v{t+5}")
    a(f"v_lshl_add_u32 v{t+5}, v{t+4}, 5, v{t+5}")
    a("s_and_b32 s51, s60, 1")
    a("s_lshl_b32 s51, s51, 3")
    a(f"v_add_u32 {vr(vTQ)}, s51, v{t+5}")
    a(f"v_add_u32 {vr(vTQ+1)}, {XS}, {vr(vTQ)}")
    a(f"v_add_u32 {vr(vTQ+2)}, {XS+2*AR}, {vr(vTQ)}")
    a("s_mul_i32 s54, s60, 3")
    for i in range(3):
        a(f"s_add_u32 s51, s54, {i}")
        a(f"s_lshr_b32 s62, s51, 4")
        a("s_and_b32 s51, s51, 15")
        a("s_lshl_b32 s51, s51, 6")
        a("s_add_u32 s51, s51, s52")
        a("s_lshl_b32 s56, s51, 11")
        a("s_lshl_b32 s57, s51, 12")
        a(f"s_lshl_b32 s58, s62, 11")
        a("s_add_u32 s57, s57, s58")
        a(f"s_add_u32 s57, s57, {WS_KV-2048}")
        a(f"s_cmp_eq_u32 s62, 0")
        a(f"s_cselect_b32 s{32+i}, s56, s57")
        a(f"s_cselect_b32 s{35+i}, {f2u(QSCALE):#x}, 1.0")
    a("s_mov_b32 s42, 0"); a("s_mov_b32 s43, -1")
    a("s_mov_b32 s38, 0x0fffffff"); a("s_mov_b32 s39, 0x0fffffff")
    st(name="_hsetup")
    xload(cfg.XA - 1)
    def dots(cb):
        for r in range(X0+16*cb, X0+16*cb+16):
            a(f"v_dot2c_f32_bf16 v{AS+(r&1)}, v{r}, v{t+8}")
            a(f"v_dot2c_f32_bf16 v{AS+2+(r&1)}, v{r}, v{r}")
    for cb in range(7):
        a.wait(vm=("x", cb))
        st(name=("" if cb == 6 else "_") + f"x{cb}")
        for sp in range(4): a.lg(f"ds_read_b128 {vr(X0+16*cb+4*sp,4)}, {vr(vX+sp)} offset:{cb*4096}", ("x", cb))
        if cb + cfg.XA < 7: xload(cb + cfg.XA)
        if cb == cfg.BX: a("s_barrier")
        if cb == 6:
            a("s_cmp_lg_u32 s44, 1")
            a("s_cbranch_scc1 L_nocnt")
            a(f"ds_write_b32 v{t+9}, v{t+10}")
            a("L_nocnt:")
        if cb:
            a.wait(lg=("x", cb-1)); dots(cb-1)
    a.wait(lg="all")
    a("s_barrier")
    dots(6)
    a(f"s_mov_b32 s51, {f2u(1/448):#x}")
    a(f"s_mov_b32 s55, {f2u(1e-5):#x}")
    a("s_nop 0")
    a(f"v_add_f32 v{AS}, v{AS}, v{AS+1}")
    a(f"v_add_f32 v{AS+2}, v{AS+2}, v{AS+3}")
    a(f"v_mov_b32 v{AS+1}, v{AS}")
    a(f"v_mov_b32 v{AS+3}, v{AS+2}")
    a("s_nop 1")
    a(f"v_permlane32_swap_b32 v{AS+1}, v{AS}")
    a(f"v_permlane32_swap_b32 v{AS+3}, v{AS+2}")
    a("s_nop 1")
    a(f"v_add_f32 v{AS}, v{AS}, v{AS+1}")
    a(f"v_add_f32 v{AS+2}, v{AS+2}, v{AS+3}")
    a(f"v_mul_f32 v{AS}, s51, v{AS}")
    a(f"v_mul_f32 v{AS+2}, s51, v{AS+2}")
    a(f"v_fma_f32 v{AS+2}, -v{AS}, v{AS}, v{AS+2}")
    a(f"v_max_f32 v{AS+2}, 0, v{AS+2}")
    a(f"v_add_f32 v{AS+2}, s55, v{AS+2}")
    a(f"v_rsq_f32 v{vR}, v{AS+2}")
    a("s_nop 0")
    a(f"v_mul_f32 v{vR+1}, -v{AS}, v{vR}")
    st(name="_t0")
    def ln_pk(k):
        for i in range(4):
            r = X0 + 4*k + i
            a(f"v_lshlrev_b32 v{LT+2*i}, 16, v{r}"); a(f"v_and_b32 v{LT+2*i+1}, s61, v{r}")
        for i in range(4): a(f"v_pk_fma_f32 {vr(LT+2*i,2)}, {vr(LT+2*i,2)}, {vr(vR,2)}, {vr(vR,2)} op_sel:[0,0,1] op_sel_hi:[1,0,1]")
        for i in range(4): a(f"v_cvt_pk_bf16_f32 v{X0+4*k+i}, v{LT+2*i}, v{LT+2*i+1}")
    K0 = cfg.K0; KT = 28 - K0; NA = 84
    KQ = cfg.KQ
    order = [("q", k, tl) for k in range(KQ) for tl in range(3)] + [("q", k, tl) for tl in range(3) for k in range(KQ, 28)]
    nxt = [0]*7; AV = [0, 0, 0, 0] + list(cfg.AV)
    for ff in range(7*K0):
        tl = min((t_ for t_ in range(7) if ff >= AV[t_] and nxt[t_] < K0), key=lambda t_: (nxt[t_], t_))
        order.append(("f", nxt[tl], tl)); nxt[tl] += 1
    order += [("f", k, tl) for tl in range(7) for k in range(K0, 28)]
    lastq = {tl: max(f for f in range(NA) if order[f][2] == tl) for tl in range(3)}
    chunk = lambda f: order[f][1] // 4 + (7 if order[f][0] == "f" else 0)
    first = {c: min(f for f in range(len(order)) if chunk(f) == c) for c in range(14)}
    last = {c: max(f for f in range(len(order)) if chunk(f) == c) for c in range(14)}
    xlast = {max(f for f in range(len(order)) if order[f][1] == k): k for k in range(6)}
    LE = min(79, lastq[0] - 2 - (1 if KQ < 26 else 0))
    JOIN = last[7] + 1
    NM = len(order); SC = NA + 7*K0
    HP = 52
    ACC = 16; HR = 80; W = 112; WREG = 128
    vD = 12; vD2 = 2; vT0 = 8; vT1 = 9; vP = 10; vL1 = 11; u = 44
    SK = [70, 71, 72, 73, 74, 75, 76]
    late = ["s_and_b32 s40, s44, 1", "s_lshr_b32 s41, s44, 1", f"s_mul_i32 s77, s44, {RNG}",
            f"s_mul_i32 s65, s52, {144*1024}", f"s_mul_i32 s51, s46, {7*1024}", "s_add_u32 s65, s65, s51", f"s_add_u32 s65, s65, {WS_A}", "s_add_u32 s66, s65, 4096",
            "s_lshl_b32 s46, s50, 7", f"s_mul_i32 s0, s44, {448*896}", "s_add_u32 s0, s0, s46",
            f"s_mul_i32 s1, s40, {8*28*128}", f"s_add_u32 s1, s1, {WOS}", "s_sub_u32 s1, s1, s77",
            f"s_mul_i32 s51, s49, {2*144*1024}", f"s_mul_i32 s55, s44, {28*1024}", "s_add_u32 s55, s55, s51", f"s_add_u32 s55, s55, {WS_A}",
            f"s_mul_i32 s21, s41, {144*1024}", "s_add_u32 s20, s55, s21", "s_add_u32 s69, s51, s21", "s_sub_u32 s21, s55, s21", f"s_add_u32 s21, s21, {144*1024}",
            "s_lshl_b32 s51, s40, 14", "s_add_u32 s69, s69, s51", f"s_add_u32 s69, s69, {WS_A+112*1024}",
            "s_lshr_b32 s68, s49, 1", "s_lshl_b32 s68, s68, 11",
            "s_lshl_b32 s51, s44, 9", "s_add_u32 s47, s68, s51", f"s_add_u32 s47, s47, {WS_F+32768}",
            "s_lshl_b32 s51, s40, 10", "s_add_u32 s68, s68, s51", f"s_add_u32 s68, s68, {WS_F+65536}",
            "s_lshl_b32 s45, s49, 1", "s_add_u32 s45, s45, s41", "s_lshl_b32 s45, s45, 5",
            f"s_mul_i32 s7, s44, {14*1024}", f"s_mul_i32 s6, s44, {14*8*896}", "s_add_u32 s6, s6, s46",
            "s_lshl_b32 s51, s40, 6", "s_add_u32 s46, s46, s51", "s_mov_b32 s51, s64", "s_add_u32 s59, s59, 32768"]
    for g in range(7):
        late.append(f"s_lshl_b32 s{SK[g]}, s51, 12")
        if g < 6: late += ["s_add_u32 s51, s51, 1", "s_cmp_ge_u32 s51, 7", "s_cselect_b32 s51, 0, s51"]
    b_ = Asm(); srd(b_, 28, 16, 1792*448*2); srd(b_, 12, 8, 448*448*2); srd(b_, 8, 4, 2048*448*2)
    late += [l.strip() for l in b_.L]
    late += [f"v_lshrrev_b32 v{u}, 3, v0", f"v_bfe_u32 v{u+3}, v0, 4, 1", f"v_lshlrev_b32 v{u+1}, 2, v{u+3}", f"v_and_b32 v{u+2}, 7, v0",
             f"v_xor_b32 v{u+2}, v{u+2}, v{u+1}", f"v_mul_u32_u24 v{u}, 896, v{u}", f"v_lshl_add_u32 {vr(vD)}, v{u+2}, 4, v{u}",
             f"v_bfe_u32 v{u}, v0, 2, 2", f"v_lshrrev_b32 v{u+4}, 5, v0", f"v_lshl_add_u32 v{u+1}, v{u+4}, 2, v{u}", f"v_lshlrev_b32 v{u+1}, 7, v{u+1}",
             f"v_and_b32 v{u+2}, 3, v0", f"v_lshl_add_u32 v{u+1}, v{u+2}, 3, v{u+1}", f"v_lshl_add_u32 v{u+1}, v{u+3}, 5, v{u+1}", f"v_lshrrev_b32 v{u}, 1, v{u}",
             f"v_xor_b32 v{u}, s40, v{u}", f"v_lshl_add_u32 v{u+1}, v{u}, 6, v{u+1}", f"v_add_u32 {vr(vT0)}, s77, v{u+1}", f"v_xor_b32 {vr(vT1)}, 64, {vr(vT0)}",
             f"v_and_b32 v{u}, 31, v0", f"v_add_u32 v{u}, s45, v{u}", f"v_mul_u32_u24 v{u}, 896, v{u}", f"v_lshl_add_u32 v{u}, v{u+4}, 4, v{u}", f"v_add_u32 v6, s46, v{u}",
             f"v_add_u32 v13, s1, {vr(vT0)}", "v_xor_b32 v14, 64, v13",
             f"v_bfe_u32 {vr(vP)}, v0, 1, 2", f"v_lshlrev_b32 {vr(vP)}, 7, {vr(vP)}",
             f"v_add_u32 v15, s20, {vr(vL)}", f"v_add_u32 {vr(vL1)}, s21, {vr(vL)}"]
    early = ["s_lshl_b32 s59, s45, 4", "s_add_u32 s59, s59, s46", "s_lshl_b32 s59, s59, 7", f"s_add_u32 s59, s59, {WS_F}", "v_mov_b32 v6, 0"]
    class Z: pass
    z = Z()
    tmp = [128, 132, 136, 140]
    z.pool = [240, 244, 248, 252, 8, 12] + tmp; z.freg = {}; z.rp = 0; z.waited = -1; z.lim = 1; z.epiq = []
    z.lq = []
    for k in range(cfg.LPRE, 28): z.lq += [(k, o) for o in ln_ops(X0, k, LT, vR, 4)]
    checks = {first[2] - 7: ("gq24", GQ1, 3), first[4] - 7: ("gq48", GQ2, 4), first[5] - 7: ("gq60", GQ3, 5), first[6] - 7: ("gq72", GQ4, 6), NA - 7: ("gate0", GATE(0), 7)}
    GL = [1, 2] + ([3] if cfg.G23 else []) + [4, 5] + ([6] if K0 == 24 else [])
    for g in GL: checks[first[7+g] - 8] = (f"gate{g}", GATE(g), 10 if (g == 2 and not cfg.G23) else 7 + g if g < GL[-1] else 13)
    assert all(b - a_ >= 4 for a_, b in zip(sorted(checks), sorted(checks)[1:]))
    ool = []
    def frag(f):
        p, k, tl = order[f]; g, sp = k // 4, k % 4
        c = [r_ for r_ in z.pool if not (r_ in tmp and f >= NA)]
        if not c: return False
        reg = c[0]; z.pool.remove(reg); z.freg[f] = reg
        for rd in range(2):
            if p == "q":
                if g < 4: ad, off = vTQ, g*12288 + 16*sp*192
                else: ad, off = vTQ + 1 + sp//2, (sp % 2)*AR + QA[g]
                off += 4*rd*192 + tl*56
            else:
                if FSLOT[g] == "D": ad, off = vTF, 16*sp*224
                else: ad, off = vTF+1, FA[FSLOT[g]] + (sp//2)*AR + 16*(sp % 2)*224
                off += 4*rd*224 + tl*32
            a.lg(f"ds_read_b64_tr_b16 {vr(reg+2*rd,2)}, {vr(ad)} offset:{off}", ("f", f))
        return True
    def epi_q(tl, var):
        b = AQ + 16*tl
        o = [] if var else [f"v_mul_f32 v{b+r}, s{35+tl}, v{b+r}" for r in range(16)]
        o += [f"v_cvt_pk_bf16_f32 v{b+r}, v{b+2*r}, v{b+2*r+1}" for r in range(8)]
        o += [f"v_cndmask_b32 v{b+r}, v6, v{b+r}, s[38:39]" for r in range(8)] if var else [f"v_cndmask_b32 v{b+r}, v{b+r}, 0, s[42:43]" for r in (6, 7)]
        if tl == 2 and not var: o.append(("mix",))
        o += [("vm", f"buffer_store_dwordx4 {vr(b+4*q,4)}, {vr(vL)}, s[24:27], s{32+tl} offen offset:{1024*q} {SC1}") for q in range(2)]
        return [(tl, x) for x in o]
    def epi_f(tl):
        b = ACCF + 16*tl
        return [(None, x) for x in [f"v_max_f32 v{b+r}, 0, v{b+r}" for r in range(8)] + [f"v_mul_f32 v{b+r}, v{b+r}, v{b+8+r}" for r in range(8)] +
                [f"v_cvt_pk_bf16_f32 v{HP+4*tl+r}, v{b+2*r}, v{b+2*r+1}" for r in range(4)]]
    epi_at = {SC + KT*tl + KT - 1 + 3: epi_f(tl) for tl in range(7)}
    def put(x):
        if isinstance(x, str): a(x); return 1
        if x[0] == "vm": a.vm(x[1], "st"); return 4
        a("s_cmp_eq_u32 s60, 10"); a("s_cbranch_scc1 L_mix"); a("L_mix_x:"); return 2
    def stream(lo, hi, var):
        sfx = "v" if var else ""
        for f in range(lo, hi):
            p, k, tl = order[f]; ff = f - NA
            used = 0
            if p == "f" and tl >= 4 and k == 0:
                flushed = False
                while any(e[0] is not None and e[0] <= tl - 4 for e in z.epiq): put(z.epiq.pop(0)[1]); flushed = True
                if flushed: a("s_nop 1")
            if f > z.waited:
                z.waited = min(NM-1, f + (2 if p == "q" else 1 if z.rp - f < 7 else 3), z.rp-1)
                assert z.waited >= f
                wait_lg_tags(a, [("f", z.waited)])
            assert not z.lq or z.lq[0][0] > k
            acc = vr((AQ if p == "q" else ACCF) + 16*tl, 16)
            ab = [vr(z.freg[f], 4), vr(X0+4*k, 4)]
            sw = var if p == "q" else 0
            a(f"v_mfma_f32_32x32x16_bf16 {acc}, {ab[sw]}, {ab[1-sw]}, {'0' if k == 0 else acc}")
            st(name=f"_a{f}" if p == "q" else f"_f{ff}")
            if f == z.waited: used += 1
            if f >= 1 and not (z.freg[f-1] in (8, 12) and f > max(xlast)): z.pool.append(z.freg[f-1])
            if f - 1 in xlast: z.pool.append(X0 + 4*xlast[f-1])
            for t_ in range(3):
                if f == lastq[t_] + 3: z.epiq += epi_q(t_, var)
            if f == JOIN + 2: z.epiq += [(None, x) for x in early]
            if f in epi_at: z.epiq += epi_at.pop(f)
            sig = {33: CQ2, 57: CE, last[7]: CONS(0), last[8]: CONS(1)}
            if cfg.EW: sig[last[9]] = CONS(2)
            if f in sig:
                if f < NA: assert z.waited >= f + 2
                lds_add(a, vr(vC), vr(vOne), sig[f], "c"); used += 3
            if f == 81: st(name="b7")
            if f + 3 in checks:
                a.lg(f"ds_read_b32 {vr(vG)}, {vr(vC)} offset:{checks[f+3][1]}", "g"); used += 1
            if f + 1 in checks:
                a.wait(lg="g"); a(f"v_cmp_gt_u32 vcc, 4, {vr(vG)}"); used += 2
            if f in checks:
                lab = f"L_{checks[f][0]}{sfx}"
                st(name=f"_pre{checks[f][0]}")
                a(f"s_cbranch_vccnz {lab}"); a(f"{lab}_x:"); used += 1
                ool.append((lab, checks[f][1]))
                z.lim = checks[f][2]
                st(name=f"_{checks[f][0]}")
            if ff == cfg.FL:
                assert not z.epiq
                st(name="_prefl0")
                a.wait(vm="all")
                if cfg.CF: lds_add(a, vr(vC), vr(vOne), AF, "c"); st(name="fl0")
                else: arrive(a, "v6", vr(vC), vr(vOne), 0, "ar")
                used += 4
            if ff == cfg.FL + 3 and not cfg.CF:
                a.wait(lg="ar")
                flag_if_last(a, "v6", vr(vOne), "s59"); used += 5
                st(name="fl0")
            if cfg.SA and used <= 1 and z.epiq and isinstance(z.epiq[0][1], tuple) and z.epiq[0][1][0] == "vm" and z.rp > f + 3 and f < JOIN - 4:
                put(z.epiq.pop(0)[1]); continue
            n = 0
            while z.rp < NM and chunk(z.rp) <= z.lim and z.rp <= f + 8 and n < 2 and frag(z.rp):
                z.rp += 1; n += 1; used += 2
            take = -(-len(z.lq) // max(1, LE - f))
            for q in range(min(take, len(z.lq))): a(z.lq.pop(0)[1]); used += 1
            while z.epiq and used < (cfg.SLOTS if ff < cfg.LP0 else 8):
                if cfg.SA and isinstance(z.epiq[0][1], tuple) and z.epiq[0][1][0] == "vm":
                    c = [q for q, e in enumerate(z.epiq) if isinstance(e[1], str)]
                    if not c: break
                    used += put(z.epiq.pop(c[0])[1])
                else: used += put(z.epiq.pop(0)[1])
            if ff >= cfg.LP0 and used < cfg.LPN: a(f"s_nop {cfg.LPN - used - 1}")
            if ff > max(cfg.FL + 5, 72):
                assert 8 not in z.pool and 12 not in z.pool and all(z.freg[q] not in (8, 12) for q in range(f, z.rp))
                n = 0
                while late and used < cfg.SLOTS - 1 and n < 2: a(late.pop(0)); used += 1; n += 1
    a.raw(".p2align 3")
    for k in range(cfg.LPRE - cfg.LP2 - 1): ln_pk(k)
    a(f"ds_read_b32 {vr(vG)}, {vr(vC)} offset:{GQ0}")
    ln_pk(cfg.LPRE - cfg.LP2 - 1)
    st(name="_p0")
    a("s_waitcnt lgkmcnt(0)")
    a(f"v_cmp_gt_u32 vcc, 4, {vr(vG)}")
    a("s_cmp_ge_u32 s60, 11")
    a("s_nop 2")
    a("s_cbranch_vccnz L_gq0"); a("L_gq0_x:"); ool.append(("L_gq0", GQ0))
    st(name="b0")
    for k in range(7): frag(k); z.rp += 1
    for k in range(cfg.LPRE - cfg.LP2, cfg.LPRE): ln_pk(k)
    a("s_cbranch_scc1 L_pav")
    import copy
    saved = (list(a.vmq), list(a.lgq), st.n, list(st.names), len(a.L), copy.deepcopy(z.__dict__))
    a.raw(".p2align 3")
    a("L_pav:")
    stream(0, JOIN, 1)
    a("s_branch L_pav_x")
    endv = (list(a.vmq), list(a.lgq), copy.deepcopy(z.__dict__))
    vcode = a.L[saved[4]:]; a.L = a.L[:saved[4]]
    a.vmq, a.lgq, st.n, st.names = saved[0], saved[1], saved[2], saved[3]
    z.__dict__.update(saved[5])
    stream(0, JOIN, 0)
    assert endv == (a.vmq, a.lgq, z.__dict__)
    a("L_pav_x:")
    stream(JOIN, NM, 0)
    assert not late
    lds_add(a, vr(vC), vr(vOne), HD-CNT)
    for e in z.epiq: put(e[1])
    a(f"v_add_u32 {vr(vD2)}, {8*896-1024}, {vr(vD)}")
    a("v_mov_b32 v1, 0")
    a("s_nop 5")
    for k in sorted(epi_at):
        for e in epi_at[k]: put(e[1])
    st(name="hg1")
    assert cfg.HST == 0
    def pace(n):
        if len(a.vmq) > n:
            a(f"s_waitcnt vmcnt({n})"); a.vmq = a.vmq[len(a.vmq)-n:]
    def hstore(tl): a.vm(f"buffer_store_dwordx4 {vr(HP+4*tl,4)}, {vr(vL)}, s[24:27], {'s65' if tl < 4 else 's66'} offen offset:{1024*(tl%4)} {SC1}", "st")
    def hflag():
        arrive(a, "v1", vr(vC), vr(vOne), 1)
        a.wait(lg="all")
        flag_if_last(a, "v1", vr(vOne), "s59")
    if cfg.HST != 1: lds_wait(a, "L_ha", vr(vC), "v5", 4, sleep=2, off=HA-CNT)
    st(name="_ha")
    keep = list(a.vmq)
    a("s_cmp_lt_u32 s50, 7")
    a("s_cbranch_scc1 L_htile")
    lds_add(a, vr(vC), vr(vOne), HX)
    for tl in range(7 if cfg.HST == 0 else 0):
        pace(1); hstore(tl)
    a.wait(vm="all"); hflag()
    a("s_branch L_h_end")
    a("L_htile:")
    a.vmq = keep
    a(f"s_setprio {cfg.PH2}")
    for i in range(2): a.vm(f"buffer_load_dwordx4 {vr(HR+4*i,4)}, v6, s[8:11], 0 offen offset:{32*i}", "x")
    lds_wait(a, "L_hdh", vr(vC), "v5", 4, off=HD-CNT)
    def slot(i): return (CB1 + 2048*i) if i < 6 else RB + 2048*((i - 6) % 6 if i < 22 else i - 22)
    def wdma(i, half):
        if half == 0:
            a(f"s_add_u32 m0, s77, {slot(i)}")
            a(f"s_mul_i32 s4, s{SK[i//4]}, 14")
            a("s_add_u32 s4, s4, s0")
            if i % 4: a(f"s_add_u32 s4, s4, {(i%4)*16*896}")
            a.vm(f"buffer_load_dwordx4 {vr(vD)}, s[28:31], s4 offen lds", ("w", i))
        else:
            a.vm(f"buffer_load_dwordx4 {vr(vD2)}, s[28:31], s4 offen offset:1024 lds", ("w", i))
    def wodma(k):
        a(f"s_add_u32 m0, s7, {WOS+k*1024}")
        a(f"s_add_u32 s5, s6, {k*8*896}")
        a.vm(f"buffer_load_dwordx4 {vr(vD)}, s[12:15], s5 offen lds", "wo")
    wlate = {}
    def wreg(i): return wlate[i] if i >= 22 else WREG + 8*(i-6) if i >= 6 else W + 8*(i & 1)
    def reads(i):
        for ct in range(2):
            for r_ in range(2):
                a.lg(f"ds_read_b64_tr_b16 {vr(wreg(i)+4*ct+2*r_,2)}, {vr(vT0+ct)} offset:{slot(i)+r_*1024}", ("r", i))
    seq = list(range(6, 22)) + ([5] if cfg.EW else list(range(6))) + [("wo", k) for k in range(0, cfg.WOP, 2)]
    woq = list(range(cfg.WOP, 14))
    rd = 6; nst = 7 if cfg.HST else 0; flagged = False
    for n, it in enumerate(seq):
        V1 = cfg.V1 if n < cfg.VN else cfg.V1B
        for q in range(cfg.HSN):
            if nst < 7 and n % cfg.HSI == 0:
                pace(V1); hstore(nst); nst += 1
        if isinstance(it, tuple):
            for k in (it[1], it[1]+1):
                pace(V1); wodma(k)
        else:
            if 12 <= it < 22:
                while rd <= it - 6:
                    a.wait(vm=("w", rd)); reads(rd); rd += 1
                a.wait(lg=("r", it-6))
            for half in range(2):
                pace(V1); wdma(it, half)
        while rd < 22 and rd in seq[:n+1] and a._cnt(a.vmq, ("w", rd)) is None:
            if len(a.lgq) >= 12: a.wait(lg="all")
            reads(rd); rd += 1
        if nst == 7 and not flagged and a._cnt(a.vmq, "st") is None:
            hflag(); flagged = True
            st(name="hfl1")
    assert flagged
    st(name="hpre")
    poll(a, "L_p2", "v5", vr(vP), "s[24:27]", "s47", 1, sleep=8)
    st(name="hpoll2")
    while rd < 22:
        if len(a.lgq) >= 12: a.wait(lg="all")
        reads(rd); rd += 1
    for b in (0, 4):
        a(f"v_permlane32_swap_b32 v{HR+b}, v{HR+b+2}")
        a(f"v_permlane32_swap_b32 v{HR+b+1}, v{HR+b+3}")
    a("s_mov_b32 s51, 0xffff0000")
    for i in range(8):
        a(f"v_lshlrev_b32 v{ACC+2*i}, 16, v{HR+i}")
        a(f"v_and_b32 v{ACC+2*i+1}, s51, v{HR+i}")
    srd(a, 8, 18, 2048*448*2)
    a(f"v_and_b32 {vr(vP)}, 7, v0")
    a(f"v_lshlrev_b32 {vr(vP)}, 7, {vr(vP)}")
    a.wait(lg="all")
    hpool = [HR + 8*k for k in range(4)]
    hreg = {}
    opq = []
    nh = [0]
    def hload(i, tt):
        if tt == 0: hreg[i] = hpool.pop(0)
        a.vm(f"buffer_load_dwordx4 {vr(hreg[i]+4*tt,4)}, {vr(15 if tt == 0 else vL1)}, s[24:27], s{SK[i//4]} offen offset:{1024*(i%4)} {SC1}", ("h", i))
    ringq = [(i, half) for i in range(22, 28) for half in range(2)]
    def next_op(v):
        k = nh[0]
        if ringq and ringq[0][1] == 1: pace(v); wdma(*ringq.pop(0))
        elif k < 56 and (k % 2 or hpool): pace(v); hload(k // 2, k % 2); nh[0] += 1
        elif ringq: pace(v); wdma(*ringq.pop(0))
        elif woq: pace(v); wodma(woq.pop(0))
        else: return False
        return True
    for k in range(8): next_op(cfg.V2)
    reads(0)
    assert 15 <= cfg.N1 <= cfg.EP <= 19
    PA = [None, 12, 2, 11]
    def dmf(i, m):
        tt, ct = m // 2, m % 2
        acc = vr(ACC+16*m, 16)
        a(f"v_mfma_f32_32x32x16_bf16 {acc}, {vr(wreg(i)+4*ct,4)}, {vr(hreg[i]+4*tt,4)}, {'0' if (i == 0 and m) else acc}")
    nr = 22
    for i in range(22):
        if i == cfg.N1:
            while next_op(cfg.V3): pass
            assert nh[0] == 56 and not ringq and not woq
            a(f"v_add_u32 v1, s77, {vr(vL)}")
            for j in range(1, 4):
                a(f"s_xor_b32 s51, s44, {j}")
                a(f"s_mul_i32 s51, s51, {RNG}")
                a(f"v_add_u32 v{PA[j]}, s51, {vr(vL)}")
            a("s_lshl_b32 s51, s41, 2")
            a(f"v_add_u32 v15, s51, {vr(vC)}")
            a("s_mov_b32 s12, s22"); a("s_mov_b32 s13, s23")
            hpool += [W, W + 8]
            st(name="hN1")
            lds_wait(a, "L_ca", vr(vC), "v5", 1, sleep=1, off=CW)
        if i == cfg.EP: a.vm(f"buffer_load_dword v5, {vr(vP)}, s[24:27], s68 offen {SC1}", "p3")
        if i + 1 < 6:
            a.wait(vm=("w", i+1)); reads(i+1)
        assert nh[0] >= 2*i + 2
        a.wait(vm=("h", i), lg=("r", i))
        if i == 5: lds_add(a, vr(vC), vr(vOne), HX, "c")
        for m in range(4):
            dmf(i, m)
            if m == 0 and i >= 1:
                hpool.append(hreg[i-1])
                if 6 <= i-1: hpool.append(wreg(i-1))
            if i < cfg.N1:
                next_op(cfg.V2)
                if cfg.PAD: a(f"s_nop {cfg.PAD-1}")
            if i >= 19 and m in (0, 2):
                wlate[nr] = hpool.pop(0)
                a.wait(vm=("w", nr));
                if len(a.lgq) > 8: a.wait(lg=("r", nr-2))
                reads(nr); nr += 1
            if i == 21 and m == 1:
                a.wait(vm="all")
                a("v_cmp_gt_u32 vcc, 1, v5")
            if i == 21 and m == 3:
                a("s_cmp_eq_u64 vcc, 0")
                a(f"s_cselect_b32 s14, {WS_BYTES}, 0")
    assert nr == 28
    oreg = {}
    def oload(k, srd_):
        if k == 0: a("s_mov_b32 s4, s69")
        elif k % 4 == 0: a("s_add_u32 s4, s4, 4096")
        if k not in oreg:
            b = hpool.pop(0); oreg[k] = b; oreg[k+1] = b + 4
        a.vm(f"buffer_load_dwordx4 {vr(oreg[k],4)}, {vr(vL)}, {srd_}, s4 offen offset:{1024*(k%4)} {SC1}", ("o", k))
    a.wait(lg="all")
    no = 0
    for q, (i, m) in enumerate([(i, m) for i in range(22, 28) for m in (2, 3)]):
        dmf(i, m)
        if q == 0: hpool += [hreg[21], wreg(21)]
        oload(no, "s[12:15]"); no += 1
    for q, (i, m) in enumerate([(i, m) for i in range(22, 28) for m in (0, 1)]):
        dmf(i, m)
        if m == 0 and i > 22: hpool += [hreg[i-1], wreg(i-1)]
        if q < 2:
            for z in range(2): oload(no, "s[12:15]"); no += 1
        if q == 2: a("s_nop 3")
        if 2 <= q < 10: a(f"ds_write_b128 v1, {vr(ACC+32+4*(q-2),4)} offset:{RB+4096+(q-2)*1024}")
        if q == 10: lds_add(a, vr(vC), vr(vOne), R1)
    st(name="hdown")
    a("v_and_b32 v8, 0xfffffdff, v13"); a("v_and_b32 v9, 0xfffffdff, v14")
    WFB = [hpool.pop(0) for k in range(5)]
    def wf(k): return WFB[(k % 10)//2] + 4*(k % 2)
    morder = [(stp, 1) for stp in range(cfg.LAG)]
    for stp in range(16):
        if stp + cfg.LAG < 16: morder.append((stp + cfg.LAG, 1))
        morder.append((stp, 0))
    def wrd(k):
        stp, ct = morder[k]
        row = 28*(stp//2) + 16*(stp % 2)
        for r_ in range(2):
            ad = (8 if (stp == 15 and r_) else 13) + ct
            a.lg(f"ds_read_b64_tr_b16 {vr(wf(k)+2*r_,2)}, v{ad} offset:{(row+8*r_)*128}", ("w", k))
    lds_wait(a, "L_r1", vr(vC), "v5", 4, off=R1)
    for k in range(3): wrd(k)
    for j in (2, 3):
        for q in range(4): a.lg(f"ds_read_b128 {vr(ACC+16*j+4*q,4)}, v{PA[j]} offset:{RB+(j-1)*4096+q*1024}", ("p", j))
    st(name="hred")
    a("s_cmp_lg_u32 s14, 0")
    a("s_cbranch_scc1 L_early")
    poll(a, "L_p3", "v5", vr(vP), "s[24:27]", "s68", 1, sleep=cfg.PS3)
    for k in range(16): oload(k, "s[24:27]")
    a("L_early:")
    st(name="hpoll3")
    last1 = max(k for k in range(32) if morder[k][1] == 1)
    adds = [f"v_add_f32 v{ACC+32+r}, v{ACC+32+r}, v{ACC+48+r}" for r in range(16)] + [f"v_add_f32 v{ACC+r}, v{ACC+r}, v{ACC+32+r}" for r in range(16)]
    wp = 3
    for k in range(32):
        stp, ct = morder[k]
        if ct == 0: assert not adds
        a.wait(vm=("o", stp), lg=(("w", k) if k < 4 else ("w", min(31, k+1)) if k % 2 == 0 else None))
        acc = vr(ACC+16*ct, 16)
        a(f"v_mfma_f32_32x32x16_bf16 {acc}, {vr(wf(k),4)}, {vr(oreg[stp],4)}, {acc}")
        if k == 1: a.wait(lg=("p", 3))
        for z in range(2 if k else 0):
            if wp < 32 and wp <= k + 6: wrd(wp); wp += 1
        if 1 <= k < cfg.LAG:
            for z in range(-(-len(adds) // (cfg.LAG - k))): a(adds.pop(0))
        if k == cfg.LAG + 2 and cfg.OT:
            for s_ in ("s_xor_b32 s51, s44, 2", f"s_mul_i32 s51, s51, {RNG}", "s_add_u32 s51, s51, 4096", "v_and_b32 v2, 31, v0", "v_mul_u32_u24 v2, 80, v2"): a(s_)
        if k == cfg.LAG + 3 and cfg.OT:
            for s_ in ("v_lshrrev_b32 v5, 5, v0", "v_lshl_add_u32 v2, v5, 3, v2", "v_add_u32 v2, s51, v2", "v_lshrrev_b32 v5, 2, v0"): a(s_)
        if k == cfg.LAG + 4 and cfg.OT:
            for s_ in ("v_mul_u32_u24 v11, 80, v5", "v_and_b32 v10, 3, v0", "v_lshl_add_u32 v11, v10, 4, v11", "v_add_u32 v11, s51, v11"): a(s_)
        if k == cfg.LAG + 5 and cfg.OT:
            for s_ in ("v_add_u32 v5, s45, v5", "v_mul_u32_u24 v5, 896, v5", "v_lshl_add_u32 v5, v10, 4, v5", "v_add_u32 v6, s46, v5", f"s_mov_b32 s51, {16*896}"): a(s_)
        if k == last1 + 2:
            a("s_nop 7")
            for q in range(4): a.lg(f"ds_write_b128 v1, {vr(ACC+16+4*q,4)} offset:{RB+q*1024}", "e")
            lds_add(a, "v15", vr(vOne), RX, "e")
    st(name="homf")
    PT = ACC + 32; OF = ACC + 48
    lds_wait(a, "L_rx", "v15", "v5", 2, off=RX)
    for q in range(4): a.lg(f"ds_read_b128 {vr(PT+4*q,4)}, v{PA[1]} offset:{RB+q*1024}", ("e", q))
    for hq in range(2):
        a.wait(lg=("e", 2*hq+1))
        for r in range(8*hq, 8*hq+8): a(f"v_add_f32 v{ACC+r}, v{ACC+r}, v{PT+r}")
        for r in range(4*hq, 4*hq+4): a(f"v_cvt_pk_bf16_f32 v{OF+r}, v{ACC+2*r}, v{ACC+2*r+1}")
        b = 4*hq
        if cfg.OT:
            for z in range(2): a(f"ds_write_b64 v2, {vr(OF+b+2*z,2)} offset:{RB+32*hq+16*z}")
            continue
        a("s_nop 1")
        a(f"v_permlane32_swap_b32 v{OF+b}, v{OF+b+2}")
        a(f"v_permlane32_swap_b32 v{OF+b+1}, v{OF+b+3}")
        a(f"buffer_store_dwordx4 {vr(OF+b,4)}, v6, s[8:11], 0 offen offset:{32*hq}")
    if cfg.OT:
        for z in range(2): a.lg(f"ds_read_b128 {vr(PT+4*z,4)}, v11 offset:{RB+16*80*z}", ("t", z))
        for z in range(2):
            a.wait(lg=("t", z))
            a(f"buffer_store_dwordx4 {vr(PT+4*z,4)}, v6, s[8:11], {'s51' if z else '0'} offen {cfg.OFL}")
    a("L_h_end:")
    st.flush(63, 8)
    a("s_endpgm")
    a.L += vcode
    for lab, off in ool:
        lds_wait(a, lab, vr(vC), vr(vG), 4, off=off)
        a(f"s_branch {lab}_x")
    a("L_mix:")
    b = AQ + 32; m = b + 8
    for s_ in (f"v_mov_b32 v{m}, 0x3f80", f"v_cndmask_b32 v{b+6}, v{b+6}, v{m}, s[42:43]", "s_lshl_b32 s51, s44, 11", f"s_add_u32 s51, s51, {VS0}",
               f"v_lshrrev_b32 v{m+5}, 5, v0", f"v_and_b32 v{m}, 31, v0", f"v_lshlrev_b32 v{m}, 6, v{m}", f"v_lshl_add_u32 v{m}, v{m+5}, 3, v{m}",
               f"v_bfe_u32 v{m+1}, v0, 1, 2", f"v_lshl_add_u32 v{m}, v{m+1}, 4, v{m}", f"v_add_u32 v{m}, s51, v{m}",
               f"v_xor_b32 v{m+1}, 16, v{m}", f"v_xor_b32 v{m+2}, 32, v{m}", f"v_xor_b32 v{m+3}, 48, v{m}",
               f"v_bfe_u32 v{m+4}, v0, 2, 2", f"v_lshl_add_u32 v{m+4}, v{m+5}, 2, v{m+4}", f"v_lshrrev_b32 v{m+5}, 1, v{m+4}", f"v_lshlrev_b32 v{m+5}, 4, v{m+5}",
               f"v_and_b32 v{m+6}, 3, v0", f"v_lshlrev_b32 v{m+6}, 3, v{m+6}", f"v_bfe_u32 v{m+7}, v0, 4, 1", f"v_lshl_add_u32 v{m+6}, v{m+7}, 5, v{m+6}",
               f"v_xor_b32 v{m+5}, v{m+5}, v{m+6}", f"v_lshlrev_b32 v{m+4}, 6, v{m+4}", f"v_add3_u32 v{m+4}, v{m+4}, v{m+5}, s51"): a(s_)
    a("s_mov_b64 s[56:57], vcc")
    lds_wait(a, "L_mixw", vr(vC), f"v{m+5}", 4, off=CE)
    a("s_mov_b64 vcc, s[56:57]")
    for i in range(4): a(f"ds_write_b64 v{m+i}, {vr(b+2*i,2)}")
    for i in range(4): a(f"ds_read_b64_tr_b16 {vr(b+2*i,2)}, v{m+4} offset:{512*i}")
    a("s_waitcnt lgkmcnt(0)")
    a("s_branch L_mix_x")

def build():
    a = Asm()
    st = Stamps(a, 0, 22)
    common(a, st)
    n0 = st.n
    gen_h(a, st)
    hn = st.names[1:]
    st.n = n0; st.names = st.names[:n0]
    gen_c(a, st)
    if asmlib.STAMP: a.raw(f"; STAMPS C {st.names[1:]}\n; STAMPS H {hn}")
    s = f"; @launch grid=(256,1,1) block=(512,1,1) lds={LDS}\n"
    s += '.amdgcn_target "amdgcn-amd-amdhsa--gfx950"\n.text\n' + kernel_head(NAME) + a.text()
    s += '.section .rodata,"a"\n' + kernel_desc(NAME, 256, 256, 102)
    if cfg.ALIGN:
        import align
        s, f_, m_ = align.align(s, nop=cfg.ALIGN if cfg.ALIGN > 1 else False)
    return s
def set_args(args):
    for x in args:
        if x.startswith("sel="): asmlib.STAMP_SEL = x[4:].split(",")
        elif "=" in x:
            k, v = x.split("="); setattr(cfg, k, eval(v))
if __name__ == "__main__":
    asmlib.STAMP = "--stamp" in sys.argv
    asmlib.STAMP_REAL = "--real" in sys.argv
    set_args(sys.argv[2:])
    open(sys.argv[1], "w").write(build())
```

```python
import sys, math, struct
import asmlib
from asmlib import *
def f2u(x): return struct.unpack("<I", struct.pack("<f", x))[0]
NAME = "parallel_sum__softmax_full_mha__glu_gated_reglu__prompt_kernel"
WS_KV, WS_A, WS_F = 2<<20, 6<<20, 16<<20
WS_BYTES = WS_F + 3*32768
QSCALE = math.log2(math.e) / math.sqrt(28.0)
LDS = 163840
XS = 49152; AR = 28672
OU = 14336 + 128
QA = {4: 0, 5: 7168, 6: 10240}
FA = {"A": 14336, "B": 21504, "C": 0, "E": 7168}
FSLOT = ["A", "B", "D", "C", "E", "A", "B"]
STO = 24576
CNT = XS + 2*AR - 128
GATE = lambda g: 4*g
CONS = lambda g: 32 + 4*g
HD = CNT + 48; HA = CNT + 52
GQ1 = 56; GQ2 = 60; GQ0 = 28; CQ2 = 88; CE = 92; GQ3 = 104; GQ4 = 108; CL = 112; AF = 116; HX = 100
CA = 64; CW = 68; R1 = 72; RX = 80
VS0 = 32768; VS2 = 25600
WOS = XS + 2*AR; NS = 6; RNG = NS*2048
CB1 = 0; RB = 49152
WS_Q = 0
class P: pass
cfg = P()
cfg.N1 = 10
cfg.N2 = 4
cfg.SPIN = 1 << 16
cfg.ROT = 3
cfg.V1 = 3; cfg.V2 = 4; cfg.V3 = 12
cfg.XA = 4; cfg.BX = 2
cfg.Q0 = 2; cfg.Q1 = 0
cfg.LPRE = 17
cfg.HPRE = 4
cfg.HSI = 1; cfg.HSN = 1; cfg.PE = 2; cfg.WDP = [0, 0, 0]; cfg.F3 = 1
cfg.SLOTS = 6
cfg.SPF = 0; cfg.SPQ = 0; cfg.SPS = 0
cfg.LP2 = 2; cfg.T6 = 0; cfg.HST = 0; cfg.VN = 9; cfg.V1B = 5; cfg.NOM = 0; cfg.ITS = 0; cfg.CQF = 3; cfg.LN0 = 0; cfg.PF = 0; cfg.ZM = 0; cfg.MAP = 1
cfg.OT = 1; cfg.OFL = ''; cfg.KQ = 24; cfg.AV = [8, 18, 28]; cfg.LP0 = 999; cfg.LPN = 11; cfg.MT = [-2, 7]; cfg.MR = 0; cfg.FT = 0; cfg.XT = 9; cfg.MQ = -2; cfg.MQR = 0; cfg.G23 = 1; cfg.GP = 1; cfg.WSB = 0; cfg.F3L = 0; cfg.CF = 1; cfg.AS = 3; cfg.SA = 1; cfg.EW = 0; cfg.GL = 30; cfg.F4E = 0; cfg.PS1 = 4; cfg.FL = 54; cfg.SPW = 0; cfg.P1F = 1; cfg.LAG = 8; cfg.EP = 18; cfg.PS3 = 1; cfg.WOP = 0
cfg.W2 = 1
cfg.K0 = 24; cfg.LNG = 3
cfg.ALIGN = 5
cfg.PC = 0; cfg.PH2 = 1; cfg.PAD = 8
cfg.SIG = 1
SC1 = "sc1"

def poll(a, lab, vdst, voff, srd_, soff, want_ge, cnt="s62", sleep=2):
    a(f"s_mov_b32 {cnt}, 0")
    a(f"{lab}:")
    a(f"buffer_load_dword {vdst}, {voff}, {srd_}, {soff} offen sc1")
    a(f"s_add_u32 {cnt}, {cnt}, 1")
    a(f"s_waitcnt vmcnt(0)")
    a(f"v_cmp_le_u32 vcc, {want_ge}, {vdst}")
    a(f"s_cmp_gt_u32 {cnt}, {cfg.SPIN}")
    a(f"s_cbranch_scc1 {lab}_x")
    a(f"s_nop 1")
    a(f"s_cmp_eq_u64 vcc, -1")
    a(f"s_cbranch_scc1 {lab}_x")
    a(f"s_sleep {sleep}")
    a(f"s_branch {lab}")
    a(f"{lab}_x:")
    a.vmq = []
def lds_wait(a, lab, vaddr, vdst, n, sleep=0, off=0):
    a(f"{lab}:")
    if sleep: a(f"s_sleep {sleep}")
    a(f"ds_read_b32 {vdst}, {vaddr} offset:{off}")
    a("s_waitcnt lgkmcnt(0)")
    a(f"v_cmp_gt_u32 vcc, {n}, {vdst}")
    a("s_nop 3")
    a(f"s_cbranch_vccnz {lab}")
    a.lgq = []

def common(a, st):
    a("s_cmp_ge_u32 s2, 256")
    a("s_cbranch_scc1 L_end")
    st(wait=False, real=True); st(wait=False)
    a("s_load_dwordx8 s[4:11], s[0:1], 0")
    a("s_load_dwordx8 s[12:19], s[0:1], 32")
    a("s_load_dwordx4 s[20:23], s[0:1], 64")
    a("s_getpc_b64 s[56:57]")
    a("L_pc:")
    a("v_lshrrev_b32 v1, 5, v0")
    a("s_lshr_b32 s55, s2, 3")
    a("s_lshl_b32 s55, s55, 4")
    a("v_add_u32 v2, s55, v1")
    a("v_lshlrev_b32 v2, 7, v2")
    a("v_min_u32 v2, L_code_end-L_pc-4, v2")
    a("global_load_dword v255, v2, s[56:57]")
    a("v_lshrrev_b32 v1, 6, v0")
    a("v_and_b32 v0, 63, v0")
    a("v_readfirstlane_b32 s63, v1")
    a("s_and_b32 s48, s2, 7")
    a("s_lshr_b32 s47, s2, 3")
    a("s_lshr_b32 s50, s47, 2")
    a("s_and_b32 s51, s47, 3")
    a("s_and_b32 s44, s63, 3")
    a("s_cmp_lt_u32 s63, 4")
    a("s_cbranch_scc1 L_compute")
def mapping(a):
    if cfg.MAP == 0:
        a("s_and_b32 s46, s48, 3")
        a("s_lshl_b32 s46, s46, 2")
        a("s_add_u32 s46, s46, s51")
        a("s_lshr_b32 s45, s48, 2")
        a("s_lshl_b32 s45, s45, 3")
        a("s_add_u32 s45, s45, s50")
    else:
        a("s_and_b32 s46, s48, 1")
        a("s_lshl_b32 s46, s46, 3")
        a("s_add_u32 s46, s46, s50")
        a("s_lshr_b32 s45, s48, 1")
        a("s_lshl_b32 s45, s45, 2")
        a("s_add_u32 s45, s45, s51")
    a("s_lshl_b32 s49, s48, 2")
    a("s_add_u32 s49, s49, s51")
    a("s_lshl_b32 s3, s51, 1")
    a("s_add_u32 s64, s3, s50")
    a("s_cmp_ge_u32 s64, 7")
    a("s_cselect_b32 s62, 7, 0")
    a("s_sub_u32 s64, s64, s62")
    if cfg.ROT == 2: a("s_mov_b32 s3, s64")
    if cfg.ROT == 0: a("s_mov_b32 s3, 0")
    if cfg.ROT == 3:
        a("s_cmp_ge_u32 s50, 7")
        a("s_cselect_b32 s3, 3, s50")
    a("s_lshl_b32 s52, s45, 2")
    a("s_add_u32 s52, s52, s44")
def emit(a, op):
    if op[1] == "vm": a.vm(op[0], op[2])
    elif op[1] == "lg": a.lg(op[0], op[2])
    else: a(op[0])
def wait_lg_tags(a, tags):
    n = min([c for c in (a._cnt(a.lgq, tg) for tg in tags) if c is not None], default=None)
    if n is not None:
        assert n <= 15
        a(f"s_waitcnt lgkmcnt({n})")
        a.lgq = a.lgq[len(a.lgq)-n:] if n else []
V = lambda s: (s, "v")

def lds_add(a, vaddr, vone, off, tag=None):
    a("s_mov_b64 exec, 1")
    a.lg(f"ds_add_u32 {vaddr}, {vone} offset:{off}", tag)
    a("s_mov_b64 exec, -1")
def arrive(a, vdst, vaddr, vone, p, tag=None):
    a("s_mov_b64 exec, 1")
    a.lg(f"ds_add_rtn_u32 {vdst}, {vaddr}, {vone} offset:{AF+4*p}", tag)
    a("s_mov_b64 exec, -1")
def flag_if_last(a, v, vone, soff):
    a(f"v_xor_b32 {v}, 3, {v}")
    a(f"v_lshlrev_b32 {v}, 25, {v}")
    a.vm(f"buffer_store_dword {vone}, {v}, s[24:27], {soff} offen {SC1}", "fl")
def ws_srd(a):
    if cfg.WSB:
        a(f"s_add_u32 s22, s22, {cfg.WSB << 20}")
        a("s_addc_u32 s23, s23, 0")
    srd(a, 24, 22, WS_BYTES)
def ffn_setup(a, vDF, t):
    a("s_cmp_ge_u32 s44, 2")
    a("s_cselect_b32 s32, s14, s12")
    a("s_cselect_b32 s33, s15, s13")
    a(f"s_mov_b32 s34, {448*1792*2}")
    a("s_mov_b32 s35, 0x00020000")
    a("s_cselect_b32 s51, 128, 0")
    a(f"s_mul_i32 s53, s44, {AR}")
    a("s_add_u32 s53, s53, s51")
    a(f"s_add_u32 s53, s53, {XS-128}")
    a("s_mul_i32 s42, s44, 7168")
    a("s_add_u32 s42, s42, s51")
    a("s_and_b32 s51, s44, 1")
    a(f"s_mul_i32 s54, s51, {32*3584}")
    a("s_mul_i32 s51, s46, 224")
    for j in range(7):
        a(f"v_add_u32 v{t}, {64*j}, v0")
        a(f"v_mul_u32_u24 v{t+1}, 4682, v{t}")
        a(f"v_lshrrev_b32 v{t+1}, 16, v{t+1}")
        a(f"v_mul_u32_u24 v{t+2}, {3584-14*16}, v{t+1}")
        a(f"v_lshl_add_u32 v{t+2}, v{t}, 4, v{t+2}")
        if j % 4: a(f"v_subrev_u32 v{t+2}, {1024*(j%4)}, v{t+2}")
        a(f"v_add_u32 {vr(vDF+j)}, s51, v{t+2}")
def gap(a, n):
    while n > 0:
        a(f"s_nop {min(n, 16) - 1}"); n -= 16
def ffn_dma(a, g, vDF, lo=0, hi=7, sp=None):
    sp = cfg.SPF if sp is None else sp
    if lo:
        base, off = ("s42", 0) if FSLOT[g] == "D" else ("s53", FA[FSLOT[g]])
        assert lo == 4
        a(f"s_add_u32 m0, {base}, {off+4096}")
        a(f"s_add_u32 s43, s3, {g}")
        a("s_cmp_ge_u32 s43, 7")
        a("s_cselect_b32 s62, 7, 0")
        a("s_sub_u32 s43, s43, s62")
        a(f"s_mul_i32 s43, s43, {64*3584}")
        a("s_add_u32 s43, s43, s54")
        for j in range(4, 7):
            a.vm(f"buffer_load_dwordx4 {vr(vDF+j)}, s[32:35], s43 offen offset:{1024*(j%4)} lds", ("F", g))
            if j < 6: gap(a, sp)
        return
    base, off = ("s42", 0) if FSLOT[g] == "D" else ("s53", FA[FSLOT[g]])
    a(f"s_add_u32 m0, {base}, {off}")
    a(f"s_add_u32 s43, s3, {g}")
    a("s_cmp_ge_u32 s43, 7")
    a("s_cselect_b32 s62, 7, 0")
    a("s_sub_u32 s43, s43, s62")
    a(f"s_mul_i32 s43, s43, {64*3584}")
    a("s_add_u32 s43, s43, s54")
    for j in range(hi):
        if j == 4:
            a(f"s_add_u32 m0, {base}, {off+4096}"); a("s_nop 0")
        a.vm(f"buffer_load_dwordx4 {vr(vDF+j)}, s[32:35], s43 offen offset:{1024*(j%4)} lds", ("F", g))
        if j < hi - 1: gap(a, sp)
def xread_addr(a, vX, t):
    a(f"s_mul_i32 s56, s44, {AR}")
    a(f"s_add_u32 s56, s56, {XS}")
    a(f"v_and_b32 v{t}, 31, v0")
    a(f"v_lshlrev_b32 v{t+1}, 7, v{t}")
    a(f"v_add_u32 v{t+1}, s56, v{t+1}")
    a(f"v_bfe_u32 v{t}, v0, 1, 3")
    a(f"v_lshrrev_b32 v{t+2}, 5, v0")
    a(f"v_xor_b32 v{t}, v{t}, v{t+2}")
    a(f"v_lshl_add_u32 {vr(vX)}, v{t}, 4, v{t+1}")
    for sp in range(1, 4): a(f"v_xor_b32 {vr(vX+sp)}, {32*sp}, {vr(vX)}")
def ln_ops(X0, k, LT, vR, nt=2):
    ops = []
    for b in range(0, 4, nt):
        for i in range(nt):
            r = X0 + 4*k + b + i
            ops += [f"v_lshlrev_b32 v{LT+2*i}, 16, v{r}", f"v_and_b32 v{LT+2*i+1}, s61, v{r}"]
        ops += [f"v_fma_f32 v{LT+i}, v{LT+i}, v{vR}, v{vR+1}" for i in range(2*nt)]
        ops += [f"v_cvt_pk_bf16_f32 v{X0+4*k+b+i}, v{LT+2*i}, v{LT+2*i+1}" for i in range(nt)]
    return ops
def sigma(a, dst, src):
    tab = [0, 1, 2, 3, 4, 5, 7, 6, 9, 8, 15, 11, 12, 13, 14, 10]
    assert all(tab[tab[k]] == k for k in range(16))
    lo = sum(tab[k] << (4*k) for k in range(8)); hi = sum(tab[8+k] << (4*k) for k in range(8))
    a(f"s_cmp_ge_u32 {src}, 8")
    a(f"s_cselect_b32 s62, {lo ^ hi:#x}, 0")
    a(f"s_xor_b32 s62, s62, {lo:#x}")
    a(f"s_lshl_b32 {dst}, {src}, 2")
    a(f"s_lshr_b32 {dst}, s62, {dst}")
    a(f"s_and_b32 {dst}, {dst}, 15")

def gen_c(a, st):
    a.vmq = []; a.lgq = []
    vDQ = 216; t = 240; SINK = 221; vL = 15; vDF = 208
    O = 16; S = 80; PP = 192; KV = 128; T = 200
    QL = [248, 224, 232, 240]
    a("L_compute:")
    mapping(a)
    for r in range(4): a(f"v_mov_b32 v{PP+4+r}, 0")
    a(f"v_min_u32 v{t}, 11, v0")
    a(f"v_and_b32 v{t+1}, 3, v{t}")
    a(f"v_lshrrev_b32 v{t}, 2, v{t}")
    a(f"v_lshlrev_b32 v{t}, 15, v{t}")
    a(f"v_lshl_add_u32 v{t}, v{t+1}, 7, v{t}")
    a("s_lshl_b32 s51, s52, 9")
    a(f"s_add_u32 s51, s51, {WS_F}")
    a("s_waitcnt lgkmcnt(0)")
    ws_srd(a)
    a("s_xor_b32 s59, s46, 7")
    a("s_cbranch_scc1 L_noclr")
    a(f"buffer_store_dword v{PP+4}, v{t}, s[24:27], s51 offen {SC1}")
    a("L_noclr:")
    srd(a, 28, 6, 448*1344*2)
    sigma(a, "s51", "s46")
    a("s_mul_i32 s51, s51, 168")
    a("s_and_b32 s51, s51, -16")
    for j in range(3):
        a(f"v_add_u32 v{t}, {64*j}, v0")
        a(f"v_mul_u32_u24 v{t+1}, 5462, v{t}")
        a(f"v_lshrrev_b32 v{t+1}, 16, v{t+1}")
        a(f"v_mul_u32_u24 v{t+2}, 12, v{t+1}")
        a(f"v_sub_u32 v{t+2}, v{t}, v{t+2}")
        a(f"v_min_u32 v{t+2}, 10, v{t+2}")
        a(f"v_mul_u32_u24 v{t+1}, 2688, v{t+1}")
        a(f"v_lshl_add_u32 v{t+1}, v{t+2}, 4, v{t+1}")
        if j: a(f"v_subrev_u32 v{t+1}, {1024*j}, v{t+1}")
        a(f"v_add_u32 {vr(vDQ+j)}, s51, v{t+1}")
    a(f"s_mul_i32 s70, s44, {16*2688}")
    a(f"s_mul_i32 s71, s44, {16*192}")
    a(f"s_mul_i32 s72, s3, {64*2688}")
    a(f"s_mul_i32 s73, s44, {AR}")
    a(f"s_add_u32 s73, s73, {XS}")
    def qkv_dma(g):
        a(f"s_add_u32 m0, s71, {g*12288}" if g < 4 else f"s_add_u32 m0, s73, {QA[g]}")
        a("s_add_u32 s51, s72, s70")
        for j in range(3):
            a.vm(f"buffer_load_dwordx4 {vr(vDQ+j)}, s[28:31], s51 offen offset:{1024*j} lds", ("Q", g))
        if g < 6:
            a(f"s_add_u32 s72, s72, {64*2688}"); a(f"s_cmp_ge_u32 s72, {448*2688}"); a("s_cselect_b32 s72, 0, s72")
    ffn_setup(a, vDF, t)
    srd(a, 12, 20, 256)
    srd(a, 36, 16, 1792*448*2)
    srd(a, 16, 8, 448*448*2)
    a("s_mov_b32 s40, 0"); a("s_mov_b32 s41, -1")
    for s_ in (f"v_lshlrev_b32 {vr(vL)}, 4, v0", "v_lshlrev_b32 v13, 25, v0", "v_mov_b32 v14, 1", f"v_mov_b32 v12, {CNT}",
               "v_and_b32 v222, 15, v0", "v_lshlrev_b32 v222, 4, v222", "s_lshl_b32 s74, s45, 4"): a(s_)
    for r in range(4): a(f"v_mov_b32 v{KV+48+12+r}, 0")
    for r in range(64): a(f"v_mov_b32 v{O+r}, 0")
    def att_setup():
        a("s_setprio 0")
        a("s_lshl_b32 s65, s48, 1")
        a("s_and_b32 s51, s47, 1")
        a("s_add_u32 s65, s65, s51")
        a("s_lshr_b32 s66, s47, 1")
        a(f"v_bfe_u32 v{t+2}, v0, 2, 2")
        a(f"v_bfe_u32 v{t+4}, v0, 4, 1")
        for s_ in ("s_lshl_b32 s51, s66, 2", "s_add_u32 s51, s51, s44", f"s_mul_i32 s67, s51, {144*1024}", "s_lshl_b32 s51, s65, 11", "s_add_u32 s67, s67, s51",
                   f"s_add_u32 s67, s67, {WS_A+112*1024}",
                   "s_lshl_b32 s51, s44, 2",
                   "s_lshl_b32 s60, s66, 4", "s_add_u32 s60, s60, s65", "s_lshl_b32 s60, s60, 7", f"s_add_u32 s60, s60, {WS_F+65536}",
                   "s_lshl_b32 s51, s65, 18", "s_lshl_b32 s58, s44, 16", "s_add_u32 s51, s51, s58", f"s_add_u32 s51, s51, {WS_KV}",
                   "s_add_u32 s4, s22, s51", "s_addc_u32 s5, s23, 0", "s_mov_b32 s6, 0x10000", "s_mov_b32 s7, 0x00020000",
                   "s_lshl_b32 s69, s66, 12"): a(s_)
        for k, (add, dst) in enumerate(((0, "s56"), (16, "s57"), (32, "s58"))):
            a(f"s_add_u32 s51, s65, {add}")
            a("s_mul_i32 s51, s51, 43")
            a("s_lshr_b32 s51, s51, 7")
            sigma(a, "s51", "s51")
            a(f"s_lshl_b32 {dst}, s51, 7")
        a("s_lshl_b32 s51, s66, 11")
        a("s_add_u32 s56, s56, s51")
        a("s_lshl_b32 s51, s44, 13")
        a("s_add_u32 s57, s57, s51")
        a("s_add_u32 s58, s58, s51")
        a(f"v_lshlrev_b32 v1, 11, v{t+2}")
        a(f"v_add_u32 v{t+6}, s58, v1")
        a(f"v_add_u32 v1, s57, v1")
        a(f"v_cmp_eq_u32 vcc, 1, v{t+4}")
        a(f"v_mov_b32 v{t+7}, s56")
        a(f"v_and_b32 v{t+3}, 3, v0")
        a(f"v_cndmask_b32 v1, v1, v{t+6}, vcc")
        a(f"v_cndmask_b32 v1, v1, v{t+7}, s[40:41]")
        a(f"s_mov_b32 s68, {WS_F}")
        for j in range(4):
            for s_ in (f"s_add_u32 s51, s44, {j}", "s_and_b32 s51, s51, 3", f"s_mul_i32 s55, s51, 12288", f"s_add_u32 s55, s55, {CB1}", f"v_add_u32 v{T+4+j}, s55, {vr(vL)}",
                       "s_lshl_b32 s55, s65, 4", "s_add_u32 s55, s55, s66", "s_lshl_b32 s55, s55, 2", "s_add_u32 s55, s55, s51", f"s_lshl_b32 s{8+j}, s55, 11"): a(s_)
        a("s_mov_b32 s55, 0")
        if cfg.EW:
            a("s_cmp_lt_u32 s50, 7")
            a("s_cselect_b32 s38, s38, 0")
            for s_ in ("v_lshrrev_b32 v3, 3, v0", "v_bfe_u32 v4, v0, 4, 1", "v_lshlrev_b32 v4, 2, v4", "v_and_b32 v7, 7, v0", "v_xor_b32 v7, v7, v4",
                       "v_mul_u32_u24 v3, 896, v3", "v_lshl_add_u32 v3, v7, 4, v3", f"v_add_u32 v4, {8*896-1024}, v3",
                       f"s_mul_i32 s56, s44, {448*896}", "s_lshl_b32 s57, s50, 7", "s_add_u32 s56, s56, s57", f"s_mul_i32 s57, s64, {64*896}", "s_add_u32 s57, s57, s56",
                       "s_add_u32 s51, s64, 1", "s_cmp_ge_u32 s51, 7", "s_cselect_b32 s51, 0, s51", f"s_mul_i32 s58, s51, {64*896}", "s_add_u32 s58, s58, s56",
                       f"s_mul_i32 s56, s44, {RNG}"): a(s_)
        a(f"s_setprio {cfg.PF}")
    def mtouch(pos):
        if pos == cfg.MQ:
            r0 = cfg.MQR; by = (448 - r0) * 2688 // 1024
            assert by % 4 == 0
            for s_ in (f"v_min_u32 v8, {by // 128}, v0", "v_lshlrev_b32 v8, 7, v8", "s_lshl_b32 s51, s2, 2", "s_add_u32 s51, s51, s44",
                       f"s_mul_i32 s51, s51, {by}", f"s_add_u32 s51, s51, {r0*2688}"): a(s_)
            a.vm(f"buffer_load_dword v{SINK}, v8, s[28:31], s51 offen", "pf")
        if pos == cfg.MT[0]:
            r0 = cfg.MR
            nl = (448 - r0) * 28 // 512 + 1
            for s_ in (f"v_min_u32 v5, {nl-1}, v0", "v_lshlrev_b32 v5, 7, v5", "s_lshl_b32 s51, s2, 1", "s_and_b32 s62, s44, 1", "s_add_u32 s51, s51, s62",
                       f"s_mul_i32 s51, s51, {(448 - r0) * 7}", f"s_add_u32 s51, s51, {r0*3584}"): a(s_)
            a.vm(f"buffer_load_dword v{SINK}, v5, s[32:35], s51 offen", "pf")
        if pos == cfg.MT[1]:
            for s_ in ("v_min_u32 v6, 12, v0", "v_lshlrev_b32 v6, 7, v6", "s_lshl_b32 s51, s2, 2", "s_add_u32 s51, s51, s44", "s_mul_i32 s62, s51, 1568"): a(s_)
            a.vm(f"buffer_load_dword v{SINK}, v6, s[36:39], s62 offen", "pf")
            for s_ in ("v_min_u32 v7, 3, v0", "v_lshlrev_b32 v7, 7, v7", "s_mul_i32 s62, s51, 392"): a(s_)
            a.vm(f"buffer_load_dword v{SINK}, v7, s[16:19], s62 offen", "pf")
    def landed(tag, off):
        a.wait(vm=tag); lds_add(a, "v12", "v14", off)
    def free(lab, off): lds_wait(a, lab, "v12", "v2", 4, sleep=1, off=off)
    mtouch(-1)
    def gostore(pos):
        if pos != cfg.GP: return
        a("s_or_b32 s59, s59, s44")
        a("s_cbranch_scc1 L_nogo")
        free("L_clr", GQ0)
        a(f"buffer_store_dword v14, v13, s[12:15], s74 offen {SC1}")
        a("L_nogo:")
    st(name="setup")
    a("s_barrier")
    a(f"s_setprio {cfg.PF}")
    for g in range(cfg.Q0): qkv_dma(g)
    mtouch(-2)
    a("s_barrier")
    st(name="bx2")
    mtouch(-3)
    for g in range(cfg.Q0, 4): qkv_dma(g)
    mtouch(-4)
    landed(("Q", 1), GQ0)
    qkv_dma(4); qkv_dma(5)
    landed(("Q", 3), GQ1)
    qkv_dma(6)
    landed(("Q", 4), GQ2)
    ffn_dma(a, 0, vDF, 0, 4)
    landed(("Q", 5), GQ3)
    ffn_dma(a, 0, vDF, 4)
    mtouch(0)
    gostore(0)
    landed(("Q", 6), GQ4)
    st(name="_q6")
    ffn_dma(a, 1, vDF)
    mtouch(1)
    gostore(1)
    landed(("F", 0), GATE(0))
    st(name="_g0")
    free("L_cq2", CQ2)
    def ftouch():
        assert cfg.MAP == 1 and cfg.ROT == 0
        for s_ in ("v_lshrrev_b32 v5, 4, v0", "v_mul_u32_u24 v5, 3584, v5", "v_and_b32 v6, 15, v0", "v_min_u32 v6, 13, v6", "v_lshl_add_u32 v5, v6, 7, v5",
                   "s_lshl_b32 s51, s47, 1", "s_and_b32 s62, s44, 1", "s_add_u32 s51, s51, s62", "s_add_u32 s51, s51, 48", f"s_mul_i32 s51, s51, {4*3584}",
                   "s_and_b32 s62, s48, 1", "s_mul_i32 s62, s62, 1792", "s_add_u32 s51, s51, s62"): a(s_)
        a.vm(f"buffer_load_dword v{SINK}, v5, s[32:35], s51 offen", "pf")
    if cfg.FT == 1: ftouch()
    ffn_dma(a, 2, vDF)
    if cfg.FT == 2: ftouch()
    mtouch(2)
    landed(("F", 1), GATE(1))
    st(name="_g1")
    if cfg.AS == 2: att_setup()
    free("L_ce", CE)
    st(name="ce")
    assert cfg.CF
    ffn_dma(a, 3, vDF)
    mtouch(3)
    st(name="_i3")
    if cfg.G23: landed(("F", 2), GATE(2))
    if cfg.AS == 3: att_setup()
    st(name="_as")
    landed(("F", 3), GATE(3 if cfg.G23 else 2))
    st(name="_g2")
    free("L_cons5", CONS(0))
    st(name="_c5")
    a.vm(f"buffer_load_dword v223, v222, s[12:15], 0 offen {SC1}", "go")
    ffn_dma(a, 4, vDF)
    ffn_dma(a, 5, vDF, 0, 4)
    a.wait(vm="go")
    a("v_cmp_gt_u32 vcc, 1, v223")
    a("s_nop 3")
    a("s_cbranch_vccnz L_go"); a("L_go_x:")
    a("s_cmp_lg_u32 s44, 0")
    a("s_cbranch_scc1 L_nofl")
    for s_ in ("s_lshl_b32 s59, s45, 4", "s_add_u32 s59, s59, s46", "s_lshl_b32 s59, s59, 7", f"s_add_u32 s59, s59, {WS_F}"): a(s_)
    lds_wait(a, "L_af", "v12", "v2", 4, off=AF)
    a(f"buffer_store_dword v14, v13, s[24:27], s59 offen {SC1}")
    a("L_nofl:")
    st(name="cfl0")
    landed(("F", 4), GATE(4))
    ffn_dma(a, 5, vDF, 4)
    mtouch(5)
    free("L_cons6", CONS(1))
    st(name="_c6")
    ffn_dma(a, 6, vDF)
    mtouch(6)
    if cfg.AS == 1: att_setup()
    if cfg.K0 == 24: landed(("F", 5), GATE(5))
    landed(("F", 6), GATE(5 if cfg.K0 == 20 else 6))
    if cfg.EW:
        free("L_consw", CONS(2))
        for i in range(5):
            a(f"s_add_u32 m0, s56, {CB1 + 2048*i}")
            a(f"s_add_u32 s51, s{57 + i//4}, {(i%4)*16*896}")
            a.vm(f"buffer_load_dwordx4 v3, s[36:39], s51 offen lds", "wx")
            a.vm(f"buffer_load_dwordx4 v4, s[36:39], s51 offen offset:1024 lds", "wx")
    st(name="_cf6")
    def kvload(slot, j): return f"buffer_load_dwordx4 {vr(KV+16*slot+4*j,4)}, {vr(vL)}, s[4:7], s69 offen offset:{1024*j} {SC1}"
    kvadv = ["s_add_u32 s69, s69, 4096", "s_and_b32 s69, s69, 0xffff"]
    poll(a, "L_p1", "v2", "v1", "s[24:27]", "s68", 1, sleep=cfg.PS1)
    st(name="poll1")
    for j in (1, 2, 3, 0):
        for ks in range(2): a.vm(f"buffer_load_dwordx4 {vr(QL[j]+4*ks,4)}, {vr(vL)}, s[24:27], s{8+j} offen offset:{1024*ks} {SC1}", "q")
    for sl in range(3):
        for j in range(4): a.vm(kvload(sl, j), ("kv", sl))
        for x in kvadv: a(x)
    mtouch(7)
    a(f"s_setprio {cfg.PC}")
    QO = [1, 2, 3, 0]
    def qk(n, ks):
        kt, qt = (n//4) % 4, n % 4
        s = vr(S+16*(n&1), 16)
        return f"v_mfma_f32_32x32x16_bf16 {s}, {vr(KV+16*kt+4*ks,4)}, {vr(QL[QO[qt]]+4*ks,4)}, {'0' if ks==0 else s}"
    def pv(n, ks):
        kt, qt = (n//4) % 4, n % 4
        o = vr(O+16*QO[qt], 16)
        return f"v_mfma_f32_32x32x16_bf16 {o}, {vr(KV+16*kt+8+4*ks,4)}, {vr(PP+4*ks,4)}, {o}"
    a.wait(vm=("kv", 0))
    lds_add(a, "v12", "v14", HA-CNT)
    st(name="att0")
    a(qk(0, 0)); a(qk(0, 1))
    a("s_nop 7"); a("s_nop 3")
    a.raw(".p2align 3")
    a("L_att:")
    def softmax(n, m, odd):
        sb = S + 16*(n & 1)
        for j in range(4):
            a(f"v_exp_f32{'_e64' if (odd and j == 1) else ''} v{sb+4*m+j}, v{sb+4*m+j}")
        for j in range(2): a(f"v_cvt_pk_bf16_f32 v{PP+2*m+j}, v{sb+4*m+2*j}, v{sb+4*m+2*j+1}")
    for n in range(16):
        kt, qt = n//4, n % 4
        ms = [qk(n+1, 0), qk(n+1, 1), pv(n-1, 1), pv(n, 0)]
        for m in range(4):
            a(ms[m])
            odd = False
            if n == 12 and m == 0:
                a("s_cbranch_scc1 L_last"); a("s_nop 0")
            if m == 0: a(kvload((kt+3) % 4, qt))
            if qt == 2 and m == 2 and kt == 0:
                a("s_add_u32 s55, s55, 1"); odd = True
            if n == 0 and m == 1 and asmlib.STAMP and cfg.ITS:
                a("s_mov_b64 s[96:97], s[94:95]"); a("s_mov_b64 s[94:95], s[92:93]"); a("s_mov_b64 s[92:93], s[90:91]"); a("s_memtime s[90:91]")
            if qt == 2 and m == 3: a("s_waitcnt vmcnt(9)"); odd = True
            if qt == 0 and m == 2: a("s_waitcnt vmcnt(9)"); odd = True
            if qt == 3 and m == 1: a(kvadv[0])
            if qt == 3 and m == 2: a(kvadv[1])
            if qt == 3 and m == 3 and kt == 0:
                a("s_cmp_eq_u32 s55, 4"); a("s_cselect_b32 s6, 0, s6")
            if qt == 3 and m == 3 and kt == 2: a("s_cmp_eq_u32 s55, 4"); odd = True
            softmax(n, m, odd)
    a("s_branch L_att")
    a.raw(".p2align 3")
    a("L_last:")
    def cwr(j, q): a(f"ds_write_b128 v{T+4+j}, {vr(O+16*j+4*q,4)} offset:{(j-1)*4096+q*1024}")
    for n in range(12, 16):
        ms = [qk(n+1, 0), qk(n+1, 1), pv(n-1, 1), pv(n, 0)] if n < 15 else [pv(14, 1), None, None, pv(15, 0)]
        for m in range(4):
            if n == 15 and m == 0: cwr(2, 0); cwr(2, 1)
            if ms[m] and not (n == 12 and m == 0): a(ms[m])
            odd = False
            if n == 12 and m == 0: a(f"ds_read_b32 v{T}, v12 offset:{HX}")
            if n == 12 and m == 2: a("s_waitcnt vmcnt(8) lgkmcnt(0)"); a(f"v_cmp_gt_u32 vcc, 4, v{T}")
            if n == 13 and m == 0:
                a("s_cbranch_vccnz L_hd"); a("L_hd_x:"); odd = True
            if n == 13 and m == 1: a(f"s_mov_b32 s42, {f2u(2.0**-64):#x}")
            if n == 13 and m == 2: a(f"s_mov_b32 s43, {f2u(2.0**64):#x}")
            if n == 14: cwr(1, m)
            if n == 15 and m == 1: cwr(2, 2); cwr(2, 3)
            if n == 15 and m >= 2: cwr(3, 2*m-4); cwr(3, 2*m-3)
            softmax(n, m, odd)
    a("s_setprio 2")
    a("s_waitcnt lgkmcnt(0)")
    a(pv(15, 1))
    st(name="attend")
    lds_add(a, "v12", "v14", CW)
    lds_wait(a, "L_cw", "v12", f"v{T}", 4, off=CW)
    st(name="_Tc")
    for q in (3, 0, 1, 2):
        for j in range(3):
            a.lg(f"ds_read_b128 {vr(O+16+16*j+4*q,4)}, v{T+4} offset:{j*4096+q*1024}", q)
    def add3(q):
        a.wait(lg=q)
        for r in range(4*q, 4*q+4): a(f"v_add_f32 v{O+r}, v{O+r}, v{O+16+r}")
        for r in range(4*q, 4*q+4): a(f"v_add_f32 v{O+32+r}, v{O+32+r}, v{O+48+r}")
        for r in range(4*q, 4*q+4): a(f"v_add_f32 v{O+r}, v{O+r}, v{O+32+r}")
    add3(3)
    a(f"v_mov_b32 v{T}, v{O+12}")
    a(f"v_mov_b32 v{T+1}, v{O+12}")
    add3(0)
    a(f"v_permlane32_swap_b32 v{T}, v{T+1}")
    add3(1)
    a(f"v_cmp_le_f32 vcc, s42, v{T+1}")
    a(f"v_cmp_ge_f32 s[56:57], s43, v{T+1}")
    a(f"v_rcp_f32 v{T}, v{T+1}")
    add3(2)
    a("s_and_b64 vcc, vcc, s[56:57]")
    a("s_cmp_eq_u64 vcc, -1")
    a("s_cbranch_scc0 L_slow")
    a("L_fin:")
    for r in range(8): a(f"v_mul_f32 v{O+r}, v{O+r}, v{T}")
    for r in range(4): a(f"v_cvt_pk_bf16_f32 v{PP+r}, v{O+2*r}, v{O+2*r+1}")
    a.vm(f"buffer_store_dwordx4 {vr(PP,4)}, {vr(vL)}, s[24:27], s67 offen {SC1}", "st")
    for r in range(8, 16): a(f"v_mul_f32 v{O+r}, v{O+r}, v{T}")
    for r in range(4, 8): a(f"v_cvt_pk_bf16_f32 v{PP+r}, v{O+2*r}, v{O+2*r+1}")
    a(f"v_cndmask_b32 v{PP+6}, v{PP+6}, 0, s[40:41]")
    a(f"v_cndmask_b32 v{PP+7}, v{PP+7}, 0, s[40:41]")
    a.vm(f"buffer_store_dwordx4 {vr(PP+4,4)}, {vr(vL)}, s[24:27], s67 offen offset:1024 {SC1}", "st")
    st(name="_prefl2")
    a("v_mov_b32 v13, 0")
    a.wait(vm="all")
    arrive(a, "v13", "v12", "v14", 2)
    a.wait(lg="all")
    flag_if_last(a, "v13", "v14", "s60")
    st(name="fl2")
    if asmlib.STAMP and cfg.ITS:
        assert st.n <= 10
        st.n = 14; st.names += ["it"]*4
    a("L_c_end:")
    st.flush(63, 8)
    a("L_end:")
    a("s_endpgm")
    a("L_go:")
    poll(a, "L_p0", "v223", "v222", "s[12:15]", "0", 1)
    a("s_branch L_go_x")
    lds_wait(a, "L_hd", "v12", f"v{T}", 4, off=HX)
    a("s_branch L_hd_x")
    S1 = S + 16
    a("L_slow:")
    a("s_lshl_b32 s56, s65, 18")
    a(f"s_add_u32 s56, s56, {WS_KV}")
    a("s_mov_b32 s57, s56")
    a("s_mov_b32 s55, 64")
    a(f"v_mov_b32 v{T+2}, 0xff800000")
    a("s_waitcnt vmcnt(0)")
    a("L_slow1:")
    for j in range(2): a(f"buffer_load_dwordx4 {vr(KV+4*j,4)}, {vr(vL)}, s[24:27], s57 offen offset:{1024*j} {SC1}")
    a("s_waitcnt vmcnt(0)")
    a(qk(3, 0)); a(qk(3, 1))
    a("s_nop 7"); a("s_nop 7")
    for r in range(8): a(f"v_max3_f32 v{T+2}, v{S1+2*r}, v{S1+2*r+1}, v{T+2}")
    a("s_add_u32 s57, s57, 4096")
    a("s_sub_u32 s55, s55, 1"); a("s_cmp_lg_u32 s55, 0")
    a("s_cbranch_scc1 L_slow1")
    a(f"v_mov_b32 v{T+3}, v{T+2}")
    a("s_nop 1")
    a(f"v_permlane32_swap_b32 v{T+3}, v{T+2}")
    a("s_nop 1")
    a(f"v_max_f32 v{T+2}, v{T+2}, v{T+3}")
    for r in range(16): a(f"v_mov_b32 v{O+r}, 0")
    a("s_mov_b32 s55, 64")
    a("L_slow2:")
    for j in range(4): a(f"buffer_load_dwordx4 {vr(KV+4*j,4)}, {vr(vL)}, s[24:27], s56 offen offset:{1024*j} {SC1}")
    a("s_waitcnt vmcnt(0)")
    a(qk(3, 0)); a(qk(3, 1))
    a("s_nop 7"); a("s_nop 7")
    for r in range(16): a(f"v_sub_f32 v{S1+r}, v{S1+r}, v{T+2}")
    for r in range(16): a(f"v_exp_f32 v{S1+r}, v{S1+r}")
    a("s_nop 0")
    for r in range(8): a(f"v_cvt_pk_bf16_f32 v{PP+r}, v{S1+2*r}, v{S1+2*r+1}")
    a("s_nop 1")
    a(pv(3, 0)); a(pv(3, 1))
    a("s_add_u32 s56, s56, 4096")
    a("s_sub_u32 s55, s55, 1"); a("s_cmp_lg_u32 s55, 0")
    a("s_cbranch_scc1 L_slow2")
    a("s_nop 7"); a("s_nop 7")
    a(f"v_mov_b32 v{T}, v{O+12}")
    a(f"v_mov_b32 v{T+1}, v{O+12}")
    a("s_nop 1")
    a(f"v_permlane32_swap_b32 v{T}, v{T+1}")
    a("s_nop 1")
    a(f"v_rcp_f32 v{T}, v{T+1}")
    a("s_nop 0")
    a("s_branch L_fin")
    a("L_code_end:")

def gen_h(a, st):
    X0 = 16; ACCF = 128; AQ = 192
    AS = 144; vR = 148; LT = 152; vXD = 160; vX = 164; vTQ = 168; t = 172
    vTF = 1; vC = 3; vOne = 4; vG = 5; vL = 7
    a("s_setprio 1")
    mapping(a)
    a(f"v_lshrrev_b32 v{t+2}, 3, v0")
    a("s_lshl_b32 s51, s52, 5")
    a(f"v_add_u32 v{t+2}, s51, v{t+2}")
    a(f"v_mul_u32_u24 v{t+2}, 896, v{t+2}")
    a(f"v_lshrrev_b32 v{t+3}, 4, v0")
    a(f"v_and_b32 v{t+4}, 7, v0")
    a(f"v_xor_b32 v{t+3}, v{t+3}, v{t+4}")
    a(f"v_lshl_add_u32 {vr(vXD)}, v{t+3}, 4, v{t+2}")
    a(f"v_xor_b32 v{t+3}, 64, {vr(vXD)}")
    a(f"v_add_u32 {vr(vXD+1)}, 6144, v{t+3}")
    a(f"v_add_u32 {vr(vXD+2)}, {2*6144}, {vr(vXD)}")
    a(f"v_add_u32 {vr(vXD+3)}, {3*6144}, v{t+3}")
    if cfg.XT < 9:
        assert cfg.MAP == 1 and cfg.ROT == 0
        for s_ in (f"v_bfe_u32 v{t+5}, v0, 2, 2", f"v_mul_u32_u24 v{t+5}, 896, v{t+5}", f"v_and_b32 v{t+6}, 3, v0", f"v_lshl_add_u32 v{t+5}, v{t+6}, 7, v{t+5}",
                   "s_lshl_b32 s56, s52, 3", "s_add_u32 s56, s56, s50", f"s_mul_i32 s56, s56, {4*896}", "s_add_u32 s56, s56, 384"): a(s_)
    a(f"s_mul_i32 s53, s44, {AR}")
    a(f"s_add_u32 s53, s53, {XS}")
    a("s_lshl_b32 s55, s3, 7")
    a(f"s_mov_b32 s30, {2048*448*2}")
    a("s_mov_b32 s31, 0x00020000")
    a("s_mov_b32 m0, s53")
    a("s_waitcnt lgkmcnt(0)")
    a("s_mov_b32 s28, s4"); a("s_mov_b32 s29, s5")
    st(name="_h0")
    def xload(cb):
        for rg in range(4):
            a.vm(f"buffer_load_dwordx4 {vr(vXD+rg)}, s[28:31], s55 offen offset:{rg*1024} lds", ("x", cb))
        if cb < 6:
            a(f"s_add_u32 m0, s53, {(cb+1)*4096}")
            a("s_add_u32 s55, s55, 128"); a("s_cmp_ge_u32 s55, 896"); a("s_cselect_b32 s55, 0, s55")
    for cb in range(cfg.XA - 1):
        xload(cb)
        if cb == cfg.XT:
            a.vm(f"buffer_load_dword v255, v{t+5}, s[28:31], s56 offen", "pf")
    ws_srd(a)
    xread_addr(a, vX, t)
    for i in range(4): a(f"v_mov_b32 v{AS+i}, 0")
    a(f"v_mov_b32 v{t+10}, 0")
    a(f"v_mov_b32 v{t+8}, 0x3f803f80")
    a("s_mov_b32 s61, 0xffff0000")
    a(f"v_mov_b32 {vr(vOne)}, 1")
    a(f"v_mov_b32 {vr(vC)}, {CNT}")
    a(f"v_lshlrev_b32 {vr(vL)}, 4, v0")
    a(f"v_and_b32 v{t+9}, 31, v0")
    a(f"v_cmp_eq_u32 vcc, 28, v{t+9}")
    a(f"v_lshl_add_u32 v{t+9}, v{t+9}, 2, {vr(vC)}")
    sigma(a, "s60", "s46")
    a(f"v_cndmask_b32 v6, 0, v{t+8}, vcc")
    a(f"v_lshrrev_b32 v{t+5}, 5, v0")
    a(f"v_bfe_u32 v{t+2}, v0, 2, 2")
    a(f"v_lshl_add_u32 v{t+2}, v{t+5}, 3, v{t+2}")
    a(f"v_and_b32 v{t+3}, 3, v0")
    a(f"v_bfe_u32 v{t+4}, v0, 4, 1")
    a(f"v_mul_u32_u24 v{t+5}, 224, v{t+2}")
    a(f"v_lshl_add_u32 v{t+5}, v{t+3}, 3, v{t+5}")
    a(f"v_mul_u32_u24 v{t+6}, {OU}, v{t+4}")
    a(f"v_add_u32 {vr(vTF)}, v{t+5}, v{t+6}")
    a(f"v_mul_u32_u24 v{t+6}, {2*AR+128}, v{t+4}")
    a(f"v_add_u32 v{t+5}, {XS-128}, v{t+5}")
    a(f"v_add_u32 {vr(vTF+1)}, v{t+5}, v{t+6}")
    a(f"v_mul_u32_u24 v{t+5}, 192, v{t+2}")
    a(f"v_lshl_add_u32 v{t+5}, v{t+3}, 3, v{t+5}")
    a(f"v_lshl_add_u32 v{t+5}, v{t+4}, 5, v{t+5}")
    a("s_and_b32 s51, s60, 1")
    a("s_lshl_b32 s51, s51, 3")
    a(f"v_add_u32 {vr(vTQ)}, s51, v{t+5}")
    a(f"v_add_u32 {vr(vTQ+1)}, {XS}, {vr(vTQ)}")
    a(f"v_add_u32 {vr(vTQ+2)}, {XS+2*AR}, {vr(vTQ)}")
    a("s_mul_i32 s54, s60, 3")
    for i in range(3):
        a(f"s_add_u32 s51, s54, {i}")
        a(f"s_lshr_b32 s62, s51, 4")
        a("s_and_b32 s51, s51, 15")
        a("s_lshl_b32 s51, s51, 6")
        a("s_add_u32 s51, s51, s52")
        a("s_lshl_b32 s56, s51, 11")
        a("s_lshl_b32 s57, s51, 12")
        a(f"s_lshl_b32 s58, s62, 11")
        a("s_add_u32 s57, s57, s58")
        a(f"s_add_u32 s57, s57, {WS_KV-2048}")
        a(f"s_cmp_eq_u32 s62, 0")
        a(f"s_cselect_b32 s{32+i}, s56, s57")
        a(f"s_cselect_b32 s{35+i}, {f2u(QSCALE):#x}, 1.0")
    a("s_mov_b32 s42, 0"); a("s_mov_b32 s43, -1")
    a("s_mov_b32 s38, 0x0fffffff"); a("s_mov_b32 s39, 0x0fffffff")
    st(name="_hsetup")
    xload(cfg.XA - 1)
    def dots(cb):
        for r in range(X0+16*cb, X0+16*cb+16):
            a(f"v_dot2c_f32_bf16 v{AS+(r&1)}, v{r}, v{t+8}")
            a(f"v_dot2c_f32_bf16 v{AS+2+(r&1)}, v{r}, v{r}")
    for cb in range(7):
        a.wait(vm=("x", cb))
        st(name=("" if cb == 6 else "_") + f"x{cb}")
        for sp in range(4): a.lg(f"ds_read_b128 {vr(X0+16*cb+4*sp,4)}, {vr(vX+sp)} offset:{cb*4096}", ("x", cb))
        if cb + cfg.XA < 7: xload(cb + cfg.XA)
        if cb == cfg.BX: a("s_barrier")
        if cb == 6:
            a("s_cmp_lg_u32 s44, 1")
            a("s_cbranch_scc1 L_nocnt")
            a(f"ds_write_b32 v{t+9}, v{t+10}")
            a("L_nocnt:")
        if cb:
            a.wait(lg=("x", cb-1)); dots(cb-1)
    a.wait(lg="all")
    a("s_barrier")
    dots(6)
    a(f"s_mov_b32 s51, {f2u(1/448):#x}")
    a(f"s_mov_b32 s55, {f2u(1e-5):#x}")
    a("s_nop 0")
    a(f"v_add_f32 v{AS}, v{AS}, v{AS+1}")
    a(f"v_add_f32 v{AS+2}, v{AS+2}, v{AS+3}")
    a(f"v_mov_b32 v{AS+1}, v{AS}")
    a(f"v_mov_b32 v{AS+3}, v{AS+2}")
    a("s_nop 1")
    a(f"v_permlane32_swap_b32 v{AS+1}, v{AS}")
    a(f"v_permlane32_swap_b32 v{AS+3}, v{AS+2}")
    a("s_nop 1")
    a(f"v_add_f32 v{AS}, v{AS}, v{AS+1}")
    a(f"v_add_f32 v{AS+2}, v{AS+2}, v{AS+3}")
    a(f"v_mul_f32 v{AS}, s51, v{AS}")
    a(f"v_mul_f32 v{AS+2}, s51, v{AS+2}")
    a(f"v_fma_f32 v{AS+2}, -v{AS}, v{AS}, v{AS+2}")
    a(f"v_max_f32 v{AS+2}, 0, v{AS+2}")
    a(f"v_add_f32 v{AS+2}, s55, v{AS+2}")
    a(f"v_rsq_f32 v{vR}, v{AS+2}")
    a("s_nop 0")
    a(f"v_mul_f32 v{vR+1}, -v{AS}, v{vR}")
    st(name="_t0")
    def ln_pk(k):
        for i in range(4):
            r = X0 + 4*k + i
            a(f"v_lshlrev_b32 v{LT+2*i}, 16, v{r}"); a(f"v_and_b32 v{LT+2*i+1}, s61, v{r}")
        for i in range(4): a(f"v_pk_fma_f32 {vr(LT+2*i,2)}, {vr(LT+2*i,2)}, {vr(vR,2)}, {vr(vR,2)} op_sel:[0,0,1] op_sel_hi:[1,0,1]")
        for i in range(4): a(f"v_cvt_pk_bf16_f32 v{X0+4*k+i}, v{LT+2*i}, v{LT+2*i+1}")
    K0 = cfg.K0; KT = 28 - K0; NA = 84
    KQ = cfg.KQ
    order = [("q", k, tl) for k in range(KQ) for tl in range(3)] + [("q", k, tl) for tl in range(3) for k in range(KQ, 28)]
    nxt = [0]*7; AV = [0, 0, 0, 0] + list(cfg.AV)
    for ff in range(7*K0):
        tl = min((t_ for t_ in range(7) if ff >= AV[t_] and nxt[t_] < K0), key=lambda t_: (nxt[t_], t_))
        order.append(("f", nxt[tl], tl)); nxt[tl] += 1
    order += [("f", k, tl) for tl in range(7) for k in range(K0, 28)]
    lastq = {tl: max(f for f in range(NA) if order[f][2] == tl) for tl in range(3)}
    chunk = lambda f: order[f][1] // 4 + (7 if order[f][0] == "f" else 0)
    first = {c: min(f for f in range(len(order)) if chunk(f) == c) for c in range(14)}
    last = {c: max(f for f in range(len(order)) if chunk(f) == c) for c in range(14)}
    xlast = {max(f for f in range(len(order)) if order[f][1] == k): k for k in range(6)}
    LE = min(79, lastq[0] - 2 - (1 if KQ < 26 else 0))
    JOIN = last[7] + 1
    NM = len(order); SC = NA + 7*K0
    HP = 52
    ACC = 16; HR = 80; W = 112; WREG = 128
    vD = 12; vD2 = 2; vT0 = 8; vT1 = 9; vP = 10; vL1 = 11; u = 44
    SK = [70, 71, 72, 73, 74, 75, 76]
    late = ["s_and_b32 s40, s44, 1", "s_lshr_b32 s41, s44, 1", f"s_mul_i32 s77, s44, {RNG}",
            f"s_mul_i32 s65, s52, {144*1024}", f"s_mul_i32 s51, s46, {7*1024}", "s_add_u32 s65, s65, s51", f"s_add_u32 s65, s65, {WS_A}", "s_add_u32 s66, s65, 4096",
            "s_lshl_b32 s46, s50, 7", f"s_mul_i32 s0, s44, {448*896}", "s_add_u32 s0, s0, s46",
            f"s_mul_i32 s1, s40, {8*28*128}", f"s_add_u32 s1, s1, {WOS}", "s_sub_u32 s1, s1, s77",
            f"s_mul_i32 s51, s49, {2*144*1024}", f"s_mul_i32 s55, s44, {28*1024}", "s_add_u32 s55, s55, s51", f"s_add_u32 s55, s55, {WS_A}",
            f"s_mul_i32 s21, s41, {144*1024}", "s_add_u32 s20, s55, s21", "s_add_u32 s69, s51, s21", "s_sub_u32 s21, s55, s21", f"s_add_u32 s21, s21, {144*1024}",
            "s_lshl_b32 s51, s40, 14", "s_add_u32 s69, s69, s51", f"s_add_u32 s69, s69, {WS_A+112*1024}",
            "s_lshr_b32 s68, s49, 1", "s_lshl_b32 s68, s68, 11",
            "s_lshl_b32 s51, s44, 9", "s_add_u32 s47, s68, s51", f"s_add_u32 s47, s47, {WS_F+32768}",
            "s_lshl_b32 s51, s40, 10", "s_add_u32 s68, s68, s51", f"s_add_u32 s68, s68, {WS_F+65536}",
            "s_lshl_b32 s45, s49, 1", "s_add_u32 s45, s45, s41", "s_lshl_b32 s45, s45, 5",
            f"s_mul_i32 s7, s44, {14*1024}", f"s_mul_i32 s6, s44, {14*8*896}", "s_add_u32 s6, s6, s46",
            "s_lshl_b32 s51, s40, 6", "s_add_u32 s46, s46, s51", "s_mov_b32 s51, s64", "s_add_u32 s59, s59, 32768"]
    for g in range(7):
        late.append(f"s_lshl_b32 s{SK[g]}, s51, 12")
        if g < 6: late += ["s_add_u32 s51, s51, 1", "s_cmp_ge_u32 s51, 7", "s_cselect_b32 s51, 0, s51"]
    b_ = Asm(); srd(b_, 28, 16, 1792*448*2); srd(b_, 12, 8, 448*448*2); srd(b_, 8, 4, 2048*448*2)
    late += [l.strip() for l in b_.L]
    late += [f"v_lshrrev_b32 v{u}, 3, v0", f"v_bfe_u32 v{u+3}, v0, 4, 1", f"v_lshlrev_b32 v{u+1}, 2, v{u+3}", f"v_and_b32 v{u+2}, 7, v0",
             f"v_xor_b32 v{u+2}, v{u+2}, v{u+1}", f"v_mul_u32_u24 v{u}, 896, v{u}", f"v_lshl_add_u32 {vr(vD)}, v{u+2}, 4, v{u}",
             f"v_bfe_u32 v{u}, v0, 2, 2", f"v_lshrrev_b32 v{u+4}, 5, v0", f"v_lshl_add_u32 v{u+1}, v{u+4}, 2, v{u}", f"v_lshlrev_b32 v{u+1}, 7, v{u+1}",
             f"v_and_b32 v{u+2}, 3, v0", f"v_lshl_add_u32 v{u+1}, v{u+2}, 3, v{u+1}", f"v_lshl_add_u32 v{u+1}, v{u+3}, 5, v{u+1}", f"v_lshrrev_b32 v{u}, 1, v{u}",
             f"v_xor_b32 v{u}, s40, v{u}", f"v_lshl_add_u32 v{u+1}, v{u}, 6, v{u+1}", f"v_add_u32 {vr(vT0)}, s77, v{u+1}", f"v_xor_b32 {vr(vT1)}, 64, {vr(vT0)}",
             f"v_and_b32 v{u}, 31, v0", f"v_add_u32 v{u}, s45, v{u}", f"v_mul_u32_u24 v{u}, 896, v{u}", f"v_lshl_add_u32 v{u}, v{u+4}, 4, v{u}", f"v_add_u32 v6, s46, v{u}",
             f"v_add_u32 v13, s1, {vr(vT0)}", "v_xor_b32 v14, 64, v13",
             f"v_bfe_u32 {vr(vP)}, v0, 1, 2", f"v_lshlrev_b32 {vr(vP)}, 7, {vr(vP)}",
             f"v_add_u32 v15, s20, {vr(vL)}", f"v_add_u32 {vr(vL1)}, s21, {vr(vL)}"]
    early = ["s_lshl_b32 s59, s45, 4", "s_add_u32 s59, s59, s46", "s_lshl_b32 s59, s59, 7", f"s_add_u32 s59, s59, {WS_F}", "v_mov_b32 v6, 0"]
    class Z: pass
    z = Z()
    tmp = [128, 132, 136, 140]
    z.pool = [240, 244, 248, 252, 8, 12] + tmp; z.freg = {}; z.rp = 0; z.waited = -1; z.lim = 1; z.epiq = []
    z.lq = []
    for k in range(cfg.LPRE, 28): z.lq += [(k, o) for o in ln_ops(X0, k, LT, vR, 4)]
    checks = {first[2] - 7: ("gq24", GQ1, 3), first[4] - 7: ("gq48", GQ2, 4), first[5] - 7: ("gq60", GQ3, 5), first[6] - 7: ("gq72", GQ4, 6), NA - 7: ("gate0", GATE(0), 7)}
    GL = [1, 2] + ([3] if cfg.G23 else []) + [4, 5] + ([6] if K0 == 24 else [])
    for g in GL: checks[first[7+g] - 8] = (f"gate{g}", GATE(g), 10 if (g == 2 and not cfg.G23) else 7 + g if g < GL[-1] else 13)
    assert all(b - a_ >= 4 for a_, b in zip(sorted(checks), sorted(checks)[1:]))
    ool = []
    def frag(f):
        p, k, tl = order[f]; g, sp = k // 4, k % 4
        c = [r_ for r_ in z.pool if not (r_ in tmp and f >= NA)]
        if not c: return False
        reg = c[0]; z.pool.remove(reg); z.freg[f] = reg
        for rd in range(2):
            if p == "q":
                if g < 4: ad, off = vTQ, g*12288 + 16*sp*192
                else: ad, off = vTQ + 1 + sp//2, (sp % 2)*AR + QA[g]
                off += 4*rd*192 + tl*56
            else:
                if FSLOT[g] == "D": ad, off = vTF, 16*sp*224
                else: ad, off = vTF+1, FA[FSLOT[g]] + (sp//2)*AR + 16*(sp % 2)*224
                off += 4*rd*224 + tl*32
            a.lg(f"ds_read_b64_tr_b16 {vr(reg+2*rd,2)}, {vr(ad)} offset:{off}", ("f", f))
        return True
    def epi_q(tl, var):
        b = AQ + 16*tl
        o = [] if var else [f"v_mul_f32 v{b+r}, s{35+tl}, v{b+r}" for r in range(16)]
        o += [f"v_cvt_pk_bf16_f32 v{b+r}, v{b+2*r}, v{b+2*r+1}" for r in range(8)]
        o += [f"v_cndmask_b32 v{b+r}, v6, v{b+r}, s[38:39]" for r in range(8)] if var else [f"v_cndmask_b32 v{b+r}, v{b+r}, 0, s[42:43]" for r in (6, 7)]
        if tl == 2 and not var: o.append(("mix",))
        o += [("vm", f"buffer_store_dwordx4 {vr(b+4*q,4)}, {vr(vL)}, s[24:27], s{32+tl} offen offset:{1024*q} {SC1}") for q in range(2)]
        return [(tl, x) for x in o]
    def epi_f(tl):
        b = ACCF + 16*tl
        return [(None, x) for x in [f"v_max_f32 v{b+r}, 0, v{b+r}" for r in range(8)] + [f"v_mul_f32 v{b+r}, v{b+r}, v{b+8+r}" for r in range(8)] +
                [f"v_cvt_pk_bf16_f32 v{HP+4*tl+r}, v{b+2*r}, v{b+2*r+1}" for r in range(4)]]
    epi_at = {SC + KT*tl + KT - 1 + 3: epi_f(tl) for tl in range(7)}
    def put(x):
        if isinstance(x, str): a(x); return 1
        if x[0] == "vm": a.vm(x[1], "st"); return 4
        a("s_cmp_eq_u32 s60, 10"); a("s_cbranch_scc1 L_mix"); a("L_mix_x:"); return 2
    def stream(lo, hi, var):
        sfx = "v" if var else ""
        for f in range(lo, hi):
            p, k, tl = order[f]; ff = f - NA
            used = 0
            if p == "f" and tl >= 4 and k == 0:
                flushed = False
                while any(e[0] is not None and e[0] <= tl - 4 for e in z.epiq): put(z.epiq.pop(0)[1]); flushed = True
                if flushed: a("s_nop 1")
            if f > z.waited:
                z.waited = min(NM-1, f + (2 if p == "q" else 1 if z.rp - f < 7 else 3), z.rp-1)
                assert z.waited >= f
                wait_lg_tags(a, [("f", z.waited)])
            assert not z.lq or z.lq[0][0] > k
            acc = vr((AQ if p == "q" else ACCF) + 16*tl, 16)
            ab = [vr(z.freg[f], 4), vr(X0+4*k, 4)]
            sw = var if p == "q" else 0
            a(f"v_mfma_f32_32x32x16_bf16 {acc}, {ab[sw]}, {ab[1-sw]}, {'0' if k == 0 else acc}")
            st(name=f"_a{f}" if p == "q" else f"_f{ff}")
            if f == z.waited: used += 1
            if f >= 1 and not (z.freg[f-1] in (8, 12) and f > max(xlast)): z.pool.append(z.freg[f-1])
            if f - 1 in xlast: z.pool.append(X0 + 4*xlast[f-1])
            for t_ in range(3):
                if f == lastq[t_] + 3: z.epiq += epi_q(t_, var)
            if f == JOIN + 2: z.epiq += [(None, x) for x in early]
            if f in epi_at: z.epiq += epi_at.pop(f)
            sig = {33: CQ2, 57: CE, last[7]: CONS(0), last[8]: CONS(1)}
            if cfg.EW: sig[last[9]] = CONS(2)
            if f in sig:
                if f < NA: assert z.waited >= f + 2
                lds_add(a, vr(vC), vr(vOne), sig[f], "c"); used += 3
            if f == 81: st(name="b7")
            if f + 3 in checks:
                a.lg(f"ds_read_b32 {vr(vG)}, {vr(vC)} offset:{checks[f+3][1]}", "g"); used += 1
            if f + 1 in checks:
                a.wait(lg="g"); a(f"v_cmp_gt_u32 vcc, 4, {vr(vG)}"); used += 2
            if f in checks:
                lab = f"L_{checks[f][0]}{sfx}"
                st(name=f"_pre{checks[f][0]}")
                a(f"s_cbranch_vccnz {lab}"); a(f"{lab}_x:"); used += 1
                ool.append((lab, checks[f][1]))
                z.lim = checks[f][2]
                st(name=f"_{checks[f][0]}")
            if ff == cfg.FL:
                assert not z.epiq
                st(name="_prefl0")
                a.wait(vm="all")
                if cfg.CF: lds_add(a, vr(vC), vr(vOne), AF, "c"); st(name="fl0")
                else: arrive(a, "v6", vr(vC), vr(vOne), 0, "ar")
                used += 4
            if ff == cfg.FL + 3 and not cfg.CF:
                a.wait(lg="ar")
                flag_if_last(a, "v6", vr(vOne), "s59"); used += 5
                st(name="fl0")
            if cfg.SA and used <= 1 and z.epiq and isinstance(z.epiq[0][1], tuple) and z.epiq[0][1][0] == "vm" and z.rp > f + 3 and f < JOIN - 4:
                put(z.epiq.pop(0)[1]); continue
            n = 0
            while z.rp < NM and chunk(z.rp) <= z.lim and z.rp <= f + 8 and n < 2 and frag(z.rp):
                z.rp += 1; n += 1; used += 2
            take = -(-len(z.lq) // max(1, LE - f))
            for q in range(min(take, len(z.lq))): a(z.lq.pop(0)[1]); used += 1
            while z.epiq and used < (cfg.SLOTS if ff < cfg.LP0 else 8):
                if cfg.SA and isinstance(z.epiq[0][1], tuple) and z.epiq[0][1][0] == "vm":
                    c = [q for q, e in enumerate(z.epiq) if isinstance(e[1], str)]
                    if not c: break
                    used += put(z.epiq.pop(c[0])[1])
                else: used += put(z.epiq.pop(0)[1])
            if ff >= cfg.LP0 and used < cfg.LPN: a(f"s_nop {cfg.LPN - used - 1}")
            if ff > max(cfg.FL + 5, 72):
                assert 8 not in z.pool and 12 not in z.pool and all(z.freg[q] not in (8, 12) for q in range(f, z.rp))
                n = 0
                while late and used < cfg.SLOTS - 1 and n < 2: a(late.pop(0)); used += 1; n += 1
    a.raw(".p2align 3")
    for k in range(cfg.LPRE - cfg.LP2 - 1): ln_pk(k)
    a(f"ds_read_b32 {vr(vG)}, {vr(vC)} offset:{GQ0}")
    ln_pk(cfg.LPRE - cfg.LP2 - 1)
    st(name="_p0")
    a("s_waitcnt lgkmcnt(0)")
    a(f"v_cmp_gt_u32 vcc, 4, {vr(vG)}")
    a("s_cmp_ge_u32 s60, 11")
    a("s_nop 2")
    a("s_cbranch_vccnz L_gq0"); a("L_gq0_x:"); ool.append(("L_gq0", GQ0))
    st(name="b0")
    for k in range(7): frag(k); z.rp += 1
    for k in range(cfg.LPRE - cfg.LP2, cfg.LPRE): ln_pk(k)
    a("s_cbranch_scc1 L_pav")
    import copy
    saved = (list(a.vmq), list(a.lgq), st.n, list(st.names), len(a.L), copy.deepcopy(z.__dict__))
    a.raw(".p2align 3")
    a("L_pav:")
    stream(0, JOIN, 1)
    a("s_branch L_pav_x")
    endv = (list(a.vmq), list(a.lgq), copy.deepcopy(z.__dict__))
    vcode = a.L[saved[4]:]; a.L = a.L[:saved[4]]
    a.vmq, a.lgq, st.n, st.names = saved[0], saved[1], saved[2], saved[3]
    z.__dict__.update(saved[5])
    stream(0, JOIN, 0)
    assert endv == (a.vmq, a.lgq, z.__dict__)
    a("L_pav_x:")
    stream(JOIN, NM, 0)
    assert not late
    lds_add(a, vr(vC), vr(vOne), HD-CNT)
    for e in z.epiq: put(e[1])
    a(f"v_add_u32 {vr(vD2)}, {8*896-1024}, {vr(vD)}")
    a("v_mov_b32 v1, 0")
    a("s_nop 5")
    for k in sorted(epi_at):
        for e in epi_at[k]: put(e[1])
    st(name="hg1")
    assert cfg.HST == 0
    def pace(n):
        if len(a.vmq) > n:
            a(f"s_waitcnt vmcnt({n})"); a.vmq = a.vmq[len(a.vmq)-n:]
    def hstore(tl): a.vm(f"buffer_store_dwordx4 {vr(HP+4*tl,4)}, {vr(vL)}, s[24:27], {'s65' if tl < 4 else 's66'} offen offset:{1024*(tl%4)} {SC1}", "st")
    def hflag():
        arrive(a, "v1", vr(vC), vr(vOne), 1)
        a.wait(lg="all")
        flag_if_last(a, "v1", vr(vOne), "s59")
    if cfg.HST != 1: lds_wait(a, "L_ha", vr(vC), "v5", 4, sleep=2, off=HA-CNT)
    st(name="_ha")
    keep = list(a.vmq)
    a("s_cmp_lt_u32 s50, 7")
    a("s_cbranch_scc1 L_htile")
    lds_add(a, vr(vC), vr(vOne), HX)
    for tl in range(7 if cfg.HST == 0 else 0):
        pace(1); hstore(tl)
    a.wait(vm="all"); hflag()
    a("s_branch L_h_end")
    a("L_htile:")
    a.vmq = keep
    a(f"s_setprio {cfg.PH2}")
    for i in range(2): a.vm(f"buffer_load_dwordx4 {vr(HR+4*i,4)}, v6, s[8:11], 0 offen offset:{32*i}", "x")
    lds_wait(a, "L_hdh", vr(vC), "v5", 4, off=HD-CNT)
    def slot(i): return (CB1 + 2048*i) if i < 6 else RB + 2048*((i - 6) % 6 if i < 22 else i - 22)
    def wdma(i, half):
        if half == 0:
            a(f"s_add_u32 m0, s77, {slot(i)}")
            a(f"s_mul_i32 s4, s{SK[i//4]}, 14")
            a("s_add_u32 s4, s4, s0")
            if i % 4: a(f"s_add_u32 s4, s4, {(i%4)*16*896}")
            a.vm(f"buffer_load_dwordx4 {vr(vD)}, s[28:31], s4 offen lds", ("w", i))
        else:
            a.vm(f"buffer_load_dwordx4 {vr(vD2)}, s[28:31], s4 offen offset:1024 lds", ("w", i))
    def wodma(k):
        a(f"s_add_u32 m0, s7, {WOS+k*1024}")
        a(f"s_add_u32 s5, s6, {k*8*896}")
        a.vm(f"buffer_load_dwordx4 {vr(vD)}, s[12:15], s5 offen lds", "wo")
    wlate = {}
    def wreg(i): return wlate[i] if i >= 22 else WREG + 8*(i-6) if i >= 6 else W + 8*(i & 1)
    def reads(i):
        for ct in range(2):
            for r_ in range(2):
                a.lg(f"ds_read_b64_tr_b16 {vr(wreg(i)+4*ct+2*r_,2)}, {vr(vT0+ct)} offset:{slot(i)+r_*1024}", ("r", i))
    seq = list(range(6, 22)) + ([5] if cfg.EW else list(range(6))) + [("wo", k) for k in range(0, cfg.WOP, 2)]
    woq = list(range(cfg.WOP, 14))
    rd = 6; nst = 7 if cfg.HST else 0; flagged = False
    for n, it in enumerate(seq):
        V1 = cfg.V1 if n < cfg.VN else cfg.V1B
        for q in range(cfg.HSN):
            if nst < 7 and n % cfg.HSI == 0:
                pace(V1); hstore(nst); nst += 1
        if isinstance(it, tuple):
            for k in (it[1], it[1]+1):
                pace(V1); wodma(k)
        else:
            if 12 <= it < 22:
                while rd <= it - 6:
                    a.wait(vm=("w", rd)); reads(rd); rd += 1
                a.wait(lg=("r", it-6))
            for half in range(2):
                pace(V1); wdma(it, half)
        while rd < 22 and rd in seq[:n+1] and a._cnt(a.vmq, ("w", rd)) is None:
            if len(a.lgq) >= 12: a.wait(lg="all")
            reads(rd); rd += 1
        if nst == 7 and not flagged and a._cnt(a.vmq, "st") is None:
            hflag(); flagged = True
            st(name="hfl1")
    assert flagged
    st(name="hpre")
    poll(a, "L_p2", "v5", vr(vP), "s[24:27]", "s47", 1, sleep=8)
    st(name="hpoll2")
    while rd < 22:
        if len(a.lgq) >= 12: a.wait(lg="all")
        reads(rd); rd += 1
    for b in (0, 4):
        a(f"v_permlane32_swap_b32 v{HR+b}, v{HR+b+2}")
        a(f"v_permlane32_swap_b32 v{HR+b+1}, v{HR+b+3}")
    a("s_mov_b32 s51, 0xffff0000")
    for i in range(8):
        a(f"v_lshlrev_b32 v{ACC+2*i}, 16, v{HR+i}")
        a(f"v_and_b32 v{ACC+2*i+1}, s51, v{HR+i}")
    srd(a, 8, 18, 2048*448*2)
    a(f"v_and_b32 {vr(vP)}, 7, v0")
    a(f"v_lshlrev_b32 {vr(vP)}, 7, {vr(vP)}")
    a.wait(lg="all")
    hpool = [HR + 8*k for k in range(4)]
    hreg = {}
    opq = []
    nh = [0]
    def hload(i, tt):
        if tt == 0: hreg[i] = hpool.pop(0)
        a.vm(f"buffer_load_dwordx4 {vr(hreg[i]+4*tt,4)}, {vr(15 if tt == 0 else vL1)}, s[24:27], s{SK[i//4]} offen offset:{1024*(i%4)} {SC1}", ("h", i))
    ringq = [(i, half) for i in range(22, 28) for half in range(2)]
    def next_op(v):
        k = nh[0]
        if ringq and ringq[0][1] == 1: pace(v); wdma(*ringq.pop(0))
        elif k < 56 and (k % 2 or hpool): pace(v); hload(k // 2, k % 2); nh[0] += 1
        elif ringq: pace(v); wdma(*ringq.pop(0))
        elif woq: pace(v); wodma(woq.pop(0))
        else: return False
        return True
    for k in range(8): next_op(cfg.V2)
    reads(0)
    assert 6 <= cfg.N1 <= cfg.EP <= 19
    NL = max(cfg.N1, 16)
    PA = [None, 12, 2, 11]
    def dmf(i, m):
        tt, ct = m // 2, m % 2
        acc = vr(ACC+16*m, 16)
        a(f"v_mfma_f32_32x32x16_bf16 {acc}, {vr(wreg(i)+4*ct,4)}, {vr(hreg[i]+4*tt,4)}, {'0' if (i == 0 and m) else acc}")
    nr = 22
    for i in range(22):
        if i == cfg.N1:
            while next_op(cfg.V3 if cfg.N1 >= 15 else cfg.V2): pass
            st(name="hN1")
            lds_wait(a, "L_ca", vr(vC), "v5", 1, sleep=1, off=CW)
        if i == NL:
            assert nh[0] == 56 and not ringq and not woq
            post = [f"v_add_u32 v1, s77, {vr(vL)}"]
            for j in range(1, 4): post += [f"s_xor_b32 s51, s44, {j}", f"s_mul_i32 s51, s51, {RNG}", f"v_add_u32 v{PA[j]}, s51, {vr(vL)}"]
            post += ["s_lshl_b32 s51, s41, 2", f"v_add_u32 v15, s51, {vr(vC)}", "s_mov_b32 s12, s22", "s_mov_b32 s13, s23"]
        if i == cfg.EP: a.vm(f"buffer_load_dword v5, {vr(vP)}, s[24:27], s68 offen {SC1}", "p3")
        if i + 1 < 6:
            a.wait(vm=("w", i+1)); reads(i+1)
        assert nh[0] >= 2*i + 2
        a.wait(vm=("h", i), lg=("r", i))
        if i == 5: lds_add(a, vr(vC), vr(vOne), HX, "c")
        for m in range(4):
            dmf(i, m)
            if m == 0 and i >= 1:
                hpool.append(hreg[i-1])
                if 6 <= i-1: hpool.append(wreg(i-1))
                if i == 6: hpool += [W, W + 8]
            if i < cfg.N1:
                next_op(cfg.V2)
                if cfg.PAD: a(f"s_nop {cfg.PAD-1}")
            elif i < NL: next_op(cfg.V3)
            else:
                for z in range(2):
                    if post: a(post.pop(0))
            if i >= 19 and m in (0, 2):
                wlate[nr] = hpool.pop(0)
                a.wait(vm=("w", nr));
                if len(a.lgq) > 8: a.wait(lg=("r", nr-2))
                reads(nr); nr += 1
            if i == 21 and m == 1:
                a.wait(vm="all")
                a("v_cmp_gt_u32 vcc, 1, v5")
            if i == 21 and m == 3:
                a("s_cmp_eq_u64 vcc, 0")
                a(f"s_cselect_b32 s14, {WS_BYTES}, 0")
    assert nr == 28 and not post
    oreg = {}
    def oload(k, srd_):
        if k == 0: a("s_mov_b32 s4, s69")
        elif k % 4 == 0: a("s_add_u32 s4, s4, 4096")
        if k not in oreg:
            b = hpool.pop(0); oreg[k] = b; oreg[k+1] = b + 4
        a.vm(f"buffer_load_dwordx4 {vr(oreg[k],4)}, {vr(vL)}, {srd_}, s4 offen offset:{1024*(k%4)} {SC1}", ("o", k))
    a.wait(lg="all")
    no = 0
    for q, (i, m) in enumerate([(i, m) for i in range(22, 28) for m in (2, 3)]):
        dmf(i, m)
        if q == 0: hpool += [hreg[21], wreg(21)]
        oload(no, "s[12:15]"); no += 1
    for q, (i, m) in enumerate([(i, m) for i in range(22, 28) for m in (0, 1)]):
        dmf(i, m)
        if m == 0 and i > 22: hpool += [hreg[i-1], wreg(i-1)]
        if q < 2:
            for z in range(2): oload(no, "s[12:15]"); no += 1
        if q == 2: a("s_nop 3")
        if 2 <= q < 10: a(f"ds_write_b128 v1, {vr(ACC+32+4*(q-2),4)} offset:{RB+4096+(q-2)*1024}")
        if q == 10: lds_add(a, vr(vC), vr(vOne), R1)
    st(name="hdown")
    a("v_and_b32 v8, 0xfffffdff, v13"); a("v_and_b32 v9, 0xfffffdff, v14")
    WFB = [hpool.pop(0) for k in range(5)]
    def wf(k): return WFB[(k % 10)//2] + 4*(k % 2)
    morder = [(stp, 1) for stp in range(cfg.LAG)]
    for stp in range(16):
        if stp + cfg.LAG < 16: morder.append((stp + cfg.LAG, 1))
        morder.append((stp, 0))
    def wrd(k):
        stp, ct = morder[k]
        row = 28*(stp//2) + 16*(stp % 2)
        for r_ in range(2):
            ad = (8 if (stp == 15 and r_) else 13) + ct
            a.lg(f"ds_read_b64_tr_b16 {vr(wf(k)+2*r_,2)}, v{ad} offset:{(row+8*r_)*128}", ("w", k))
    lds_wait(a, "L_r1", vr(vC), "v5", 4, off=R1)
    for k in range(3): wrd(k)
    for j in (2, 3):
        for q in range(4): a.lg(f"ds_read_b128 {vr(ACC+16*j+4*q,4)}, v{PA[j]} offset:{RB+(j-1)*4096+q*1024}", ("p", j))
    st(name="hred")
    a("s_cmp_lg_u32 s14, 0")
    a("s_cbranch_scc1 L_early")
    poll(a, "L_p3", "v5", vr(vP), "s[24:27]", "s68", 1, sleep=cfg.PS3)
    for k in range(16): oload(k, "s[24:27]")
    a("L_early:")
    st(name="hpoll3")
    last1 = max(k for k in range(32) if morder[k][1] == 1)
    adds = [f"v_add_f32 v{ACC+32+r}, v{ACC+32+r}, v{ACC+48+r}" for r in range(16)] + [f"v_add_f32 v{ACC+r}, v{ACC+r}, v{ACC+32+r}" for r in range(16)]
    wp = 3
    for k in range(32):
        stp, ct = morder[k]
        if ct == 0: assert not adds
        a.wait(vm=("o", stp), lg=(("w", k) if k < 4 else ("w", min(31, k+1)) if k % 2 == 0 else None))
        acc = vr(ACC+16*ct, 16)
        a(f"v_mfma_f32_32x32x16_bf16 {acc}, {vr(wf(k),4)}, {vr(oreg[stp],4)}, {acc}")
        if k == 1: a.wait(lg=("p", 3))
        for z in range(2 if k else 0):
            if wp < 32 and wp <= k + 6: wrd(wp); wp += 1
        if 1 <= k < cfg.LAG:
            for z in range(-(-len(adds) // (cfg.LAG - k))): a(adds.pop(0))
        if k == cfg.LAG + 2 and cfg.OT:
            for s_ in ("s_xor_b32 s51, s44, 2", f"s_mul_i32 s51, s51, {RNG}", "s_add_u32 s51, s51, 4096", "v_and_b32 v2, 31, v0", "v_mul_u32_u24 v2, 80, v2"): a(s_)
        if k == cfg.LAG + 3 and cfg.OT:
            for s_ in ("v_lshrrev_b32 v5, 5, v0", "v_lshl_add_u32 v2, v5, 3, v2", "v_add_u32 v2, s51, v2", "v_lshrrev_b32 v5, 2, v0"): a(s_)
        if k == cfg.LAG + 4 and cfg.OT:
            for s_ in ("v_mul_u32_u24 v11, 80, v5", "v_and_b32 v10, 3, v0", "v_lshl_add_u32 v11, v10, 4, v11", "v_add_u32 v11, s51, v11"): a(s_)
        if k == cfg.LAG + 5 and cfg.OT:
            for s_ in ("v_add_u32 v5, s45, v5", "v_mul_u32_u24 v5, 896, v5", "v_lshl_add_u32 v5, v10, 4, v5", "v_add_u32 v6, s46, v5", f"s_mov_b32 s51, {16*896}"): a(s_)
        if k == last1 + 2:
            a("s_nop 7")
            for q in range(4): a.lg(f"ds_write_b128 v1, {vr(ACC+16+4*q,4)} offset:{RB+q*1024}", "e")
            lds_add(a, "v15", vr(vOne), RX, "e")
    st(name="homf")
    PT = ACC + 32; OF = ACC + 48
    lds_wait(a, "L_rx", "v15", "v5", 2, off=RX)
    for q in range(4): a.lg(f"ds_read_b128 {vr(PT+4*q,4)}, v{PA[1]} offset:{RB+q*1024}", ("e", q))
    for hq in range(2):
        a.wait(lg=("e", 2*hq+1))
        for r in range(8*hq, 8*hq+8): a(f"v_add_f32 v{ACC+r}, v{ACC+r}, v{PT+r}")
        for r in range(4*hq, 4*hq+4): a(f"v_cvt_pk_bf16_f32 v{OF+r}, v{ACC+2*r}, v{ACC+2*r+1}")
        b = 4*hq
        if cfg.OT:
            for z in range(2): a(f"ds_write_b64 v2, {vr(OF+b+2*z,2)} offset:{RB+32*hq+16*z}")
            continue
        a("s_nop 1")
        a(f"v_permlane32_swap_b32 v{OF+b}, v{OF+b+2}")
        a(f"v_permlane32_swap_b32 v{OF+b+1}, v{OF+b+3}")
        a(f"buffer_store_dwordx4 {vr(OF+b,4)}, v6, s[8:11], 0 offen offset:{32*hq}")
    if cfg.OT:
        for z in range(2): a.lg(f"ds_read_b128 {vr(PT+4*z,4)}, v11 offset:{RB+16*80*z}", ("t", z))
        for z in range(2):
            a.wait(lg=("t", z))
            a(f"buffer_store_dwordx4 {vr(PT+4*z,4)}, v6, s[8:11], {'s51' if z else '0'} offen {cfg.OFL}")
    a("L_h_end:")
    st.flush(63, 8)
    a("s_endpgm")
    a.L += vcode
    for lab, off in ool:
        lds_wait(a, lab, vr(vC), vr(vG), 4, off=off)
        a(f"s_branch {lab}_x")
    a("L_mix:")
    b = AQ + 32; m = b + 8
    for s_ in (f"v_mov_b32 v{m}, 0x3f80", f"v_cndmask_b32 v{b+6}, v{b+6}, v{m}, s[42:43]", "s_lshl_b32 s51, s44, 11", f"s_add_u32 s51, s51, {VS0}",
               f"v_lshrrev_b32 v{m+5}, 5, v0", f"v_and_b32 v{m}, 31, v0", f"v_lshlrev_b32 v{m}, 6, v{m}", f"v_lshl_add_u32 v{m}, v{m+5}, 3, v{m}",
               f"v_bfe_u32 v{m+1}, v0, 1, 2", f"v_lshl_add_u32 v{m}, v{m+1}, 4, v{m}", f"v_add_u32 v{m}, s51, v{m}",
               f"v_xor_b32 v{m+1}, 16, v{m}", f"v_xor_b32 v{m+2}, 32, v{m}", f"v_xor_b32 v{m+3}, 48, v{m}",
               f"v_bfe_u32 v{m+4}, v0, 2, 2", f"v_lshl_add_u32 v{m+4}, v{m+5}, 2, v{m+4}", f"v_lshrrev_b32 v{m+5}, 1, v{m+4}", f"v_lshlrev_b32 v{m+5}, 4, v{m+5}",
               f"v_and_b32 v{m+6}, 3, v0", f"v_lshlrev_b32 v{m+6}, 3, v{m+6}", f"v_bfe_u32 v{m+7}, v0, 4, 1", f"v_lshl_add_u32 v{m+6}, v{m+7}, 5, v{m+6}",
               f"v_xor_b32 v{m+5}, v{m+5}, v{m+6}", f"v_lshlrev_b32 v{m+4}, 6, v{m+4}", f"v_add3_u32 v{m+4}, v{m+4}, v{m+5}, s51"): a(s_)
    a("s_mov_b64 s[56:57], vcc")
    lds_wait(a, "L_mixw", vr(vC), f"v{m+5}", 4, off=CE)
    a("s_mov_b64 vcc, s[56:57]")
    for i in range(4): a(f"ds_write_b64 v{m+i}, {vr(b+2*i,2)}")
    for i in range(4): a(f"ds_read_b64_tr_b16 {vr(b+2*i,2)}, v{m+4} offset:{512*i}")
    a("s_waitcnt lgkmcnt(0)")
    a("s_branch L_mix_x")

def build():
    a = Asm()
    st = Stamps(a, 0, 22)
    common(a, st)
    n0 = st.n
    gen_h(a, st)
    hn = st.names[1:]
    st.n = n0; st.names = st.names[:n0]
    gen_c(a, st)
    if asmlib.STAMP: a.raw(f"; STAMPS C {st.names[1:]}\n; STAMPS H {hn}")
    s = f"; @launch grid=(256,1,1) block=(512,1,1) lds={LDS}\n"
    s += '.amdgcn_target "amdgcn-amd-amdhsa--gfx950"\n.text\n' + kernel_head(NAME) + a.text()
    s += '.section .rodata,"a"\n' + kernel_desc(NAME, 256, 256, 102)
    if cfg.ALIGN:
        import align
        s, f_, m_ = align.align(s, nop=cfg.ALIGN if cfg.ALIGN > 1 else False)
    return s
def set_args(args):
    for x in args:
        if x.startswith("sel="): asmlib.STAMP_SEL = x[4:].split(",")
        elif "=" in x:
            k, v = x.split("="); setattr(cfg, k, eval(v))
if __name__ == "__main__":
    asmlib.STAMP = "--stamp" in sys.argv
    asmlib.STAMP_REAL = "--real" in sys.argv
    set_args(sys.argv[2:])
    open(sys.argv[1], "w").write(build() + ("; ARGS " + " ".join(x for x in sys.argv[2:] if "=" in x and not x.startswith("sel=")) + "\n" if asmlib.STAMP else ""))
```

```python
import sys, math, struct
import asmlib
from asmlib import *
def f2u(x): return struct.unpack("<I", struct.pack("<f", x))[0]
NAME = "parallel_sum__softmax_full_mha__glu_gated_reglu__prompt_kernel"
WS_KV, WS_A, WS_F = 2<<20, 6<<20, 16<<20
WS_BYTES = WS_F + 3*32768
QSCALE = math.log2(math.e) / math.sqrt(28.0)
LDS = 163840
XS = 49152; AR = 28672
OU = 14336 + 128
QA = {4: 0, 5: 7168, 6: 10240}
FA = {"A": 14336, "B": 21504, "C": 0, "E": 7168}
FSLOT = ["A", "B", "D", "C", "E", "A", "B"]
STO = 24576
CNT = XS + 2*AR - 128
GATE = lambda g: 4*g
CONS = lambda g: 32 + 4*g
HD = CNT + 48; HA = CNT + 52
GQ1 = 56; GQ2 = 60; GQ0 = 28; CQ2 = 88; CE = 92; GQ3 = 104; GQ4 = 108; CL = 112; AF = 116; HX = 100
WOL = 64; CW = 68; R1 = 72; RX = 80
VS0 = 32768; VS2 = 25600
WOS = XS + 2*AR; NS = 6; RNG = NS*2048
CB1 = 0; RB = 49152
WS_Q = 0
class P: pass
cfg = P()
cfg.N1 = 10
cfg.N2 = 4
cfg.SPIN = 1 << 16
cfg.ROT = 3
cfg.V1 = 3; cfg.V2 = 4; cfg.V3 = 12
cfg.XA = 4; cfg.BX = 2
cfg.Q0 = 2; cfg.Q1 = 0
cfg.LPRE = 17
cfg.HPRE = 4
cfg.HSI = 1; cfg.HSN = 1; cfg.PE = 2; cfg.WDP = [0, 0, 0]; cfg.F3 = 1
cfg.SLOTS = 6
cfg.SPF = 0; cfg.SPQ = 0; cfg.SPS = 0
cfg.LP2 = 2; cfg.T6 = 0; cfg.HST = 0; cfg.VN = 9; cfg.V1B = 5; cfg.NOM = 0; cfg.ITS = 0; cfg.CQF = 3; cfg.LN0 = 0; cfg.PF = 0; cfg.ZM = 0; cfg.MAP = 1
cfg.OT = 1; cfg.OFL = ''; cfg.KQ = 24; cfg.AV = [8, 18, 28]; cfg.LP0 = 999; cfg.LPN = 11; cfg.MT = [-2, 7]; cfg.MR = 0; cfg.FT = 0; cfg.KB = 4; cfg.GS = 0; cfg.GOP = 1; cfg.W = 9; cfg.W0 = 8; cfg.MG = 25; cfg.TI = 2; cfg.LT = 9; cfg.PAR = None; cfg.CLR = 7; cfg.PRE = 16; cfg.OPG = 2; cfg.CAW = 0; cfg.P2 = 5; cfg.HD = 0; cfg.NL = 16; cfg.XT = 9; cfg.MQ = -2; cfg.MQR = 0; cfg.G23 = 1; cfg.GP = 1; cfg.WSB = 0; cfg.F3L = 0; cfg.CF = 1; cfg.AS = 3; cfg.SA = 1; cfg.EW = 0; cfg.GL = 30; cfg.F4E = 0; cfg.PS1 = 4; cfg.FL = 54; cfg.SPW = 0; cfg.P1F = 1; cfg.LAG = 8; cfg.EP = 19; cfg.PS3 = 1; cfg.WOP = 0
cfg.W2 = 1
cfg.K0 = 24; cfg.LNG = 3
cfg.ALIGN = 5
cfg.PC = 0; cfg.PH2 = 0; cfg.PAD = 0
cfg.SIG = 1
SC1 = "sc1"

def poll(a, lab, vdst, voff, srd_, soff, want_ge, cnt="s62", sleep=2):
    a(f"s_mov_b32 {cnt}, 0")
    a(f"{lab}:")
    a(f"buffer_load_dword {vdst}, {voff}, {srd_}, {soff} offen sc1")
    a(f"s_add_u32 {cnt}, {cnt}, 1")
    a(f"s_waitcnt vmcnt(0)")
    a(f"v_cmp_le_u32 vcc, {want_ge}, {vdst}")
    a(f"s_cmp_gt_u32 {cnt}, {cfg.SPIN}")
    a(f"s_cbranch_scc1 {lab}_x")
    a(f"s_nop 1")
    a(f"s_cmp_eq_u64 vcc, -1")
    a(f"s_cbranch_scc1 {lab}_x")
    a(f"s_sleep {sleep}")
    a(f"s_branch {lab}")
    a(f"{lab}_x:")
    a.vmq = []
def lds_wait(a, lab, vaddr, vdst, n, sleep=0, off=0):
    a(f"{lab}:")
    if sleep: a(f"s_sleep {sleep}")
    a(f"ds_read_b32 {vdst}, {vaddr} offset:{off}")
    a("s_waitcnt lgkmcnt(0)")
    a(f"v_cmp_gt_u32 vcc, {n}, {vdst}")
    a("s_nop 3")
    a(f"s_cbranch_vccnz {lab}")
    a.lgq = []

def common(a, st):
    a("s_cmp_ge_u32 s2, 256")
    a("s_cbranch_scc1 L_end")
    st(wait=False, real=True); st(wait=False)
    a("s_load_dwordx8 s[4:11], s[0:1], 0")
    a("s_load_dwordx8 s[12:19], s[0:1], 32")
    a("s_load_dwordx4 s[20:23], s[0:1], 64")
    a("s_getpc_b64 s[56:57]")
    a("L_pc:")
    a("v_lshrrev_b32 v1, 5, v0")
    a("s_lshr_b32 s55, s2, 3")
    a("s_lshl_b32 s55, s55, 4")
    a("v_add_u32 v2, s55, v1")
    a("v_lshlrev_b32 v2, 7, v2")
    a("v_min_u32 v2, L_code_end-L_pc-4, v2")
    a("global_load_dword v255, v2, s[56:57]")
    a("v_lshrrev_b32 v1, 6, v0")
    a("v_and_b32 v0, 63, v0")
    a("v_readfirstlane_b32 s63, v1")
    a("s_and_b32 s48, s2, 7")
    a("s_lshr_b32 s47, s2, 3")
    a("s_lshr_b32 s50, s47, 2")
    a("s_and_b32 s51, s47, 3")
    a("s_and_b32 s44, s63, 3")
    a("s_cmp_lt_u32 s63, 4")
    a("s_cbranch_scc1 L_compute")
def mapping(a):
    if cfg.MAP == 0:
        a("s_and_b32 s46, s48, 3")
        a("s_lshl_b32 s46, s46, 2")
        a("s_add_u32 s46, s46, s51")
        a("s_lshr_b32 s45, s48, 2")
        a("s_lshl_b32 s45, s45, 3")
        a("s_add_u32 s45, s45, s50")
    else:
        a("s_and_b32 s46, s48, 1")
        a("s_lshl_b32 s46, s46, 3")
        a("s_add_u32 s46, s46, s50")
        a("s_lshr_b32 s45, s48, 1")
        a("s_lshl_b32 s45, s45, 2")
        a("s_add_u32 s45, s45, s51")
    a("s_lshl_b32 s49, s48, 2")
    a("s_add_u32 s49, s49, s51")
    a("s_lshl_b32 s3, s51, 1")
    a("s_add_u32 s64, s3, s50")
    a("s_cmp_ge_u32 s64, 7")
    a("s_cselect_b32 s62, 7, 0")
    a("s_sub_u32 s64, s64, s62")
    if cfg.ROT == 2: a("s_mov_b32 s3, s64")
    if cfg.ROT == 0: a("s_mov_b32 s3, 0")
    if cfg.ROT == 3:
        a("s_cmp_ge_u32 s50, 7")
        a("s_cselect_b32 s3, 3, s50")
    a("s_lshl_b32 s52, s45, 2")
    a("s_add_u32 s52, s52, s44")
def tilemap(a):
    if cfg.PAR is None: return []
    return ["s_and_b32 s51, s48, 1", f"s_xor_b32 s51, s51, {1 - cfg.PAR}", "s_lshl_b32 s51, s51, 5", "s_add_u32 s51, s51, s47",
            "s_mul_i32 s64, s51, 37", "s_lshr_b32 s64, s64, 8", "s_mul_i32 s50, s64, 7", "s_sub_u32 s50, s51, s50",
            "s_lshr_b32 s49, s48, 1", "s_lshl_b32 s49, s49, 3", "s_add_u32 s49, s49, s64",
            "s_lshl_b32 s64, s64, 1", "s_add_u32 s64, s64, s50", "s_mul_i32 s55, s64, 37", "s_lshr_b32 s55, s55, 8", "s_mul_i32 s55, s55, 7", "s_sub_u32 s64, s64, s55",
            "s_cmp_ge_u32 s51, 56", "s_cselect_b32 s50, 7, s50"]
def emit(a, op):
    if op[1] == "vm": a.vm(op[0], op[2])
    elif op[1] == "lg": a.lg(op[0], op[2])
    else: a(op[0])
def wait_lg_tags(a, tags):
    n = min([c for c in (a._cnt(a.lgq, tg) for tg in tags) if c is not None], default=None)
    if n is not None:
        n = min(n, 14)
        a(f"s_waitcnt lgkmcnt({n})")
        a.lgq = a.lgq[len(a.lgq)-n:] if n else []
V = lambda s: (s, "v")

def lds_add(a, vaddr, vone, off, tag=None):
    a("s_mov_b64 exec, 1")
    a.lg(f"ds_add_u32 {vaddr}, {vone} offset:{off}", tag)
    a("s_mov_b64 exec, -1")
def arrive(a, vdst, vaddr, vone, p, tag=None):
    a("s_mov_b64 exec, 1")
    a.lg(f"ds_add_rtn_u32 {vdst}, {vaddr}, {vone} offset:{AF+4*p}", tag)
    a("s_mov_b64 exec, -1")
def flag_if_last(a, v, vone, soff):
    a(f"v_xor_b32 {v}, 3, {v}")
    a(f"v_lshlrev_b32 {v}, 25, {v}")
    a.vm(f"buffer_store_dword {vone}, {v}, s[24:27], {soff} offen {SC1}", "fl")
def ws_srd(a):
    if cfg.WSB:
        a(f"s_add_u32 s22, s22, {cfg.WSB << 20}")
        a("s_addc_u32 s23, s23, 0")
    srd(a, 24, 22, WS_BYTES)
def ffn_setup(a, vDF, t):
    a("s_cmp_ge_u32 s44, 2")
    a("s_cselect_b32 s32, s14, s12")
    a("s_cselect_b32 s33, s15, s13")
    a(f"s_mov_b32 s34, {448*1792*2}")
    a("s_mov_b32 s35, 0x00020000")
    a("s_cselect_b32 s51, 128, 0")
    a(f"s_mul_i32 s53, s44, {AR}")
    a("s_add_u32 s53, s53, s51")
    a(f"s_add_u32 s53, s53, {XS-128}")
    a("s_mul_i32 s42, s44, 7168")
    a("s_add_u32 s42, s42, s51")
    a("s_and_b32 s51, s44, 1")
    a(f"s_mul_i32 s54, s51, {32*3584}")
    a("s_mul_i32 s51, s46, 224")
    for j in range(7):
        a(f"v_add_u32 v{t}, {64*j}, v0")
        a(f"v_mul_u32_u24 v{t+1}, 4682, v{t}")
        a(f"v_lshrrev_b32 v{t+1}, 16, v{t+1}")
        a(f"v_mul_u32_u24 v{t+2}, {3584-14*16}, v{t+1}")
        a(f"v_lshl_add_u32 v{t+2}, v{t}, 4, v{t+2}")
        if j % 4: a(f"v_subrev_u32 v{t+2}, {1024*(j%4)}, v{t+2}")
        a(f"v_add_u32 {vr(vDF+j)}, s51, v{t+2}")
def gap(a, n):
    while n > 0:
        a(f"s_nop {min(n, 16) - 1}"); n -= 16
def ffn_dma(a, g, vDF, lo=0, hi=7, sp=None):
    sp = cfg.SPF if sp is None else sp
    if lo:
        base, off = ("s42", 0) if FSLOT[g] == "D" else ("s53", FA[FSLOT[g]])
        assert lo == 4
        a(f"s_add_u32 m0, {base}, {off+4096}")
        a(f"s_add_u32 s43, s3, {g}")
        a("s_cmp_ge_u32 s43, 7")
        a("s_cselect_b32 s62, 7, 0")
        a("s_sub_u32 s43, s43, s62")
        a(f"s_mul_i32 s43, s43, {64*3584}")
        a("s_add_u32 s43, s43, s54")
        for j in range(4, 7):
            a.vm(f"buffer_load_dwordx4 {vr(vDF+j)}, s[32:35], s43 offen offset:{1024*(j%4)} lds", ("F", g))
            if j < 6: gap(a, sp)
        return
    base, off = ("s42", 0) if FSLOT[g] == "D" else ("s53", FA[FSLOT[g]])
    a(f"s_add_u32 m0, {base}, {off}")
    a(f"s_add_u32 s43, s3, {g}")
    a("s_cmp_ge_u32 s43, 7")
    a("s_cselect_b32 s62, 7, 0")
    a("s_sub_u32 s43, s43, s62")
    a(f"s_mul_i32 s43, s43, {64*3584}")
    a("s_add_u32 s43, s43, s54")
    for j in range(hi):
        if j == 4:
            a(f"s_add_u32 m0, {base}, {off+4096}"); a("s_nop 0")
        a.vm(f"buffer_load_dwordx4 {vr(vDF+j)}, s[32:35], s43 offen offset:{1024*(j%4)} lds", ("F", g))
        if j < hi - 1: gap(a, sp)
def xread_addr(a, vX, t):
    a(f"s_mul_i32 s56, s44, {AR}")
    a(f"s_add_u32 s56, s56, {XS}")
    a(f"v_and_b32 v{t}, 31, v0")
    a(f"v_lshlrev_b32 v{t+1}, 7, v{t}")
    a(f"v_add_u32 v{t+1}, s56, v{t+1}")
    a(f"v_bfe_u32 v{t}, v0, 1, 3")
    a(f"v_lshrrev_b32 v{t+2}, 5, v0")
    a(f"v_xor_b32 v{t}, v{t}, v{t+2}")
    a(f"v_lshl_add_u32 {vr(vX)}, v{t}, 4, v{t+1}")
    for sp in range(1, 4): a(f"v_xor_b32 {vr(vX+sp)}, {32*sp}, {vr(vX)}")
def ln_ops(X0, k, LT, vR, nt=2):
    ops = []
    for b in range(0, 4, nt):
        for i in range(nt):
            r = X0 + 4*k + b + i
            ops += [f"v_lshlrev_b32 v{LT+2*i}, 16, v{r}", f"v_and_b32 v{LT+2*i+1}, s61, v{r}"]
        ops += [f"v_fma_f32 v{LT+i}, v{LT+i}, v{vR}, v{vR+1}" for i in range(2*nt)]
        ops += [f"v_cvt_pk_bf16_f32 v{X0+4*k+b+i}, v{LT+2*i}, v{LT+2*i+1}" for i in range(nt)]
    return ops
def sigma(a, dst, src):
    tab = [0, 1, 2, 3, 4, 5, 7, 6, 9, 8, 15, 11, 12, 13, 14, 10]
    if cfg.PAR == 1: tab[12], tab[14] = 14, 12
    assert all(tab[tab[k]] == k for k in range(16))
    lo = sum(tab[k] << (4*k) for k in range(8)); hi = sum(tab[8+k] << (4*k) for k in range(8))
    a(f"s_cmp_ge_u32 {src}, 8")
    a(f"s_cselect_b32 s62, {lo ^ hi:#x}, 0")
    a(f"s_xor_b32 s62, s62, {lo:#x}")
    a(f"s_lshl_b32 {dst}, {src}, 2")
    a(f"s_lshr_b32 {dst}, s62, {dst}")
    a(f"s_and_b32 {dst}, {dst}, 15")

def gen_c(a, st):
    a.vmq = []; a.lgq = []
    vDQ = 216; t = 240; SINK = 221; vL = 15; vDF = 208
    O = 16; S = 80; PP = 192; KV = 128; T = 200
    QL = [248, 224, 232, 240]
    a("L_compute:")
    mapping(a)
    for r in range(4): a(f"v_mov_b32 v{PP+4+r}, 0")
    a(f"v_min_u32 v{t}, 11, v0")
    a(f"v_and_b32 v{t+1}, 3, v{t}")
    a(f"v_lshrrev_b32 v{t}, 2, v{t}")
    a(f"v_lshlrev_b32 v{t}, 15, v{t}")
    a(f"v_lshl_add_u32 v{t}, v{t+1}, 7, v{t}")
    a("s_lshl_b32 s51, s52, 9")
    a(f"s_add_u32 s51, s51, {WS_F}")
    a("s_waitcnt lgkmcnt(0)")
    ws_srd(a)
    assert not (cfg.EW and cfg.PAR is not None)
    a(f"s_xor_b32 s59, s46, {cfg.CLR}")
    a("s_cbranch_scc1 L_noclr")
    a(f"buffer_store_dword v{PP+4}, v{t}, s[24:27], s51 offen {SC1}")
    a("L_noclr:")
    srd(a, 28, 6, 448*1344*2)
    sigma(a, "s51", "s46")
    a("s_mul_i32 s51, s51, 168")
    a("s_and_b32 s51, s51, -16")
    for j in range(3):
        a(f"v_add_u32 v{t}, {64*j}, v0")
        a(f"v_mul_u32_u24 v{t+1}, 5462, v{t}")
        a(f"v_lshrrev_b32 v{t+1}, 16, v{t+1}")
        a(f"v_mul_u32_u24 v{t+2}, 12, v{t+1}")
        a(f"v_sub_u32 v{t+2}, v{t}, v{t+2}")
        a(f"v_min_u32 v{t+2}, 10, v{t+2}")
        a(f"v_mul_u32_u24 v{t+1}, 2688, v{t+1}")
        a(f"v_lshl_add_u32 v{t+1}, v{t+2}, 4, v{t+1}")
        if j: a(f"v_subrev_u32 v{t+1}, {1024*j}, v{t+1}")
        a(f"v_add_u32 {vr(vDQ+j)}, s51, v{t+1}")
    a(f"s_mul_i32 s70, s44, {16*2688}")
    a(f"s_mul_i32 s71, s44, {16*192}")
    a(f"s_mul_i32 s72, s3, {64*2688}")
    a(f"s_mul_i32 s73, s44, {AR}")
    a(f"s_add_u32 s73, s73, {XS}")
    def qkv_dma(g):
        a(f"s_add_u32 m0, s71, {g*12288}" if g < 4 else f"s_add_u32 m0, s73, {QA[g]}")
        a("s_add_u32 s51, s72, s70")
        for j in range(3):
            a.vm(f"buffer_load_dwordx4 {vr(vDQ+j)}, s[28:31], s51 offen offset:{1024*j} lds", ("Q", g))
        if g < 6:
            a(f"s_add_u32 s72, s72, {64*2688}"); a(f"s_cmp_ge_u32 s72, {448*2688}"); a("s_cselect_b32 s72, 0, s72")
    ffn_setup(a, vDF, t)
    srd(a, 12, 20, 256)
    srd(a, 36, 16, 1792*448*2)
    srd(a, 16, 8, 448*448*2)
    a("s_mov_b32 s40, 0"); a("s_mov_b32 s41, -1")
    for s_ in (f"v_lshlrev_b32 {vr(vL)}, 4, v0", "v_lshlrev_b32 v13, 25, v0", "v_mov_b32 v14, 1", f"v_mov_b32 v12, {CNT}",
               "v_and_b32 v222, 15, v0", "v_lshlrev_b32 v222, 4, v222", "s_lshl_b32 s74, s45, 4"): a(s_)
    for r in range(4): a(f"v_mov_b32 v{KV+48+12+r}, 0")
    for r in range(64): a(f"v_mov_b32 v{O+r}, 0")
    def att_setup():
        a("s_setprio 0")
        a("s_lshl_b32 s65, s48, 1")
        a("s_and_b32 s51, s47, 1")
        a("s_add_u32 s65, s65, s51")
        a("s_lshr_b32 s66, s47, 1")
        a(f"v_bfe_u32 v{t+2}, v0, 2, 2")
        a(f"v_bfe_u32 v{t+4}, v0, 4, 1")
        for s_ in ("s_lshl_b32 s51, s66, 2", "s_add_u32 s51, s51, s44", f"s_mul_i32 s67, s51, {144*1024}", "s_lshl_b32 s51, s65, 11", "s_add_u32 s67, s67, s51",
                   f"s_add_u32 s67, s67, {WS_A+112*1024}",
                   "s_lshl_b32 s51, s44, 2",
                   "s_lshl_b32 s60, s66, 4", "s_add_u32 s60, s60, s65", "s_lshl_b32 s60, s60, 7", f"s_add_u32 s60, s60, {WS_F+65536}",
                   "s_lshl_b32 s51, s65, 18", "s_lshl_b32 s58, s44, 16", "s_add_u32 s51, s51, s58", f"s_add_u32 s51, s51, {WS_KV}",
                   "s_add_u32 s4, s22, s51", "s_addc_u32 s5, s23, 0", "s_mov_b32 s6, 0x10000", "s_mov_b32 s7, 0x00020000",
                   "s_lshl_b32 s69, s66, 12"): a(s_)
        for k, (add, dst) in enumerate(((0, "s56"), (16, "s57"), (32, "s58"))):
            a(f"s_add_u32 s51, s65, {add}")
            a("s_mul_i32 s51, s51, 43")
            a("s_lshr_b32 s51, s51, 7")
            sigma(a, "s51", "s51")
            a(f"s_lshl_b32 {dst}, s51, 7")
        a("s_lshl_b32 s51, s66, 11")
        a("s_add_u32 s56, s56, s51")
        a("s_lshl_b32 s51, s44, 13")
        a("s_add_u32 s57, s57, s51")
        a("s_add_u32 s58, s58, s51")
        a(f"v_lshlrev_b32 v1, 11, v{t+2}")
        a(f"v_add_u32 v{t+6}, s58, v1")
        a(f"v_add_u32 v1, s57, v1")
        a(f"v_cmp_eq_u32 vcc, 1, v{t+4}")
        a(f"v_mov_b32 v{t+7}, s56")
        a(f"v_and_b32 v{t+3}, 3, v0")
        a(f"v_cndmask_b32 v1, v1, v{t+6}, vcc")
        a(f"v_cndmask_b32 v1, v1, v{t+7}, s[40:41]")
        a(f"s_mov_b32 s68, {WS_F}")
        for j in range(4):
            for s_ in (f"s_add_u32 s51, s44, {j}", "s_and_b32 s51, s51, 3", f"s_mul_i32 s55, s51, 12288", f"s_add_u32 s55, s55, {CB1}", f"v_add_u32 v{T+4+j}, s55, {vr(vL)}",
                       "s_lshl_b32 s55, s65, 4", "s_add_u32 s55, s55, s66", "s_lshl_b32 s55, s55, 2", "s_add_u32 s55, s55, s51", f"s_lshl_b32 s{8+j}, s55, 11"): a(s_)
        a("s_mov_b32 s55, 0")
        if cfg.EW:
            a("s_cmp_lt_u32 s50, 7")
            a("s_cselect_b32 s38, s38, 0")
            for s_ in ("v_lshrrev_b32 v3, 3, v0", "v_bfe_u32 v4, v0, 4, 1", "v_lshlrev_b32 v4, 2, v4", "v_and_b32 v7, 7, v0", "v_xor_b32 v7, v7, v4",
                       "v_mul_u32_u24 v3, 896, v3", "v_lshl_add_u32 v3, v7, 4, v3", f"v_add_u32 v4, {8*896-1024}, v3",
                       f"s_mul_i32 s56, s44, {448*896}", "s_lshl_b32 s57, s50, 7", "s_add_u32 s56, s56, s57", f"s_mul_i32 s57, s64, {64*896}", "s_add_u32 s57, s57, s56",
                       "s_add_u32 s51, s64, 1", "s_cmp_ge_u32 s51, 7", "s_cselect_b32 s51, 0, s51", f"s_mul_i32 s58, s51, {64*896}", "s_add_u32 s58, s58, s56",
                       f"s_mul_i32 s56, s44, {RNG}"): a(s_)
        a(f"s_setprio {cfg.PF}")
    def mtouch(pos):
        if pos == cfg.MQ:
            r0 = cfg.MQR; by = (448 - r0) * 2688 // 1024
            assert by % 4 == 0
            for s_ in (f"v_min_u32 v8, {by // 128}, v0", "v_lshlrev_b32 v8, 7, v8", "s_lshl_b32 s51, s2, 2", "s_add_u32 s51, s51, s44",
                       f"s_mul_i32 s51, s51, {by}", f"s_add_u32 s51, s51, {r0*2688}"): a(s_)
            a.vm(f"buffer_load_dword v{SINK}, v8, s[28:31], s51 offen", "pf")
        if pos == cfg.LT:
            for s_ in ("v_lshrrev_b32 v5, 3, v0", "v_min_u32 v5, 6, v5", "v_mul_u32_u24 v5, 3584, v5", "v_and_b32 v6, 7, v0", "v_min_u32 v6, 6, v6", "v_lshl_add_u32 v5, v6, 7, v5",
                       "s_lshl_b32 s51, s47, 1", "s_and_b32 s62, s44, 1", "s_add_u32 s51, s51, s62", f"s_mul_i32 s51, s51, {7*3584}",
                       f"s_and_b32 s62, s48, {3 >> cfg.MAP}", f"s_mul_i32 s62, s62, {896 << cfg.MAP}", "s_add_u32 s51, s51, s62"): a(s_)
            for q in range(1 + cfg.MAP): a.vm(f"buffer_load_dword v{SINK}, v5, s[32:35], s51 offen offset:{896*q}", "pf")
        if pos == cfg.MT[0]:
            r0 = cfg.MR
            nl = (448 - r0) * 28 // 512 + 1
            for s_ in (f"v_min_u32 v5, {nl-1}, v0", "v_lshlrev_b32 v5, 7, v5", "s_lshl_b32 s51, s2, 1", "s_and_b32 s62, s44, 1", "s_add_u32 s51, s51, s62",
                       f"s_mul_i32 s51, s51, {(448 - r0) * 7}", f"s_add_u32 s51, s51, {r0*3584}"): a(s_)
            a.vm(f"buffer_load_dword v{SINK}, v5, s[32:35], s51 offen", "pf")
        if pos == cfg.MT[1]:
            for s_ in ("v_min_u32 v6, 12, v0", "v_lshlrev_b32 v6, 7, v6", "s_lshl_b32 s51, s2, 2", "s_add_u32 s51, s51, s44", "s_mul_i32 s62, s51, 1568"): a(s_)
            a.vm(f"buffer_load_dword v{SINK}, v6, s[36:39], s62 offen", "pf")
            for s_ in ("v_min_u32 v7, 3, v0", "v_lshlrev_b32 v7, 7, v7", "s_mul_i32 s62, s51, 392"): a(s_)
            a.vm(f"buffer_load_dword v{SINK}, v7, s[16:19], s62 offen", "pf")
    def landed(tag, off):
        a.wait(vm=tag); lds_add(a, "v12", "v14", off)
    def free(lab, off): lds_wait(a, lab, "v12", "v2", 4, sleep=1, off=off)
    mtouch(-1)
    def gostore(pos):
        if pos != cfg.GP: return
        a("s_or_b32 s59, s59, s44")
        a("s_cbranch_scc1 L_nogo")
        free("L_clr", GQ0)
        a(f"buffer_store_dword v14, v13, s[12:15], s74 offen {SC1}")
        a("L_nogo:")
    st(name="setup")
    a("s_barrier")
    a(f"s_setprio {cfg.PF}")
    for g in range(cfg.Q0): qkv_dma(g)
    mtouch(-2)
    a("s_barrier")
    st(name="bx2")
    pend = []; tries = [0]
    def gocheck():
        a("v_cmp_gt_u32 vcc, 1, v223")
        a("s_nop 3")
        a("s_cbranch_vccnz L_go"); a("L_go_x:")
    def announce(p):
        tag, off, need = p
        a.wait(vm=tag)
        if tag == "go": gocheck()
        else: lds_add(a, "v12", "v14", off)
        st(name=f"_l{tag[0]}{tag[1]}")
    def tryflag(block):
        k = tries[0]; tries[0] += 1
        a("s_cmp_lg_u32 s75, 0")
        a(f"s_cbranch_scc1 L_nofl{k}")
        if block: lds_wait(a, "L_af", "v12", "v2", 4, off=AF)
        else:
            a(f"ds_read_b32 v2, v12 offset:{AF}")
            a("s_waitcnt lgkmcnt(0)"); a.lgq = []
            a("v_cmp_gt_u32 vcc, 4, v2")
            a("s_nop 3")
            a(f"s_cbranch_vccnz L_nofl{k}")
        a(f"buffer_store_dword v14, v13, s[24:27], s76 offen {SC1}")
        a("s_mov_b32 s75, 1")
        if asmlib.STAMP and k: st.n -= cf;
        st(name="cfl0")
        if asmlib.STAMP and k and cf: st.names.pop()
        a(f"L_nofl{k}:")
    cf = 1 if (asmlib.STAMP_SEL is None or "cfl0" in asmlib.STAMP_SEL) else 0
    base_vm = a.vm
    trying = [False]
    def vm_hook(txt, tag=None):
        base_vm(txt, tag)
        while pend and (a._cnt(a.vmq, pend[0][0]) or 0) >= (cfg.W0 if pend[0][0] == ("Q", 1) else cfg.W): announce(pend.pop(0))
        if trying[0] and not any(p[0] == "go" for p in pend):
            trying[0] += 1
            if trying[0] % cfg.TI == 0: tryflag(False)
    a.vm = vm_hook
    def until(lab, off, at):
        while pend and pend[0][2] < at + cfg.MG: announce(pend.pop(0))
        free(lab, off)
    for s_ in ("s_lshl_b32 s76, s45, 4", "s_add_u32 s76, s76, s46", "s_lshl_b32 s76, s76, 7", f"s_add_u32 s76, s76, {WS_F}", "s_mov_b32 s75, s44"): a(s_)
    pend.append((("Q", 1), GQ0, 0))
    mtouch(-3)
    for g in range(cfg.Q0, 4): qkv_dma(g)
    mtouch(-4)
    pend.append((("Q", 3), GQ1, 14))
    for g, off in ((4, GQ2), (5, GQ3), (6, GQ4)):
        qkv_dma(g); pend.append((("Q", g), off, 12*g - 10))
    ffn_dma(a, 0, vDF); pend.append((("F", 0), GATE(0), 74))
    mtouch(0)
    gostore(0)
    ffn_dma(a, 1, vDF); pend.append((("F", 1), GATE(1), 84 + 12))
    mtouch(1)
    gostore(1)
    until("L_cq2", CQ2, 33)
    ffn_dma(a, 2, vDF); pend.append((("F", 2), GATE(2), 84 + 44))
    mtouch(2)
    until("L_ce", CE, 57)
    st(name="ce")
    assert cfg.CF and cfg.G23 and cfg.K0 == 24
    def goload(pos):
        if pos == cfg.GOP:
            a.vm(f"buffer_load_dword v223, v222, s[12:15], 0 offen {SC1}", "go"); pend.append(("go", None, 84 + 72))
    goload(0)
    ffn_dma(a, 3, vDF); pend.append((("F", 3), GATE(3), 84 + 72))
    mtouch(3)
    st(name="_i3")
    if cfg.AS == 3:
        while pend and pend[0][2] < 84 + 31: announce(pend.pop(0))
        att_setup()
    until("L_cons5", CONS(0), 84 + 31)
    st(name="_c5")
    goload(1)
    trying[0] = 1
    ffn_dma(a, 4, vDF); pend.append((("F", 4), GATE(4), 84 + 100))
    ffn_dma(a, 5, vDF); pend.append((("F", 5), GATE(5), 84 + 128))
    mtouch(5)
    until("L_cons6", CONS(1), 84 + 55)
    assert not any(p[0] == "go" for p in pend)
    trying[0] = False
    tryflag(True)
    st(name="_c6")
    ffn_dma(a, 6, vDF); pend.append((("F", 6), GATE(6), 84 + 156))
    mtouch(6)
    if cfg.AS == 1: att_setup()
    while pend: announce(pend.pop(0))
    a.vm = base_vm
    if cfg.EW:
        free("L_consw", CONS(2))
        for i in range(5):
            a(f"s_add_u32 m0, s56, {CB1 + 2048*i}")
            a(f"s_add_u32 s51, s{57 + i//4}, {(i%4)*16*896}")
            a.vm(f"buffer_load_dwordx4 v3, s[36:39], s51 offen lds", "wx")
            a.vm(f"buffer_load_dwordx4 v4, s[36:39], s51 offen offset:1024 lds", "wx")
    st(name="_cf6")
    def kvload(slot, j): return f"buffer_load_dwordx4 {vr(KV+16*slot+4*j,4)}, {vr(vL)}, s[4:7], s69 offen offset:{1024*j} {SC1}"
    kvadv = ["s_add_u32 s69, s69, 4096", "s_and_b32 s69, s69, 0xffff"]
    poll(a, "L_p1", "v2", "v1", "s[24:27]", "s68", 1, sleep=cfg.PS1)
    st(name="poll1")
    for j in (1, 2, 3, 0):
        for ks in range(2): a.vm(f"buffer_load_dwordx4 {vr(QL[j]+4*ks,4)}, {vr(vL)}, s[24:27], s{8+j} offen offset:{1024*ks} {SC1}", "q")
    for sl in range(3):
        for j in range(4): a.vm(kvload(sl, j), ("kv", sl))
        for x in kvadv: a(x)
    mtouch(7)
    a(f"s_setprio {cfg.PC}")
    QO = [1, 2, 3, 0]
    def qk(n, ks):
        kt, qt = (n//4) % 4, n % 4
        s = vr(S+16*(n&1), 16)
        return f"v_mfma_f32_32x32x16_bf16 {s}, {vr(KV+16*kt+4*ks,4)}, {vr(QL[QO[qt]]+4*ks,4)}, {'0' if ks==0 else s}"
    def pv(n, ks):
        kt, qt = (n//4) % 4, n % 4
        o = vr(O+16*QO[qt], 16)
        return f"v_mfma_f32_32x32x16_bf16 {o}, {vr(KV+16*kt+8+4*ks,4)}, {vr(PP+4*ks,4)}, {o}"
    a.wait(vm=("kv", 0))
    lds_add(a, "v12", "v14", HA-CNT)
    st(name="att0")
    a(qk(0, 0)); a(qk(0, 1))
    a("s_nop 7"); a("s_nop 3")
    a.raw(".p2align 3")
    a("L_att:")
    def softmax(n, m, odd):
        sb = S + 16*(n & 1)
        for j in range(4):
            a(f"v_exp_f32{'_e64' if (odd and j == 1) else ''} v{sb+4*m+j}, v{sb+4*m+j}")
        for j in range(2): a(f"v_cvt_pk_bf16_f32 v{PP+2*m+j}, v{sb+4*m+2*j}, v{sb+4*m+2*j+1}")
    for n in range(16):
        kt, qt = n//4, n % 4
        ms = [qk(n+1, 0), qk(n+1, 1), pv(n-1, 1), pv(n, 0)]
        for m in range(4):
            a(ms[m])
            odd = False
            if n == 12 and m == 0:
                a("s_cbranch_scc1 L_last"); a("s_nop 0")
            if m == 0: a(kvload((kt+3) % 4, qt))
            if qt == 2 and m == 2 and kt == 0:
                a("s_add_u32 s55, s55, 1"); odd = True
            if n == 0 and m == 1 and asmlib.STAMP and cfg.ITS:
                a("s_mov_b64 s[96:97], s[94:95]"); a("s_mov_b64 s[94:95], s[92:93]"); a("s_mov_b64 s[92:93], s[90:91]"); a("s_memtime s[90:91]")
            if qt == 2 and m == 3: a("s_waitcnt vmcnt(9)"); odd = True
            if qt == 0 and m == 2: a("s_waitcnt vmcnt(9)"); odd = True
            if qt == 3 and m == 1: a(kvadv[0])
            if qt == 3 and m == 2: a(kvadv[1])
            if qt == 3 and m == 3 and kt == 0:
                a("s_cmp_eq_u32 s55, 4"); a("s_cselect_b32 s6, 0, s6")
            if qt == 3 and m == 3 and kt == 2: a("s_cmp_eq_u32 s55, 4"); odd = True
            softmax(n, m, odd)
    a("s_branch L_att")
    a.raw(".p2align 3")
    a("L_last:")
    def cwr(j, q): a(f"ds_write_b128 v{T+4+j}, {vr(O+16*j+4*q,4)} offset:{(j-1)*4096+q*1024}")
    for n in range(12, 16):
        ms = [qk(n+1, 0), qk(n+1, 1), pv(n-1, 1), pv(n, 0)] if n < 15 else [pv(14, 1), None, None, pv(15, 0)]
        for m in range(4):
            if n == 15 and m == 0: cwr(2, 0); cwr(2, 1)
            if ms[m] and not (n == 12 and m == 0): a(ms[m])
            odd = False
            if n == 12 and m == 0: a(f"ds_read_b32 v{T}, v12 offset:{HX}")
            if n == 12 and m == 2: a("s_waitcnt vmcnt(8) lgkmcnt(0)"); a(f"v_cmp_gt_u32 vcc, 4, v{T}")
            if n == 13 and m == 0:
                a("s_cbranch_vccnz L_hd"); a("L_hd_x:"); odd = True
            if n == 13 and m == 1: a(f"s_mov_b32 s42, {f2u(2.0**-64):#x}")
            if n == 13 and m == 2: a(f"s_mov_b32 s43, {f2u(2.0**64):#x}")
            if n == 14: cwr(1, m)
            if n == 15 and m == 1: cwr(2, 2); cwr(2, 3)
            if n == 15 and m >= 2: cwr(3, 2*m-4); cwr(3, 2*m-3)
            softmax(n, m, odd)
    a("s_setprio 2")
    a("s_waitcnt lgkmcnt(0)")
    a(pv(15, 1))
    st(name="attend")
    lds_add(a, "v12", "v14", CW)
    lds_wait(a, "L_cw", "v12", f"v{T}", 4, off=CW)
    st(name="_Tc")
    for q in (3, 0, 1, 2):
        for j in range(3):
            a.lg(f"ds_read_b128 {vr(O+16+16*j+4*q,4)}, v{T+4} offset:{j*4096+q*1024}", q)
    def add3(q):
        a.wait(lg=q)
        for r in range(4*q, 4*q+4): a(f"v_add_f32 v{O+r}, v{O+r}, v{O+16+r}")
        for r in range(4*q, 4*q+4): a(f"v_add_f32 v{O+32+r}, v{O+32+r}, v{O+48+r}")
        for r in range(4*q, 4*q+4): a(f"v_add_f32 v{O+r}, v{O+r}, v{O+32+r}")
    add3(3)
    a(f"v_mov_b32 v{T}, v{O+12}")
    a(f"v_mov_b32 v{T+1}, v{O+12}")
    add3(0)
    a(f"v_permlane32_swap_b32 v{T}, v{T+1}")
    add3(1)
    a(f"v_cmp_le_f32 vcc, s42, v{T+1}")
    a(f"v_cmp_ge_f32 s[56:57], s43, v{T+1}")
    a(f"v_rcp_f32 v{T}, v{T+1}")
    add3(2)
    a("s_and_b64 vcc, vcc, s[56:57]")
    a("s_cmp_eq_u64 vcc, -1")
    a("s_cbranch_scc0 L_slow")
    a("L_fin:")
    for r in range(8): a(f"v_mul_f32 v{O+r}, v{O+r}, v{T}")
    for r in range(4): a(f"v_cvt_pk_bf16_f32 v{PP+r}, v{O+2*r}, v{O+2*r+1}")
    a.vm(f"buffer_store_dwordx4 {vr(PP,4)}, {vr(vL)}, s[24:27], s67 offen {SC1}", "st")
    for r in range(8, 16): a(f"v_mul_f32 v{O+r}, v{O+r}, v{T}")
    for r in range(4, 8): a(f"v_cvt_pk_bf16_f32 v{PP+r}, v{O+2*r}, v{O+2*r+1}")
    a(f"v_cndmask_b32 v{PP+6}, v{PP+6}, 0, s[40:41]")
    a(f"v_cndmask_b32 v{PP+7}, v{PP+7}, 0, s[40:41]")
    a.vm(f"buffer_store_dwordx4 {vr(PP+4,4)}, {vr(vL)}, s[24:27], s67 offen offset:1024 {SC1}", "st")
    st(name="_prefl2")
    a("v_mov_b32 v13, 0")
    a.wait(vm="all")
    arrive(a, "v13", "v12", "v14", 2)
    a.wait(lg="all")
    flag_if_last(a, "v13", "v14", "s60")
    st(name="fl2")
    if asmlib.STAMP and cfg.ITS:
        assert st.n <= 10
        st.n = 14; st.names += ["it"]*4
    a("L_c_end:")
    st.flush(63, 8)
    a("L_end:")
    a("s_endpgm")
    a("L_go:")
    poll(a, "L_p0", "v223", "v222", "s[12:15]", "0", 1)
    a("s_branch L_go_x")
    lds_wait(a, "L_hd", "v12", f"v{T}", 4, off=HX)
    a("s_branch L_hd_x")
    S1 = S + 16
    a("L_slow:")
    a("s_lshl_b32 s56, s65, 18")
    a(f"s_add_u32 s56, s56, {WS_KV}")
    a("s_mov_b32 s57, s56")
    a("s_mov_b32 s55, 64")
    a(f"v_mov_b32 v{T+2}, 0xff800000")
    a("s_waitcnt vmcnt(0)")
    a("L_slow1:")
    for j in range(2): a(f"buffer_load_dwordx4 {vr(KV+4*j,4)}, {vr(vL)}, s[24:27], s57 offen offset:{1024*j} {SC1}")
    a("s_waitcnt vmcnt(0)")
    a(qk(3, 0)); a(qk(3, 1))
    a("s_nop 7"); a("s_nop 7")
    for r in range(8): a(f"v_max3_f32 v{T+2}, v{S1+2*r}, v{S1+2*r+1}, v{T+2}")
    a("s_add_u32 s57, s57, 4096")
    a("s_sub_u32 s55, s55, 1"); a("s_cmp_lg_u32 s55, 0")
    a("s_cbranch_scc1 L_slow1")
    a(f"v_mov_b32 v{T+3}, v{T+2}")
    a("s_nop 1")
    a(f"v_permlane32_swap_b32 v{T+3}, v{T+2}")
    a("s_nop 1")
    a(f"v_max_f32 v{T+2}, v{T+2}, v{T+3}")
    for r in range(16): a(f"v_mov_b32 v{O+r}, 0")
    a("s_mov_b32 s55, 64")
    a("L_slow2:")
    for j in range(4): a(f"buffer_load_dwordx4 {vr(KV+4*j,4)}, {vr(vL)}, s[24:27], s56 offen offset:{1024*j} {SC1}")
    a("s_waitcnt vmcnt(0)")
    a(qk(3, 0)); a(qk(3, 1))
    a("s_nop 7"); a("s_nop 7")
    for r in range(16): a(f"v_sub_f32 v{S1+r}, v{S1+r}, v{T+2}")
    for r in range(16): a(f"v_exp_f32 v{S1+r}, v{S1+r}")
    a("s_nop 0")
    for r in range(8): a(f"v_cvt_pk_bf16_f32 v{PP+r}, v{S1+2*r}, v{S1+2*r+1}")
    a("s_nop 1")
    a(pv(3, 0)); a(pv(3, 1))
    a("s_add_u32 s56, s56, 4096")
    a("s_sub_u32 s55, s55, 1"); a("s_cmp_lg_u32 s55, 0")
    a("s_cbranch_scc1 L_slow2")
    a("s_nop 7"); a("s_nop 7")
    a(f"v_mov_b32 v{T}, v{O+12}")
    a(f"v_mov_b32 v{T+1}, v{O+12}")
    a("s_nop 1")
    a(f"v_permlane32_swap_b32 v{T}, v{T+1}")
    a("s_nop 1")
    a(f"v_rcp_f32 v{T}, v{T+1}")
    a("s_nop 0")
    a("s_branch L_fin")
    a("L_code_end:")

def gen_h(a, st):
    X0 = 16; ACCF = 128; AQ = 192
    AS = 144; vR = 148; LT = 152; vXD = 160; vX = 164; vTQ = 168; t = 172
    vTF = 1; vC = 3; vOne = 4; vG = 5; vL = 7
    a("s_setprio 1")
    mapping(a)
    a(f"v_lshrrev_b32 v{t+2}, 3, v0")
    a("s_lshl_b32 s51, s52, 5")
    a(f"v_add_u32 v{t+2}, s51, v{t+2}")
    a(f"v_mul_u32_u24 v{t+2}, 896, v{t+2}")
    a(f"v_lshrrev_b32 v{t+3}, 4, v0")
    a(f"v_and_b32 v{t+4}, 7, v0")
    a(f"v_xor_b32 v{t+3}, v{t+3}, v{t+4}")
    a(f"v_lshl_add_u32 {vr(vXD)}, v{t+3}, 4, v{t+2}")
    a(f"v_xor_b32 v{t+3}, 64, {vr(vXD)}")
    a(f"v_add_u32 {vr(vXD+1)}, 6144, v{t+3}")
    a(f"v_add_u32 {vr(vXD+2)}, {2*6144}, {vr(vXD)}")
    a(f"v_add_u32 {vr(vXD+3)}, {3*6144}, v{t+3}")
    if cfg.XT < 9:
        assert cfg.MAP == 1 and cfg.ROT == 0
        for s_ in (f"v_bfe_u32 v{t+5}, v0, 2, 2", f"v_mul_u32_u24 v{t+5}, 896, v{t+5}", f"v_and_b32 v{t+6}, 3, v0", f"v_lshl_add_u32 v{t+5}, v{t+6}, 7, v{t+5}",
                   "s_lshl_b32 s56, s52, 3", "s_add_u32 s56, s56, s50", f"s_mul_i32 s56, s56, {4*896}", "s_add_u32 s56, s56, 384"): a(s_)
    a(f"s_mul_i32 s53, s44, {AR}")
    a(f"s_add_u32 s53, s53, {XS}")
    a("s_lshl_b32 s55, s3, 7")
    a(f"s_mov_b32 s30, {2048*448*2}")
    a("s_mov_b32 s31, 0x00020000")
    a("s_mov_b32 m0, s53")
    a("s_waitcnt lgkmcnt(0)")
    a("s_mov_b32 s28, s4"); a("s_mov_b32 s29, s5")
    st(name="_h0")
    def xload(cb):
        for rg in range(4):
            a.vm(f"buffer_load_dwordx4 {vr(vXD+rg)}, s[28:31], s55 offen offset:{rg*1024} lds", ("x", cb))
        if cb < 6:
            a(f"s_add_u32 m0, s53, {(cb+1)*4096}")
            a("s_add_u32 s55, s55, 128"); a("s_cmp_ge_u32 s55, 896"); a("s_cselect_b32 s55, 0, s55")
    for cb in range(cfg.XA - 1):
        xload(cb)
        if cb == cfg.XT:
            a.vm(f"buffer_load_dword v255, v{t+5}, s[28:31], s56 offen", "pf")
    ws_srd(a)
    xread_addr(a, vX, t)
    for i in range(4): a(f"v_mov_b32 v{AS+i}, 0")
    a(f"v_mov_b32 v{t+10}, 0")
    a(f"v_mov_b32 v{t+8}, 0x3f803f80")
    a("s_mov_b32 s61, 0xffff0000")
    a(f"v_mov_b32 {vr(vOne)}, 1")
    a(f"v_mov_b32 {vr(vC)}, {CNT}")
    a(f"v_lshlrev_b32 {vr(vL)}, 4, v0")
    a(f"v_and_b32 v{t+9}, 31, v0")
    a(f"v_cmp_eq_u32 vcc, 28, v{t+9}")
    a(f"v_lshl_add_u32 v{t+9}, v{t+9}, 2, {vr(vC)}")
    sigma(a, "s60", "s46")
    a(f"v_cndmask_b32 v6, 0, v{t+8}, vcc")
    a(f"v_lshrrev_b32 v{t+5}, 5, v0")
    a(f"v_bfe_u32 v{t+2}, v0, 2, 2")
    a(f"v_lshl_add_u32 v{t+2}, v{t+5}, 3, v{t+2}")
    a(f"v_and_b32 v{t+3}, 3, v0")
    a(f"v_bfe_u32 v{t+4}, v0, 4, 1")
    a(f"v_mul_u32_u24 v{t+5}, 224, v{t+2}")
    a(f"v_lshl_add_u32 v{t+5}, v{t+3}, 3, v{t+5}")
    a(f"v_mul_u32_u24 v{t+6}, {OU}, v{t+4}")
    a(f"v_add_u32 {vr(vTF)}, v{t+5}, v{t+6}")
    a(f"v_mul_u32_u24 v{t+6}, {2*AR+128}, v{t+4}")
    a(f"v_add_u32 v{t+5}, {XS-128}, v{t+5}")
    a(f"v_add_u32 {vr(vTF+1)}, v{t+5}, v{t+6}")
    a(f"v_mul_u32_u24 v{t+5}, 192, v{t+2}")
    a(f"v_lshl_add_u32 v{t+5}, v{t+3}, 3, v{t+5}")
    a(f"v_lshl_add_u32 v{t+5}, v{t+4}, 5, v{t+5}")
    a("s_and_b32 s51, s60, 1")
    a("s_lshl_b32 s51, s51, 3")
    a(f"v_add_u32 {vr(vTQ)}, s51, v{t+5}")
    a(f"v_add_u32 {vr(vTQ+1)}, {XS}, {vr(vTQ)}")
    a(f"v_add_u32 {vr(vTQ+2)}, {XS+2*AR}, {vr(vTQ)}")
    a("s_mul_i32 s54, s60, 3")
    for i in range(3):
        a(f"s_add_u32 s51, s54, {i}")
        a(f"s_lshr_b32 s62, s51, 4")
        a("s_and_b32 s51, s51, 15")
        a("s_lshl_b32 s51, s51, 6")
        a("s_add_u32 s51, s51, s52")
        a("s_lshl_b32 s56, s51, 11")
        a("s_lshl_b32 s57, s51, 12")
        a(f"s_lshl_b32 s58, s62, 11")
        a("s_add_u32 s57, s57, s58")
        a(f"s_add_u32 s57, s57, {WS_KV-2048}")
        a(f"s_cmp_eq_u32 s62, 0")
        a(f"s_cselect_b32 s{32+i}, s56, s57")
        a(f"s_cselect_b32 s{35+i}, {f2u(QSCALE):#x}, 1.0")
    a("s_mov_b32 s42, 0"); a("s_mov_b32 s43, -1")
    a("s_mov_b32 s38, 0x0fffffff"); a("s_mov_b32 s39, 0x0fffffff")
    st(name="_hsetup")
    xload(cfg.XA - 1)
    def dots(cb):
        for r in range(X0+16*cb, X0+16*cb+16):
            a(f"v_dot2c_f32_bf16 v{AS+(r&1)}, v{r}, v{t+8}")
            a(f"v_dot2c_f32_bf16 v{AS+2+(r&1)}, v{r}, v{r}")
    for cb in range(7):
        a.wait(vm=("x", cb))
        st(name=("" if cb == 6 else "_") + f"x{cb}")
        for sp in range(4): a.lg(f"ds_read_b128 {vr(X0+16*cb+4*sp,4)}, {vr(vX+sp)} offset:{cb*4096}", ("x", cb))
        if cb + cfg.XA < 7: xload(cb + cfg.XA)
        if cb == cfg.BX: a("s_barrier")
        if cb == 6:
            a("s_cmp_lg_u32 s44, 1")
            a("s_cbranch_scc1 L_nocnt")
            a(f"ds_write_b32 v{t+9}, v{t+10}")
            a("L_nocnt:")
        if cb:
            a.wait(lg=("x", cb-1)); dots(cb-1)
    a.wait(lg="all")
    a("s_barrier")
    dots(6)
    a(f"s_mov_b32 s51, {f2u(1/448):#x}")
    a(f"s_mov_b32 s55, {f2u(1e-5):#x}")
    a("s_nop 0")
    a(f"v_add_f32 v{AS}, v{AS}, v{AS+1}")
    a(f"v_add_f32 v{AS+2}, v{AS+2}, v{AS+3}")
    a(f"v_mov_b32 v{AS+1}, v{AS}")
    a(f"v_mov_b32 v{AS+3}, v{AS+2}")
    a("s_nop 1")
    a(f"v_permlane32_swap_b32 v{AS+1}, v{AS}")
    a(f"v_permlane32_swap_b32 v{AS+3}, v{AS+2}")
    a("s_nop 1")
    a(f"v_add_f32 v{AS}, v{AS}, v{AS+1}")
    a(f"v_add_f32 v{AS+2}, v{AS+2}, v{AS+3}")
    a(f"v_mul_f32 v{AS}, s51, v{AS}")
    a(f"v_mul_f32 v{AS+2}, s51, v{AS+2}")
    a(f"v_fma_f32 v{AS+2}, -v{AS}, v{AS}, v{AS+2}")
    a(f"v_max_f32 v{AS+2}, 0, v{AS+2}")
    a(f"v_add_f32 v{AS+2}, s55, v{AS+2}")
    a(f"v_rsq_f32 v{vR}, v{AS+2}")
    a("s_nop 0")
    a(f"v_mul_f32 v{vR+1}, -v{AS}, v{vR}")
    st(name="_t0")
    def ln_pk(k):
        for i in range(4):
            r = X0 + 4*k + i
            a(f"v_lshlrev_b32 v{LT+2*i}, 16, v{r}"); a(f"v_and_b32 v{LT+2*i+1}, s61, v{r}")
        for i in range(4): a(f"v_pk_fma_f32 {vr(LT+2*i,2)}, {vr(LT+2*i,2)}, {vr(vR,2)}, {vr(vR,2)} op_sel:[0,0,1] op_sel_hi:[1,0,1]")
        for i in range(4): a(f"v_cvt_pk_bf16_f32 v{X0+4*k+i}, v{LT+2*i}, v{LT+2*i+1}")
    K0 = cfg.K0; KT = 28 - K0; NA = 84
    KQ = cfg.KQ
    order = [("q", k, tl) for k in range(KQ) for tl in range(3)] + [("q", k, tl) for tl in range(3) for k in range(KQ, 28)]
    nxt = [0]*7; AV = [0, 0, 0, 0] + list(cfg.AV)
    for ff in range(7*K0):
        tl = min((t_ for t_ in range(7) if ff >= AV[t_] and nxt[t_] < K0), key=lambda t_: (nxt[t_], t_))
        order.append(("f", nxt[tl], tl)); nxt[tl] += 1
    order += [("f", k, tl) for tl in range(7) for k in range(K0, 28)]
    lastq = {tl: max(f for f in range(NA) if order[f][2] == tl) for tl in range(3)}
    chunk = lambda f: order[f][1] // 4 + (7 if order[f][0] == "f" else 0)
    first = {c: min(f for f in range(len(order)) if chunk(f) == c) for c in range(14)}
    last = {c: max(f for f in range(len(order)) if chunk(f) == c) for c in range(14)}
    xlast = {max(f for f in range(len(order)) if order[f][1] == k): k for k in range(6)}
    LE = min(79, lastq[0] - 2 - (1 if KQ < 26 else 0))
    JOIN = last[7] + 1
    NM = len(order); SC = NA + 7*K0
    HP = 52
    ACC = 16; HR = 80; W = 112; WREG = 128
    vD = 12; vD2 = 2; vT0 = 8; vT1 = 9; vP = 10; vL1 = 11; u = 44
    SK = [70, 71, 72, 73, 74, 75, 76]
    late = tilemap(a) + ["s_and_b32 s40, s44, 1", "s_lshr_b32 s41, s44, 1", f"s_mul_i32 s77, s44, {RNG}",
            f"s_mul_i32 s65, s52, {144*1024}", f"s_mul_i32 s51, s46, {7*1024}", "s_add_u32 s65, s65, s51", f"s_add_u32 s65, s65, {WS_A}", "s_add_u32 s66, s65, 4096",
            "s_lshl_b32 s46, s50, 7", f"s_mul_i32 s0, s44, {448*896}", "s_add_u32 s0, s0, s46",
            f"s_mul_i32 s1, s40, {8*28*128}", f"s_add_u32 s1, s1, {WOS}", "s_sub_u32 s1, s1, s77",
            f"s_mul_i32 s51, s49, {2*144*1024}", f"s_mul_i32 s55, s44, {28*1024}", "s_add_u32 s55, s55, s51", f"s_add_u32 s55, s55, {WS_A}",
            f"s_mul_i32 s21, s41, {144*1024}", "s_add_u32 s20, s55, s21", "s_add_u32 s69, s51, s21", "s_sub_u32 s21, s55, s21", f"s_add_u32 s21, s21, {144*1024}",
            "s_lshl_b32 s51, s40, 14", "s_add_u32 s69, s69, s51", f"s_add_u32 s69, s69, {WS_A+112*1024}",
            "s_lshr_b32 s68, s49, 1", "s_lshl_b32 s68, s68, 11",
            "s_lshl_b32 s51, s44, 9", "s_add_u32 s47, s68, s51", f"s_add_u32 s47, s47, {WS_F+32768}",
            "s_lshl_b32 s51, s40, 10", "s_add_u32 s68, s68, s51", f"s_add_u32 s68, s68, {WS_F+65536}",
            "s_lshl_b32 s45, s49, 1", "s_add_u32 s45, s45, s41", "s_lshl_b32 s45, s45, 5",
            f"s_mul_i32 s7, s44, {14*1024}", f"s_mul_i32 s6, s44, {14*8*896}", "s_add_u32 s6, s6, s46",
            "s_lshl_b32 s51, s40, 6", "s_add_u32 s46, s46, s51", "s_mov_b32 s51, s64", "s_add_u32 s59, s59, 32768"]
    for g in range(7):
        late.append(f"s_lshl_b32 s{SK[g]}, s51, 12")
        if g < 6: late += ["s_add_u32 s51, s51, 1", "s_cmp_ge_u32 s51, 7", "s_cselect_b32 s51, 0, s51"]
    b_ = Asm(); srd(b_, 28, 16, 1792*448*2); srd(b_, 12, 8, 448*448*2); srd(b_, 8, 4, 2048*448*2)
    late += [l.strip() for l in b_.L]
    late += [f"v_lshrrev_b32 v{u}, 3, v0", f"v_bfe_u32 v{u+3}, v0, 4, 1", f"v_lshlrev_b32 v{u+1}, 2, v{u+3}", f"v_and_b32 v{u+2}, 7, v0",
             f"v_xor_b32 v{u+2}, v{u+2}, v{u+1}", f"v_mul_u32_u24 v{u}, 896, v{u}", f"v_lshl_add_u32 {vr(vD)}, v{u+2}, 4, v{u}",
             f"v_bfe_u32 v{u}, v0, 2, 2", f"v_lshrrev_b32 v{u+4}, 5, v0", f"v_lshl_add_u32 v{u+1}, v{u+4}, 2, v{u}", f"v_lshlrev_b32 v{u+1}, 7, v{u+1}",
             f"v_and_b32 v{u+2}, 3, v0", f"v_lshl_add_u32 v{u+1}, v{u+2}, 3, v{u+1}", f"v_lshl_add_u32 v{u+1}, v{u+3}, 5, v{u+1}", f"v_lshrrev_b32 v{u}, 1, v{u}",
             f"v_xor_b32 v{u}, s40, v{u}", f"v_lshl_add_u32 v{u+1}, v{u}, 6, v{u+1}", f"v_add_u32 {vr(vT0)}, s77, v{u+1}", f"v_xor_b32 {vr(vT1)}, 64, {vr(vT0)}",
             f"v_and_b32 v{u}, 31, v0", f"v_add_u32 v{u}, s45, v{u}", f"v_mul_u32_u24 v{u}, 896, v{u}", f"v_lshl_add_u32 v{u}, v{u+4}, 4, v{u}", f"v_add_u32 v6, s46, v{u}",
             f"v_add_u32 v13, s1, {vr(vT0)}", "v_xor_b32 v14, 64, v13",
             f"v_bfe_u32 {vr(vP)}, v0, 1, 2", f"v_lshlrev_b32 {vr(vP)}, 7, {vr(vP)}",
             f"v_add_u32 v15, s20, {vr(vL)}", f"v_add_u32 {vr(vL1)}, s21, {vr(vL)}"]
    early = ["s_lshl_b32 s59, s45, 4", "s_add_u32 s59, s59, s46", "s_lshl_b32 s59, s59, 7", f"s_add_u32 s59, s59, {WS_F}", "v_mov_b32 v6, 0"]
    class Z: pass
    z = Z()
    tmp = [128, 132, 136, 140]
    z.pool = [240, 244, 248, 252, 8, 12] + tmp; z.freg = {}; z.rp = 0; z.waited = -1; z.lim = 1; z.epiq = []
    z.lq = []
    for k in range(cfg.LPRE, 28): z.lq += [(k, o) for o in ln_ops(X0, k, LT, vR, 4)]
    checks = {first[2] - 7: ("gq24", GQ1, 3), first[4] - 7: ("gq48", GQ2, 4), first[5] - 7: ("gq60", GQ3, 5), first[6] - 7: ("gq72", GQ4, 6), NA - 7: ("gate0", GATE(0), 7)}
    GL = [1, 2] + ([3] if cfg.G23 else []) + [4, 5] + ([6] if K0 == 24 else [])
    for g in GL: checks[first[7+g] - 8] = (f"gate{g}", GATE(g), 10 if (g == 2 and not cfg.G23) else 7 + g if g < GL[-1] else 13)
    assert all(b - a_ >= 4 for a_, b in zip(sorted(checks), sorted(checks)[1:]))
    ool = []
    def frag(f):
        p, k, tl = order[f]; g, sp = k // 4, k % 4
        c = [r_ for r_ in z.pool if not (r_ in tmp and f >= NA)]
        if not c: return False
        reg = c[0]; z.pool.remove(reg); z.freg[f] = reg
        for rd in range(2):
            if p == "q":
                if g < 4: ad, off = vTQ, g*12288 + 16*sp*192
                else: ad, off = vTQ + 1 + sp//2, (sp % 2)*AR + QA[g]
                off += 4*rd*192 + tl*56
            else:
                if FSLOT[g] == "D": ad, off = vTF, 16*sp*224
                else: ad, off = vTF+1, FA[FSLOT[g]] + (sp//2)*AR + 16*(sp % 2)*224
                off += 4*rd*224 + tl*32
            a.lg(f"ds_read_b64_tr_b16 {vr(reg+2*rd,2)}, {vr(ad)} offset:{off}", ("f", f))
        return True
    def epi_q(tl, var):
        b = AQ + 16*tl
        o = [] if var else [f"v_mul_f32 v{b+r}, s{35+tl}, v{b+r}" for r in range(16)]
        o += [f"v_cvt_pk_bf16_f32 v{b+r}, v{b+2*r}, v{b+2*r+1}" for r in range(8)]
        o += [f"v_cndmask_b32 v{b+r}, v6, v{b+r}, s[38:39]" for r in range(8)] if var else [f"v_cndmask_b32 v{b+r}, v{b+r}, 0, s[42:43]" for r in (6, 7)]
        if tl == 2 and not var: o.append(("mix",))
        o += [("vm", f"buffer_store_dwordx4 {vr(b+4*q,4)}, {vr(vL)}, s[24:27], s{32+tl} offen offset:{1024*q} {SC1}") for q in range(2)]
        return [(tl, x) for x in o]
    def epi_f(tl):
        b = ACCF + 16*tl
        return [(None, x) for x in [f"v_max_f32 v{b+r}, 0, v{b+r}" for r in range(8)] + [f"v_mul_f32 v{b+r}, v{b+r}, v{b+8+r}" for r in range(8)] +
                [f"v_cvt_pk_bf16_f32 v{HP+4*tl+r}, v{b+2*r}, v{b+2*r+1}" for r in range(4)]]
    epi_at = {SC + KT*tl + KT - 1 + 3: epi_f(tl) for tl in range(7)}
    def put(x):
        if isinstance(x, str): a(x); return 1
        if x[0] == "vm": a.vm(x[1], "st"); return 4
        a("s_cmp_eq_u32 s60, 10"); a("s_cbranch_scc1 L_mix"); a("L_mix_x:"); return 2
    def stream(lo, hi, var):
        sfx = "v" if var else ""
        for f in range(lo, hi):
            p, k, tl = order[f]; ff = f - NA
            used = 0
            if p == "f" and tl >= 4 and k == 0:
                flushed = False
                while any(e[0] is not None and e[0] <= tl - 4 for e in z.epiq): put(z.epiq.pop(0)[1]); flushed = True
                if flushed: a("s_nop 1")
            if f > z.waited:
                z.waited = min(NM-1, f + (2 if p == "q" else 1 if z.rp - f < 7 else 3), z.rp-1)
                assert z.waited >= f
                wait_lg_tags(a, [("f", z.waited)])
            assert not z.lq or z.lq[0][0] > k
            acc = vr((AQ if p == "q" else ACCF) + 16*tl, 16)
            ab = [vr(z.freg[f], 4), vr(X0+4*k, 4)]
            sw = var if p == "q" else 0
            a(f"v_mfma_f32_32x32x16_bf16 {acc}, {ab[sw]}, {ab[1-sw]}, {'0' if k == 0 else acc}")
            st(name=f"_a{f}" if p == "q" else f"_f{ff}")
            if f == z.waited: used += 1
            if f >= 1 and not (z.freg[f-1] in (8, 12) and f > max(xlast)): z.pool.append(z.freg[f-1])
            if f - 1 in xlast: z.pool.append(X0 + 4*xlast[f-1])
            for t_ in range(3):
                if f == lastq[t_] + 3: z.epiq += epi_q(t_, var)
            if f == JOIN + 2: z.epiq += [(None, x) for x in early]
            if f in epi_at: z.epiq += epi_at.pop(f)
            sig = {33: CQ2, 57: CE, last[7]: CONS(0), last[8]: CONS(1)}
            if cfg.EW: sig[last[9]] = CONS(2)
            if f in sig:
                if f < NA: assert z.waited >= f + 2
                lds_add(a, vr(vC), vr(vOne), sig[f], "c"); used += 3
            if f == 81: st(name="b7")
            if f + 3 in checks:
                a.lg(f"ds_read_b32 {vr(vG)}, {vr(vC)} offset:{checks[f+3][1]}", "g"); used += 1
            if f + 1 in checks:
                a.wait(lg="g"); a(f"v_cmp_gt_u32 vcc, 4, {vr(vG)}"); used += 2
            if f in checks:
                lab = f"L_{checks[f][0]}{sfx}"
                st(name=f"_pre{checks[f][0]}")
                a(f"s_cbranch_vccnz {lab}"); a(f"{lab}_x:"); used += 1
                ool.append((lab, checks[f][1]))
                z.lim = checks[f][2]
                st(name=f"_{checks[f][0]}")
            if ff == cfg.FL:
                assert not z.epiq
                st(name="_prefl0")
                a.wait(vm="all")
                if cfg.CF: lds_add(a, vr(vC), vr(vOne), AF, "c"); st(name="fl0")
                else: arrive(a, "v6", vr(vC), vr(vOne), 0, "ar")
                used += 4
            if ff == cfg.FL + 3 and not cfg.CF:
                a.wait(lg="ar")
                flag_if_last(a, "v6", vr(vOne), "s59"); used += 5
                st(name="fl0")
            if cfg.SA and used <= 1 and z.epiq and isinstance(z.epiq[0][1], tuple) and z.epiq[0][1][0] == "vm" and z.rp > f + 3 and f < JOIN - 4:
                put(z.epiq.pop(0)[1]); continue
            n = 0
            while z.rp < NM and chunk(z.rp) <= z.lim and z.rp <= f + 8 and n < 2 and frag(z.rp):
                z.rp += 1; n += 1; used += 2
            take = -(-len(z.lq) // max(1, LE - f))
            for q in range(min(take, len(z.lq))): a(z.lq.pop(0)[1]); used += 1
            while z.epiq and used < (cfg.SLOTS if ff < cfg.LP0 else 8):
                if cfg.SA and isinstance(z.epiq[0][1], tuple) and z.epiq[0][1][0] == "vm":
                    c = [q for q, e in enumerate(z.epiq) if isinstance(e[1], str)]
                    if not c: break
                    used += put(z.epiq.pop(c[0])[1])
                else: used += put(z.epiq.pop(0)[1])
            if ff >= cfg.LP0 and used < cfg.LPN: a(f"s_nop {cfg.LPN - used - 1}")
            if ff > max(cfg.FL + 5, 72):
                assert 8 not in z.pool and 12 not in z.pool and all(z.freg[q] not in (8, 12) for q in range(f, z.rp))
                n = 0
                while late and used < cfg.SLOTS - 1 and n < 2: a(late.pop(0)); used += 1; n += 1
    a.raw(".p2align 3")
    for k in range(cfg.LPRE - cfg.LP2 - 1): ln_pk(k)
    a(f"ds_read_b32 {vr(vG)}, {vr(vC)} offset:{GQ0}")
    ln_pk(cfg.LPRE - cfg.LP2 - 1)
    st(name="_p0")
    a("s_waitcnt lgkmcnt(0)")
    a(f"v_cmp_gt_u32 vcc, 4, {vr(vG)}")
    a("s_cmp_ge_u32 s60, 11")
    a("s_nop 2")
    a("s_cbranch_vccnz L_gq0"); a("L_gq0_x:"); ool.append(("L_gq0", GQ0))
    st(name="b0")
    for k in range(7): frag(k); z.rp += 1
    for k in range(cfg.LPRE - cfg.LP2, cfg.LPRE): ln_pk(k)
    a("s_cbranch_scc1 L_pav")
    import copy
    saved = (list(a.vmq), list(a.lgq), st.n, list(st.names), len(a.L), copy.deepcopy(z.__dict__))
    a.raw(".p2align 3")
    a("L_pav:")
    stream(0, JOIN, 1)
    a("s_branch L_pav_x")
    endv = (list(a.vmq), list(a.lgq), copy.deepcopy(z.__dict__))
    vcode = a.L[saved[4]:]; a.L = a.L[:saved[4]]
    a.vmq, a.lgq, st.n, st.names = saved[0], saved[1], saved[2], saved[3]
    z.__dict__.update(saved[5])
    stream(0, JOIN, 0)
    assert endv == (a.vmq, a.lgq, z.__dict__)
    a("L_pav_x:")
    stream(JOIN, NM, 0)
    assert not late
    lds_add(a, vr(vC), vr(vOne), HD-CNT)
    for e in z.epiq: put(e[1])
    a(f"v_add_u32 {vr(vD2)}, {8*896-1024}, {vr(vD)}")
    a("v_mov_b32 v1, 0")
    a("s_nop 5")
    for k in sorted(epi_at):
        for e in epi_at[k]: put(e[1])
    st(name="hg1")
    assert cfg.HST == 0
    def pace(n):
        if len(a.vmq) > n:
            a(f"s_waitcnt vmcnt({n})"); a.vmq = a.vmq[len(a.vmq)-n:]
    def hstore(tl): a.vm(f"buffer_store_dwordx4 {vr(HP+4*tl,4)}, {vr(vL)}, s[24:27], {'s65' if tl < 4 else 's66'} offen offset:{1024*(tl%4)} {SC1}", "st")
    def hflag():
        arrive(a, "v1", vr(vC), vr(vOne), 1)
        a.wait(lg="all")
        flag_if_last(a, "v1", vr(vOne), "s59")
    if cfg.HST != 1: lds_wait(a, "L_ha", vr(vC), "v5", 4, sleep=2, off=HA-CNT)
    st(name="_ha")
    keep = list(a.vmq)
    a("s_cmp_lt_u32 s50, 7")
    a("s_cbranch_scc1 L_htile")
    lds_add(a, vr(vC), vr(vOne), HX)
    for tl in range(7 if cfg.HST == 0 else 0):
        pace(1); hstore(tl)
    a.wait(vm="all"); hflag()
    a("s_branch L_h_end")
    a("L_htile:")
    a.vmq = keep
    for i in range(2): a.vm(f"buffer_load_dwordx4 {vr(HR+4*i,4)}, v6, s[8:11], 0 offen offset:{32*i}", "x")
    lds_wait(a, "L_hdh", vr(vC), "v5", 4, off=HD-CNT)
    def slot(i): return (CB1 + 2048*i) if i < 6 else RB + 2048*((i - 6) % 6)
    def wdma(i, half):
        if half == 0:
            a(f"s_add_u32 m0, s77, {slot(i)}")
            a(f"s_mul_i32 s4, s{SK[i//4]}, 14")
            a("s_add_u32 s4, s4, s0")
            if i % 4: a(f"s_add_u32 s4, s4, {(i%4)*16*896}")
            a.vm(f"buffer_load_dwordx4 {vr(vD)}, s[28:31], s4 offen lds", ("w", i))
        else:
            a.vm(f"buffer_load_dwordx4 {vr(vD2)}, s[28:31], s4 offen offset:1024 lds", ("w", i))
    def wodma(k):
        a(f"s_add_u32 m0, s7, {WOS+k*1024}")
        a(f"s_add_u32 s5, s6, {k*8*896}")
        a.vm(f"buffer_load_dwordx4 {vr(vD)}, s[12:15], s5 offen lds", "wo")
    wlate = {}
    def wreg(i): return wlate[i] if i >= 22 else WREG + 8*(i-6) if i >= 6 else W + 8*(i & 1)
    def reads(i):
        for ct in range(2):
            for r_ in range(2):
                a.lg(f"ds_read_b64_tr_b16 {vr(wreg(i)+4*ct+2*r_,2)}, {vr(vT0+ct)} offset:{slot(i)+r_*1024}", ("r", i))
    wq = [(i, half) for i in range(5 if cfg.EW else 0, 28) for half in range(2)]
    woq = list(range(14))
    rd = [6]
    def rd1():
        if len(a.lgq) >= 11: a.wait(lg="all")
        a.wait(vm=("w", rd[0])); reads(rd[0]); rd[0] += 1
    def drain():
        while rd[0] < 22 and (not wq or wq[0][0] > rd[0]) and a._cnt(a.vmq, ("w", rd[0])) is None: rd1()
    def wop(v):
        i, half = wq.pop(0)
        if half == 0 and i >= 12:
            while rd[0] <= i - 6: rd1()
            a.wait(lg=("r", i-6))
        pace(v); wdma(i, half)
        if half: drain()
    nst = 0; flagged = False
    for n in range(cfg.PRE + cfg.WOP // 2):
        V1 = cfg.V1 if n < cfg.VN else cfg.V1B
        for q in range(cfg.HSN):
            if nst < 7 and n % cfg.HSI == 0:
                pace(V1); hstore(nst); nst += 1
        for half in range(2):
            if n < cfg.PRE: wop(V1)
            else: pace(V1); wodma(woq.pop(0))
        if n == 3:
            assert a._cnt(a.vmq, "x") is None
            for b in (0, 4):
                a(f"v_permlane32_swap_b32 v{HR+b}, v{HR+b+2}")
                a(f"v_permlane32_swap_b32 v{HR+b+1}, v{HR+b+3}")
            a("s_mov_b32 s51, 0xffff0000")
            for i in range(8):
                a(f"v_lshlrev_b32 v{ACC+2*i}, 16, v{HR+i}")
                a(f"v_and_b32 v{ACC+2*i+1}, s51, v{HR+i}")
            srd(a, 8, 18, 2048*448*2)
        if nst == 7 and not flagged and a._cnt(a.vmq, "st") is None:
            hflag(); flagged = True
            st(name="hfl1")
    assert flagged
    st(name="hpre")
    poll(a, "L_p2", "v5", vr(vP), "s[24:27]", "s47", 1, sleep=8)
    st(name="hpoll2")
    a(f"v_and_b32 {vr(vP)}, 7, v0")
    a(f"v_lshlrev_b32 {vr(vP)}, 7, {vr(vP)}")
    a(f"s_setprio {cfg.PH2}")
    hpool = [HR + 8*k for k in range(4)]
    hreg = {}
    nh = [0]
    def hload(i, tt):
        if tt == 0: hreg[i] = hpool.pop(0)
        a.vm(f"buffer_load_dwordx4 {vr(hreg[i]+4*tt,4)}, {vr(15 if tt == 0 else vL1)}, s[24:27], s{SK[i//4]} offen offset:{1024*(i%4)} {SC1}", ("h", i))
    def next_op(v):
        k = nh[0]
        if wq and wq[0][1] == 1: wop(v)
        elif k < 56 and (k % 2 or hpool): pace(v); hload(k // 2, k % 2); nh[0] += 1
        elif wq: wop(v)
        elif woq: pace(v); wodma(woq.pop(0))
        else: return False
        drain()
        return True
    for k in range(8): next_op(cfg.V2)
    if len(a.lgq) >= 11: a.wait(lg="all")
    reads(0)
    assert 6 <= cfg.N1 <= cfg.EP <= 19
    NL = max(cfg.N1, cfg.NL)
    PA = [None, 12, 2, 11]
    def dmf(i, m):
        tt, ct = m // 2, m % 2
        acc = vr(ACC+16*m, 16)
        a(f"v_mfma_f32_32x32x16_bf16 {acc}, {vr(wreg(i)+4*ct,4)}, {vr(hreg[i]+4*tt,4)}, {'0' if (i == 0 and m) else acc}")
    nr = 22
    GK = [[0, 1, 2, 3, 8, 9, 10, 11], [4, 5, 6, 7, 12, 13, 14, 15]]; GM = [0x33, 0xcc]
    if cfg.GS: GK.reverse(); GM.reverse()
    for i in range(22):
        if i == cfg.N1:
            if cfg.CAW:
                while next_op(cfg.V3 if cfg.N1 >= 15 else cfg.V2): pass
            st(name="hN1")
            if cfg.CAW: lds_wait(a, "L_ca", vr(vC), "v5", 1, sleep=1, off=CW)
        if i == NL:
            while next_op(cfg.V3): pass
            assert nh[0] == 56 and not wq and not woq
            post = [f"v_add_u32 v1, s77, {vr(vL)}"]
            for j in range(1, 4): post += [f"s_xor_b32 s51, s44, {j}", f"s_mul_i32 s51, s51, {RNG}", f"v_add_u32 v{PA[j]}, s51, {vr(vL)}"]
            post += ["s_lshl_b32 s51, s41, 2", f"v_add_u32 v15, s51, {vr(vC)}", "s_mov_b32 s12, s22", "s_mov_b32 s13, s23"]
        if i == cfg.EP: a.vm(f"buffer_load_dword v5, {vr(vP)}, s[24:27], s68 offen {SC1}", "p3")
        if i + 1 < 6:
            if len(a.lgq) >= 11: a.wait(lg="all")
            a.wait(vm=("w", i+1)); reads(i+1)
        while 6 <= i and rd[0] <= min(21, i + 1):
            assert not wq or wq[0][0] > rd[0]
            rd1()
        assert nh[0] >= 2*i + 2
        a.wait(vm=("h", i), lg=("r", i))
        if i == 5: lds_add(a, vr(vC), vr(vOne), HX, "c")
        for m in range(4):
            dmf(i, m)
            if m == 0 and i >= 1:
                hpool.append(hreg[i-1])
                if 6 <= i-1: hpool.append(wreg(i-1))
                if i == 6: hpool += [W, W + 8]
            if i < cfg.N1:
                for z in range(cfg.OPG): next_op(cfg.V2)
                if cfg.PAD: a(f"s_nop {cfg.PAD-1}")
            elif i < NL:
                if i >= cfg.N1 + cfg.HD: next_op(cfg.V3)
            else:
                for z in range(2):
                    if post: a(post.pop(0))
            if i >= 19 and m in (0, 2):
                wlate[nr] = hpool.pop(0)
                a.wait(vm=("w", nr));
                if len(a.lgq) > 8: a.wait(lg=("r", nr-2))
                reads(nr); nr += 1
            if i == 21 and m == 1:
                a.wait(vm="all")
                a("v_cmp_gt_u32 s[56:57], 1, v5")
                lds_add(a, vr(vC), vr(vOne), WOL, "c")
            if i == 21 and m == 3:
                a(f"s_and_b32 s56, s56, {GM[0]:#x}")
                a(f"s_cselect_b32 s14, 0, {WS_BYTES}")
    assert nr == 28 and not post
    oreg = {}
    def oload(k, srd_):
        if k % 4 == 0: a(f"s_add_u32 s4, s69, {1024*k}")
        if k not in oreg:
            b = hpool.pop(0); oreg[k] = b; oreg[k+1] = b + 4
        a.vm(f"buffer_load_dwordx4 {vr(oreg[k],4)}, {vr(vL)}, {srd_}, s4 offen offset:{1024*(k%4)} {SC1}", ("o", k))
    def poll2(): a.vm(f"buffer_load_dword v{P2R}, {vr(vP)}, s[24:27], s68 offen {SC1}", "p2")
    morder = [(k, ct) for g in range(2) for ct in (1, 0) for k in GK[g]]
    def wf(k): return WFB[(k % 10)//2] + 4*(k % 2)
    def wrd(k):
        stp, ct = morder[k]
        row = 28*(stp//2) + 16*(stp % 2)
        for r_ in range(2):
            ad = (8 if (stp == 15 and r_) else 13) + ct
            a.lg(f"ds_read_b64_tr_b16 {vr(wf(k)+2*r_,2)}, v{ad} offset:{(row+8*r_)*128}", ("w", k))
    a.wait(lg="all")
    for q, (i, m) in enumerate([(i, m) for i in range(22, 28) for m in (2, 3)]):
        dmf(i, m)
        if q == 0: hpool += [hreg[21], wreg(21)]
        if q < 8: oload(GK[0][q], "s[12:15]")
        if q == 8:
            a(f"ds_read_b32 v5, {vr(vC)} offset:{WOL}")
            a("v_and_b32 v8, 0xfffffdff, v13"); a("v_and_b32 v9, 0xfffffdff, v14")
        if q == 10: a("s_waitcnt lgkmcnt(0)"); a("v_cmp_gt_u32 vcc, 4, v5")
        if q == 11: a("s_cbranch_vccnz L_wol"); a("L_wol_x:"); ool.append(("L_wol", WOL))
    WFB = [hpool.pop(0) for k in range(5)]
    P2R = hpool.pop(0)
    wp = 0
    for q, (i, m) in enumerate([(i, m) for i in range(22, 28) for m in (0, 1)]):
        dmf(i, m)
        if m == 0 and i > 22: hpool += [hreg[i-1], wreg(i-1)]
        if q < 2:
            for z in range(2): wrd(wp); wp += 1
        if q == cfg.P2: poll2()
        if 2 <= q < 10: a.lg(f"ds_write_b128 v1, {vr(ACC+32+4*(q-2),4)} offset:{RB+4096+(q-2)*1024}", "d")
        if q == 6: a.wait(lg=("w", 3))
        if q == 10: lds_add(a, vr(vC), vr(vOne), R1, "d")
        if q == 11:
            for z in range(2): wrd(wp); wp += 1
    st(name="hdown")
    def fixup(g):
        a("s_cmp_lg_u32 s14, 0")
        a(f"s_cbranch_scc1 L_have{g}")
        keep = list(a.vmq)
        a("s_mov_b32 s62, 0")
        a(f"L_p3{g}:")
        a("s_add_u32 s62, s62, 1")
        a("s_waitcnt vmcnt(0)")
        a(f"v_cmp_gt_u32 s[56:57], 1, v{P2R}")
        a(f"s_cmp_gt_u32 s62, {cfg.SPIN}")
        a(f"s_cbranch_scc1 L_p3{g}_x")
        a("s_nop 1")
        a(f"s_and_b32 s56, s56, {GM[g]:#x}")
        a(f"s_cbranch_scc0 L_p3{g}_x")
        a(f"s_sleep {cfg.PS3}")
        a(f"buffer_load_dword v{P2R}, {vr(vP)}, s[24:27], s68 offen {SC1}")
        a(f"s_branch L_p3{g}")
        a(f"L_p3{g}_x:")
        a.vmq = []
        for k in GK[g]: oload(k, "s[24:27]")
        poll2()
        assert a.vmq == keep, (a.vmq, keep)
        a(f"L_have{g}:")
    fixup(0)
    st(name="hpoll3")
    ot = ["s_xor_b32 s51, s44, 2", f"s_mul_i32 s51, s51, {RNG}", "s_add_u32 s51, s51, 4096", "v_and_b32 v2, 31, v0", "v_mul_u32_u24 v2, 80, v2",
          "v_lshrrev_b32 v5, 5, v0", "v_lshl_add_u32 v2, v5, 3, v2", "v_add_u32 v2, s51, v2", "v_lshrrev_b32 v5, 2, v0",
          "v_mul_u32_u24 v11, 80, v5", "v_and_b32 v6, 3, v0", "v_lshl_add_u32 v11, v6, 4, v11", "v_add_u32 v11, s51, v11",
          "v_add_u32 v5, s45, v5", "v_mul_u32_u24 v5, 896, v5", "v_lshl_add_u32 v5, v6, 4, v5", "v_add_u32 v6, s46, v5", f"s_mov_b32 s51, {16*896}"]
    assert cfg.OT
    nb_ = 0
    for k in range(32):
        stp, ct = morder[k]
        if k == 16:
            assert nb_ == 8
            fixup(1)
            st(name="hpoll4")
        a.wait(vm=("o", stp), lg=(("w", min(31, k+1)) if k % 2 == 0 else None))
        acc = vr(ACC+16*ct, 16)
        a(f"v_mfma_f32_32x32x16_bf16 {acc}, {vr(wf(k),4)}, {vr(oreg[stp],4)}, {acc}")
        if k == 0: hpool += [hreg[27], wreg(27)]
        if wp < 32 and wp <= k + 6: wrd(wp); wp += 1
        if k == cfg.KB:
            a.wait(vm="p2")
            a(f"v_cmp_gt_u32 s[56:57], 1, v{P2R}")
        if k == cfg.KB + 1:
            a(f"s_and_b32 s56, s56, {GM[1]:#x}")
            a(f"s_cselect_b32 s14, 0, {WS_BYTES}")
        if k > cfg.KB:
            for z in range(-(-(8 - nb_) // max(1, 16 - k)) if k < 16 else 0):
                oload(GK[1][nb_], "s[12:15]"); nb_ += 1
                if nb_ == 8: poll2()
        if k == 3: a.lg(f"ds_read_b32 v5, {vr(vC)} offset:{R1}", "g")
        if k == 5: a.wait(lg="g"); a("v_cmp_gt_u32 vcc, 4, v5")
        if k == 6: a("s_cbranch_vccnz L_r1"); a("L_r1_x:"); ool.append(("L_r1", R1))
        if 6 <= k < 10:
            for q in range(2*(k-6), 2*(k-6)+2):
                a.lg(f"ds_read_b128 {vr(ACC+32+4*q,4)}, v{PA[2+q//4]} offset:{RB+4096+q*1024}", "p")
        if k == 12: a.wait(lg="p")
        if 12 <= k < 16:
            for r in range(4*(k-12), 4*(k-12)+4): a(f"v_add_f32 v{ACC+32+r}, v{ACC+32+r}, v{ACC+48+r}")
        if 19 <= k < 23:
            for r in range(4*(k-19), 4*(k-19)+4): a(f"v_add_f32 v{ACC+r}, v{ACC+r}, v{ACC+32+r}")
        if k in (10, 11, 16, 17, 18):
            for z in range(4):
                if ot: a(ot.pop(0))
        if k == 25:
            a("s_nop 7")
            for q in range(4): a.lg(f"ds_write_b128 v1, {vr(ACC+16+4*q,4)} offset:{RB+q*1024}", "e")
            lds_add(a, "v15", vr(vOne), RX, "e")
    assert not ot
    st(name="homf")
    PT = ACC + 32; OF = ACC + 48
    lds_wait(a, "L_rx", "v15", "v5", 2, off=RX)
    for q in range(4): a.lg(f"ds_read_b128 {vr(PT+4*q,4)}, v{PA[1]} offset:{RB+q*1024}", ("e", q))
    for hq in range(2):
        a.wait(lg=("e", 2*hq+1))
        for r in range(8*hq, 8*hq+8): a(f"v_add_f32 v{ACC+r}, v{ACC+r}, v{PT+r}")
        for r in range(4*hq, 4*hq+4): a(f"v_cvt_pk_bf16_f32 v{OF+r}, v{ACC+2*r}, v{ACC+2*r+1}")
        b = 4*hq
        if cfg.OT:
            for z in range(2): a(f"ds_write_b64 v2, {vr(OF+b+2*z,2)} offset:{RB+32*hq+16*z}")
            continue
        a("s_nop 1")
        a(f"v_permlane32_swap_b32 v{OF+b}, v{OF+b+2}")
        a(f"v_permlane32_swap_b32 v{OF+b+1}, v{OF+b+3}")
        a(f"buffer_store_dwordx4 {vr(OF+b,4)}, v6, s[8:11], 0 offen offset:{32*hq}")
    if cfg.OT:
        for z in range(2): a.lg(f"ds_read_b128 {vr(PT+4*z,4)}, v11 offset:{RB+16*80*z}", ("t", z))
        for z in range(2):
            a.wait(lg=("t", z))
            a(f"buffer_store_dwordx4 {vr(PT+4*z,4)}, v6, s[8:11], {'s51' if z else '0'} offen {cfg.OFL}")
    a("L_h_end:")
    st.flush(63, 8)
    a("s_endpgm")
    a.L += vcode
    for lab, off in ool:
        lds_wait(a, lab, vr(vC), vr(vG), 4, off=off)
        a(f"s_branch {lab}_x")
    a("L_mix:")
    b = AQ + 32; m = b + 8
    for s_ in (f"v_mov_b32 v{m}, 0x3f80", f"v_cndmask_b32 v{b+6}, v{b+6}, v{m}, s[42:43]", "s_lshl_b32 s51, s44, 11", f"s_add_u32 s51, s51, {VS0}",
               f"v_lshrrev_b32 v{m+5}, 5, v0", f"v_and_b32 v{m}, 31, v0", f"v_lshlrev_b32 v{m}, 6, v{m}", f"v_lshl_add_u32 v{m}, v{m+5}, 3, v{m}",
               f"v_bfe_u32 v{m+1}, v0, 1, 2", f"v_lshl_add_u32 v{m}, v{m+1}, 4, v{m}", f"v_add_u32 v{m}, s51, v{m}",
               f"v_xor_b32 v{m+1}, 16, v{m}", f"v_xor_b32 v{m+2}, 32, v{m}", f"v_xor_b32 v{m+3}, 48, v{m}",
               f"v_bfe_u32 v{m+4}, v0, 2, 2", f"v_lshl_add_u32 v{m+4}, v{m+5}, 2, v{m+4}", f"v_lshrrev_b32 v{m+5}, 1, v{m+4}", f"v_lshlrev_b32 v{m+5}, 4, v{m+5}",
               f"v_and_b32 v{m+6}, 3, v0", f"v_lshlrev_b32 v{m+6}, 3, v{m+6}", f"v_bfe_u32 v{m+7}, v0, 4, 1", f"v_lshl_add_u32 v{m+6}, v{m+7}, 5, v{m+6}",
               f"v_xor_b32 v{m+5}, v{m+5}, v{m+6}", f"v_lshlrev_b32 v{m+4}, 6, v{m+4}", f"v_add3_u32 v{m+4}, v{m+4}, v{m+5}, s51"): a(s_)
    a("s_mov_b64 s[56:57], vcc")
    lds_wait(a, "L_mixw", vr(vC), f"v{m+5}", 4, off=CE)
    a("s_mov_b64 vcc, s[56:57]")
    for i in range(4): a(f"ds_write_b64 v{m+i}, {vr(b+2*i,2)}")
    for i in range(4): a(f"ds_read_b64_tr_b16 {vr(b+2*i,2)}, v{m+4} offset:{512*i}")
    a("s_waitcnt lgkmcnt(0)")
    a("s_branch L_mix_x")

def build():
    a = Asm()
    st = Stamps(a, 0, 22)
    common(a, st)
    n0 = st.n
    gen_h(a, st)
    hn = st.names[1:]
    st.n = n0; st.names = st.names[:n0]
    gen_c(a, st)
    if asmlib.STAMP: a.raw(f"; STAMPS C {st.names[1:]}\n; STAMPS H {hn}")
    s = f"; @launch grid=(256,1,1) block=(512,1,1) lds={LDS}\n"
    s += '.amdgcn_target "amdgcn-amd-amdhsa--gfx950"\n.text\n' + kernel_head(NAME) + a.text()
    s += '.section .rodata,"a"\n' + kernel_desc(NAME, 256, 256, 102)
    if cfg.ALIGN:
        import align
        s, f_, m_ = align.align(s, nop=cfg.ALIGN if cfg.ALIGN > 1 else False)
    return s
def set_args(args):
    for x in args:
        if x.startswith("sel="): asmlib.STAMP_SEL = x[4:].split(",")
        elif "=" in x:
            k, v = x.split("="); setattr(cfg, k, eval(v))
if __name__ == "__main__":
    asmlib.STAMP = "--stamp" in sys.argv
    asmlib.STAMP_REAL = "--real" in sys.argv
    set_args(sys.argv[2:])
    open(sys.argv[1], "w").write(build() + ("; ARGS " + " ".join(x for x in sys.argv[2:] if "=" in x and not x.startswith("sel=")) + "\n" if asmlib.STAMP else ""))
```

```python
import sys, math, struct
import asmlib
from asmlib import *
def f2u(x): return struct.unpack("<I", struct.pack("<f", x))[0]
NAME = "parallel_sum__softmax_full_mha__glu_gated_reglu__prompt_kernel"
WS_KV, WS_A, WS_F = 2<<20, 6<<20, 16<<20
WS_BYTES = WS_F + 3*32768
QSCALE = math.log2(math.e) / math.sqrt(28.0)
LDS = 163840
XS = 49152; AR = 28672
OU = 14336 + 128
QA = {4: 0, 5: 7168, 6: 10240}
FA = {"A": 14336, "B": 21504, "C": 0, "E": 7168}
FSLOT = ["A", "B", "D", "C", "E", "A", "B"]
STO = 24576
CNT = XS + 2*AR - 128
GATE = lambda g: 4*g
CONS = lambda g: 32 + 4*g
HD = CNT + 48; HA = CNT + 52
GQ1 = 56; GQ2 = 60; GQ0 = 28; CQ2 = 88; CE = 92; GQ3 = 104; GQ4 = 108; CL = 112; AF = 116; HX = 100
WOL = 64; CW = 68; R1 = 72; RX = 80
VS0 = 32768; VS2 = 25600
WOS = XS + 2*AR; NS = 6; RNG = NS*2048
CB1 = 0; RB = 49152
WS_Q = 0
class P: pass
cfg = P()
cfg.N1 = 10
cfg.N2 = 4
cfg.SPIN = 1 << 16
cfg.ROT = 3
cfg.V1 = 3; cfg.V2 = 4; cfg.V3 = 12
cfg.XA = 4; cfg.BX = 2
cfg.Q0 = 2; cfg.Q1 = 0
cfg.LPRE = 15
cfg.HPRE = 4
cfg.HSI = 1; cfg.HSN = 1; cfg.PE = 2; cfg.WDP = [0, 0, 0]; cfg.F3 = 1
cfg.SLOTS = 6
cfg.SPF = 0; cfg.SPQ = 0; cfg.SPS = 0
cfg.LP2 = 2; cfg.T6 = 0; cfg.HST = 0; cfg.VN = 9; cfg.V1B = 5; cfg.NOM = 0; cfg.ITS = 0; cfg.CQF = 3; cfg.LN0 = 0; cfg.PF = 0; cfg.ZM = 0; cfg.MAP = 1
cfg.OT = 1; cfg.OFL = ''; cfg.KQ = 24; cfg.AV = [8, 18, 28]; cfg.LP0 = 999; cfg.LPN = 11; cfg.MT = [-2, 5]; cfg.MR = 0; cfg.FT = 0; cfg.NV = 99; cfg.V2B = 8; cfg.NP = 99; cfg.EQ = -6; cfg.CP = 10; cfg.XP = 1; cfg.CWH = 0; cfg.KB = 4; cfg.GS = 0; cfg.GOP = 1; cfg.W = 9; cfg.W0 = 8; cfg.MG = 25; cfg.TI = 2; cfg.LT = 9; cfg.PAR = None; cfg.CLR = 7; cfg.PRE = 16; cfg.OPG = 2; cfg.CAW = 0; cfg.P2 = 5; cfg.HD = 0; cfg.NL = 16; cfg.XT = 9; cfg.MQ = 9; cfg.MQR = 0; cfg.G23 = 1; cfg.GP = 1; cfg.WSB = 0; cfg.F3L = 0; cfg.CF = 1; cfg.AS = 1; cfg.SA = 1; cfg.EW = 0; cfg.GL = 30; cfg.F4E = 0; cfg.PS1 = 4; cfg.FL = 54; cfg.SPW = 0; cfg.P1F = 1; cfg.LAG = 8; cfg.EP = 19; cfg.PS3 = 1; cfg.WOP = 0
cfg.W2 = 1
cfg.K0 = 24; cfg.LNG = 3
cfg.ALIGN = 5
cfg.PC = 0; cfg.PH2 = 0; cfg.PAD = 0
cfg.SIG = 1
SC1 = "sc1"

def poll(a, lab, vdst, voff, srd_, soff, want_ge, cnt="s62", sleep=2):
    a(f"s_mov_b32 {cnt}, 0")
    a(f"{lab}:")
    a(f"buffer_load_dword {vdst}, {voff}, {srd_}, {soff} offen sc1")
    a(f"s_add_u32 {cnt}, {cnt}, 1")
    a(f"s_waitcnt vmcnt(0)")
    a(f"v_cmp_le_u32 vcc, {want_ge}, {vdst}")
    a(f"s_cmp_gt_u32 {cnt}, {cfg.SPIN}")
    a(f"s_cbranch_scc1 {lab}_x")
    a(f"s_nop 1")
    a(f"s_cmp_eq_u64 vcc, -1")
    a(f"s_cbranch_scc1 {lab}_x")
    a(f"s_sleep {sleep}")
    a(f"s_branch {lab}")
    a(f"{lab}_x:")
    a.vmq = []
def lds_wait(a, lab, vaddr, vdst, n, sleep=0, off=0):
    a(f"{lab}:")
    if sleep: a(f"s_sleep {sleep}")
    a(f"ds_read_b32 {vdst}, {vaddr} offset:{off}")
    a("s_waitcnt lgkmcnt(0)")
    a(f"v_cmp_gt_u32 vcc, {n}, {vdst}")
    a("s_nop 3")
    a(f"s_cbranch_vccnz {lab}")
    a.lgq = []

def common(a, st):
    a("s_cmp_ge_u32 s2, 256")
    a("s_cbranch_scc1 L_end")
    st(wait=False, real=True); st(wait=False)
    a("s_load_dwordx8 s[4:11], s[0:1], 0")
    a("s_load_dwordx8 s[12:19], s[0:1], 32")
    a("s_load_dwordx4 s[20:23], s[0:1], 64")
    a("s_getpc_b64 s[56:57]")
    a("L_pc:")
    a("v_lshrrev_b32 v1, 5, v0")
    a("s_lshr_b32 s55, s2, 3")
    a("s_lshl_b32 s55, s55, 4")
    a("v_add_u32 v2, s55, v1")
    a("v_lshlrev_b32 v2, 7, v2")
    a("v_min_u32 v2, L_code_end-L_pc-4, v2")
    a("global_load_dword v255, v2, s[56:57]")
    a("v_lshrrev_b32 v1, 6, v0")
    a("v_and_b32 v0, 63, v0")
    a("v_readfirstlane_b32 s63, v1")
    a("s_and_b32 s48, s2, 7")
    a("s_lshr_b32 s47, s2, 3")
    a("s_lshr_b32 s50, s47, 2")
    a("s_and_b32 s51, s47, 3")
    a("s_and_b32 s44, s63, 3")
    a("s_cmp_lt_u32 s63, 4")
    a("s_cbranch_scc1 L_compute")
def mapping(a):
    if cfg.MAP == 0:
        a("s_and_b32 s46, s48, 3")
        a("s_lshl_b32 s46, s46, 2")
        a("s_add_u32 s46, s46, s51")
        a("s_lshr_b32 s45, s48, 2")
        a("s_lshl_b32 s45, s45, 3")
        a("s_add_u32 s45, s45, s50")
    else:
        a("s_and_b32 s46, s48, 1")
        a("s_lshl_b32 s46, s46, 3")
        a("s_add_u32 s46, s46, s50")
        a("s_lshr_b32 s45, s48, 1")
        a("s_lshl_b32 s45, s45, 2")
        a("s_add_u32 s45, s45, s51")
    a("s_lshl_b32 s49, s48, 2")
    a("s_add_u32 s49, s49, s51")
    a("s_lshl_b32 s3, s51, 1")
    a("s_add_u32 s64, s3, s50")
    a("s_cmp_ge_u32 s64, 7")
    a("s_cselect_b32 s62, 7, 0")
    a("s_sub_u32 s64, s64, s62")
    if cfg.ROT == 2: a("s_mov_b32 s3, s64")
    if cfg.ROT == 0: a("s_mov_b32 s3, 0")
    if cfg.ROT == 3:
        a("s_cmp_ge_u32 s50, 7")
        a("s_cselect_b32 s3, 3, s50")
    a("s_lshl_b32 s52, s45, 2")
    a("s_add_u32 s52, s52, s44")
def tilemap(a):
    if cfg.PAR is None: return []
    return ["s_and_b32 s51, s48, 1", f"s_xor_b32 s51, s51, {1 - cfg.PAR}", "s_lshl_b32 s51, s51, 5", "s_add_u32 s51, s51, s47",
            "s_mul_i32 s64, s51, 37", "s_lshr_b32 s64, s64, 8", "s_mul_i32 s50, s64, 7", "s_sub_u32 s50, s51, s50",
            "s_lshr_b32 s49, s48, 1", "s_lshl_b32 s49, s49, 3", "s_add_u32 s49, s49, s64",
            "s_lshl_b32 s64, s64, 1", "s_add_u32 s64, s64, s50", "s_mul_i32 s55, s64, 37", "s_lshr_b32 s55, s55, 8", "s_mul_i32 s55, s55, 7", "s_sub_u32 s64, s64, s55",
            "s_cmp_ge_u32 s51, 56", "s_cselect_b32 s50, 7, s50"]
def emit(a, op):
    if op[1] == "vm": a.vm(op[0], op[2])
    elif op[1] == "lg": a.lg(op[0], op[2])
    else: a(op[0])
def wait_lg_tags(a, tags):
    n = min([c for c in (a._cnt(a.lgq, tg) for tg in tags) if c is not None], default=None)
    if n is not None:
        n = min(n, 14)
        a(f"s_waitcnt lgkmcnt({n})")
        a.lgq = a.lgq[len(a.lgq)-n:] if n else []
V = lambda s: (s, "v")

def lds_add(a, vaddr, vone, off, tag=None):
    a("s_mov_b64 exec, 1")
    a.lg(f"ds_add_u32 {vaddr}, {vone} offset:{off}", tag)
    a("s_mov_b64 exec, -1")
def arrive(a, vdst, vaddr, vone, p, tag=None):
    a("s_mov_b64 exec, 1")
    a.lg(f"ds_add_rtn_u32 {vdst}, {vaddr}, {vone} offset:{AF+4*p}", tag)
    a("s_mov_b64 exec, -1")
def flag_if_last(a, v, vone, soff):
    a(f"v_xor_b32 {v}, 3, {v}")
    a(f"v_lshlrev_b32 {v}, 25, {v}")
    a.vm(f"buffer_store_dword {vone}, {v}, s[24:27], {soff} offen {SC1}", "fl")
def ws_srd(a):
    if cfg.WSB:
        a(f"s_add_u32 s22, s22, {cfg.WSB << 20}")
        a("s_addc_u32 s23, s23, 0")
    srd(a, 24, 22, WS_BYTES)
def ffn_setup(a, vDF, t):
    a("s_cmp_ge_u32 s44, 2")
    a("s_cselect_b32 s32, s14, s12")
    a("s_cselect_b32 s33, s15, s13")
    a(f"s_mov_b32 s34, {448*1792*2}")
    a("s_mov_b32 s35, 0x00020000")
    a("s_cselect_b32 s51, 128, 0")
    a(f"s_mul_i32 s53, s44, {AR}")
    a("s_add_u32 s53, s53, s51")
    a(f"s_add_u32 s53, s53, {XS-128}")
    a("s_mul_i32 s42, s44, 7168")
    a("s_add_u32 s42, s42, s51")
    a("s_and_b32 s51, s44, 1")
    a(f"s_mul_i32 s54, s51, {32*3584}")
    a("s_mul_i32 s51, s46, 224")
    for j in range(7):
        a(f"v_add_u32 v{t}, {64*j}, v0")
        a(f"v_mul_u32_u24 v{t+1}, 4682, v{t}")
        a(f"v_lshrrev_b32 v{t+1}, 16, v{t+1}")
        a(f"v_mul_u32_u24 v{t+2}, {3584-14*16}, v{t+1}")
        a(f"v_lshl_add_u32 v{t+2}, v{t}, 4, v{t+2}")
        if j % 4: a(f"v_subrev_u32 v{t+2}, {1024*(j%4)}, v{t+2}")
        a(f"v_add_u32 {vr(vDF+j)}, s51, v{t+2}")
def gap(a, n):
    while n > 0:
        a(f"s_nop {min(n, 16) - 1}"); n -= 16
def ffn_dma(a, g, vDF, lo=0, hi=7, sp=None):
    sp = cfg.SPF if sp is None else sp
    if lo:
        base, off = ("s42", 0) if FSLOT[g] == "D" else ("s53", FA[FSLOT[g]])
        assert lo == 4
        a(f"s_add_u32 m0, {base}, {off+4096}")
        a(f"s_add_u32 s43, s3, {g}")
        a("s_cmp_ge_u32 s43, 7")
        a("s_cselect_b32 s62, 7, 0")
        a("s_sub_u32 s43, s43, s62")
        a(f"s_mul_i32 s43, s43, {64*3584}")
        a("s_add_u32 s43, s43, s54")
        for j in range(4, 7):
            a.vm(f"buffer_load_dwordx4 {vr(vDF+j)}, s[32:35], s43 offen offset:{1024*(j%4)} lds", ("F", g))
            if j < 6: gap(a, sp)
        return
    base, off = ("s42", 0) if FSLOT[g] == "D" else ("s53", FA[FSLOT[g]])
    a(f"s_add_u32 m0, {base}, {off}")
    a(f"s_add_u32 s43, s3, {g}")
    a("s_cmp_ge_u32 s43, 7")
    a("s_cselect_b32 s62, 7, 0")
    a("s_sub_u32 s43, s43, s62")
    a(f"s_mul_i32 s43, s43, {64*3584}")
    a("s_add_u32 s43, s43, s54")
    for j in range(hi):
        if j == 4:
            a(f"s_add_u32 m0, {base}, {off+4096}"); a("s_nop 0")
        a.vm(f"buffer_load_dwordx4 {vr(vDF+j)}, s[32:35], s43 offen offset:{1024*(j%4)} lds", ("F", g))
        if j < hi - 1: gap(a, sp)
def xread_addr(a, vX, t):
    a(f"s_mul_i32 s56, s44, {AR}")
    a(f"s_add_u32 s56, s56, {XS}")
    a(f"v_and_b32 v{t}, 31, v0")
    a(f"v_lshlrev_b32 v{t+1}, 7, v{t}")
    a(f"v_add_u32 v{t+1}, s56, v{t+1}")
    a(f"v_bfe_u32 v{t}, v0, 1, 3")
    a(f"v_lshrrev_b32 v{t+2}, 5, v0")
    a(f"v_xor_b32 v{t}, v{t}, v{t+2}")
    a(f"v_lshl_add_u32 {vr(vX)}, v{t}, 4, v{t+1}")
    for sp in range(1, 4): a(f"v_xor_b32 {vr(vX+sp)}, {32*sp}, {vr(vX)}")
def ln_ops(X0, k, LT, vR, nt=2):
    ops = []
    for b in range(0, 4, nt):
        for i in range(nt):
            r = X0 + 4*k + b + i
            ops += [f"v_lshlrev_b32 v{LT+2*i}, 16, v{r}", f"v_and_b32 v{LT+2*i+1}, s61, v{r}"]
        ops += [f"v_fma_f32 v{LT+i}, v{LT+i}, v{vR}, v{vR+1}" for i in range(2*nt)]
        ops += [f"v_cvt_pk_bf16_f32 v{X0+4*k+b+i}, v{LT+2*i}, v{LT+2*i+1}" for i in range(nt)]
    return ops
def sigma(a, dst, src):
    tab = [0, 1, 2, 3, 4, 5, 7, 6, 9, 8, 15, 11, 12, 13, 14, 10]
    if cfg.PAR == 1: tab[12], tab[14] = 14, 12
    assert all(tab[tab[k]] == k for k in range(16))
    lo = sum(tab[k] << (4*k) for k in range(8)); hi = sum(tab[8+k] << (4*k) for k in range(8))
    a(f"s_cmp_ge_u32 {src}, 8")
    a(f"s_cselect_b32 s62, {lo ^ hi:#x}, 0")
    a(f"s_xor_b32 s62, s62, {lo:#x}")
    a(f"s_lshl_b32 {dst}, {src}, 2")
    a(f"s_lshr_b32 {dst}, s62, {dst}")
    a(f"s_and_b32 {dst}, {dst}, 15")

def gen_c(a, st):
    a.vmq = []; a.lgq = []
    vDQ = 216; t = 240; SINK = 221; vL = 15; vDF = 208
    O = 16; S = 80; PP = 192; KV = 128; T = 200
    QL = [248, 224, 232, 240]
    a("L_compute:")
    mapping(a)
    for r in range(4): a(f"v_mov_b32 v{PP+4+r}, 0")
    a(f"v_min_u32 v{t}, 11, v0")
    a(f"v_and_b32 v{t+1}, 3, v{t}")
    a(f"v_lshrrev_b32 v{t}, 2, v{t}")
    a(f"v_lshlrev_b32 v{t}, 15, v{t}")
    a(f"v_lshl_add_u32 v{t}, v{t+1}, 7, v{t}")
    a("s_lshl_b32 s51, s52, 9")
    a(f"s_add_u32 s51, s51, {WS_F}")
    a("s_waitcnt lgkmcnt(0)")
    ws_srd(a)
    assert not (cfg.EW and cfg.PAR is not None)
    a(f"s_xor_b32 s59, s46, {cfg.CLR}")
    a("s_cbranch_scc1 L_noclr")
    a(f"buffer_store_dword v{PP+4}, v{t}, s[24:27], s51 offen {SC1}")
    a("L_noclr:")
    srd(a, 28, 6, 448*1344*2)
    sigma(a, "s51", "s46")
    a("s_mul_i32 s51, s51, 168")
    a("s_and_b32 s51, s51, -16")
    for j in range(3):
        a(f"v_add_u32 v{t}, {64*j}, v0")
        a(f"v_mul_u32_u24 v{t+1}, 5462, v{t}")
        a(f"v_lshrrev_b32 v{t+1}, 16, v{t+1}")
        a(f"v_mul_u32_u24 v{t+2}, 12, v{t+1}")
        a(f"v_sub_u32 v{t+2}, v{t}, v{t+2}")
        a(f"v_min_u32 v{t+2}, 10, v{t+2}")
        a(f"v_mul_u32_u24 v{t+1}, 2688, v{t+1}")
        a(f"v_lshl_add_u32 v{t+1}, v{t+2}, 4, v{t+1}")
        if j: a(f"v_subrev_u32 v{t+1}, {1024*j}, v{t+1}")
        a(f"v_add_u32 {vr(vDQ+j)}, s51, v{t+1}")
    a(f"s_mul_i32 s70, s44, {16*2688}")
    a(f"s_mul_i32 s71, s44, {16*192}")
    a(f"s_mul_i32 s72, s3, {64*2688}")
    a(f"s_mul_i32 s73, s44, {AR}")
    a(f"s_add_u32 s73, s73, {XS}")
    def qkv_dma(g):
        a(f"s_add_u32 m0, s71, {g*12288}" if g < 4 else f"s_add_u32 m0, s73, {QA[g]}")
        a("s_add_u32 s51, s72, s70")
        for j in range(3):
            a.vm(f"buffer_load_dwordx4 {vr(vDQ+j)}, s[28:31], s51 offen offset:{1024*j} lds", ("Q", g))
        if g < 6:
            a(f"s_add_u32 s72, s72, {64*2688}"); a(f"s_cmp_ge_u32 s72, {448*2688}"); a("s_cselect_b32 s72, 0, s72")
    ffn_setup(a, vDF, t)
    srd(a, 12, 20, 256)
    srd(a, 36, 16, 1792*448*2)
    srd(a, 16, 8, 448*448*2)
    a("s_mov_b32 s40, 0"); a("s_mov_b32 s41, -1")
    for s_ in (f"v_lshlrev_b32 {vr(vL)}, 4, v0", "v_lshlrev_b32 v13, 25, v0", "v_mov_b32 v14, 1", f"v_mov_b32 v12, {CNT}",
               "v_and_b32 v222, 15, v0", "v_lshlrev_b32 v222, 4, v222", "s_lshl_b32 s74, s45, 4"): a(s_)
    for r in range(4): a(f"v_mov_b32 v{KV+48+12+r}, 0")
    for r in range(64): a(f"v_mov_b32 v{O+r}, 0")
    def att_setup():
        a("s_setprio 0")
        a("s_lshl_b32 s65, s48, 1")
        a("s_and_b32 s51, s47, 1")
        a("s_add_u32 s65, s65, s51")
        a("s_lshr_b32 s66, s47, 1")
        a(f"v_bfe_u32 v{t+2}, v0, 2, 2")
        a(f"v_bfe_u32 v{t+4}, v0, 4, 1")
        for s_ in ("s_lshl_b32 s51, s66, 2", "s_add_u32 s51, s51, s44", f"s_mul_i32 s67, s51, {144*1024}", "s_lshl_b32 s51, s65, 11", "s_add_u32 s67, s67, s51",
                   f"s_add_u32 s67, s67, {WS_A+112*1024}",
                   "s_lshl_b32 s51, s44, 2",
                   "s_lshl_b32 s60, s66, 4", "s_add_u32 s60, s60, s65", "s_lshl_b32 s60, s60, 7", f"s_add_u32 s60, s60, {WS_F+65536}",
                   "s_lshl_b32 s51, s65, 18", "s_lshl_b32 s58, s44, 16", "s_add_u32 s51, s51, s58", f"s_add_u32 s51, s51, {WS_KV}",
                   "s_add_u32 s4, s22, s51", "s_addc_u32 s5, s23, 0", "s_mov_b32 s6, 0x10000", "s_mov_b32 s7, 0x00020000",
                   "s_lshl_b32 s69, s66, 12"): a(s_)
        for k, (add, dst) in enumerate(((0, "s56"), (16, "s57"), (32, "s58"))):
            a(f"s_add_u32 s51, s65, {add}")
            a("s_mul_i32 s51, s51, 43")
            a("s_lshr_b32 s51, s51, 7")
            sigma(a, "s51", "s51")
            a(f"s_lshl_b32 {dst}, s51, 7")
        a("s_lshl_b32 s51, s66, 11")
        a("s_add_u32 s56, s56, s51")
        a("s_lshl_b32 s51, s44, 13")
        a("s_add_u32 s57, s57, s51")
        a("s_add_u32 s58, s58, s51")
        a(f"v_lshlrev_b32 v1, 11, v{t+2}")
        a(f"v_add_u32 v{t+6}, s58, v1")
        a(f"v_add_u32 v1, s57, v1")
        a(f"v_cmp_eq_u32 vcc, 1, v{t+4}")
        a(f"v_mov_b32 v{t+7}, s56")
        a(f"v_and_b32 v{t+3}, 3, v0")
        a(f"v_cndmask_b32 v1, v1, v{t+6}, vcc")
        a(f"v_cndmask_b32 v1, v1, v{t+7}, s[40:41]")
        a(f"s_mov_b32 s68, {WS_F}")
        for j in range(4):
            for s_ in (f"s_add_u32 s51, s44, {j}", "s_and_b32 s51, s51, 3", f"s_mul_i32 s55, s51, 12288", f"s_add_u32 s55, s55, {CB1}", f"v_add_u32 v{T+4+j}, s55, {vr(vL)}",
                       "s_lshl_b32 s55, s65, 4", "s_add_u32 s55, s55, s66", "s_lshl_b32 s55, s55, 2", "s_add_u32 s55, s55, s51", f"s_lshl_b32 s{8+j}, s55, 11"): a(s_)
        a("s_mov_b32 s55, 0")
        if cfg.EW:
            a("s_cmp_lt_u32 s50, 7")
            a("s_cselect_b32 s38, s38, 0")
            for s_ in ("v_lshrrev_b32 v3, 3, v0", "v_bfe_u32 v4, v0, 4, 1", "v_lshlrev_b32 v4, 2, v4", "v_and_b32 v7, 7, v0", "v_xor_b32 v7, v7, v4",
                       "v_mul_u32_u24 v3, 896, v3", "v_lshl_add_u32 v3, v7, 4, v3", f"v_add_u32 v4, {8*896-1024}, v3",
                       f"s_mul_i32 s56, s44, {448*896}", "s_lshl_b32 s57, s50, 7", "s_add_u32 s56, s56, s57", f"s_mul_i32 s57, s64, {64*896}", "s_add_u32 s57, s57, s56",
                       "s_add_u32 s51, s64, 1", "s_cmp_ge_u32 s51, 7", "s_cselect_b32 s51, 0, s51", f"s_mul_i32 s58, s51, {64*896}", "s_add_u32 s58, s58, s56",
                       f"s_mul_i32 s56, s44, {RNG}"): a(s_)
        a(f"s_setprio {cfg.PF}")
    def mtouch(pos):
        if pos == cfg.MQ:
            r0 = cfg.MQR; by = (448 - r0) * 2688 // 1024
            assert by % 4 == 0
            for s_ in (f"v_min_u32 v8, {by // 128}, v0", "v_lshlrev_b32 v8, 7, v8", "s_lshl_b32 s51, s2, 2", "s_add_u32 s51, s51, s44",
                       f"s_mul_i32 s51, s51, {by}", f"s_add_u32 s51, s51, {r0*2688}"): a(s_)
            a.vm(f"buffer_load_dword v{SINK}, v8, s[28:31], s51 offen", "pf")
        if pos == cfg.LT:
            for s_ in ("v_lshrrev_b32 v5, 3, v0", "v_min_u32 v5, 6, v5", "v_mul_u32_u24 v5, 3584, v5", "v_and_b32 v6, 7, v0", "v_min_u32 v6, 6, v6", "v_lshl_add_u32 v5, v6, 7, v5",
                       "s_lshl_b32 s51, s47, 1", "s_and_b32 s62, s44, 1", "s_add_u32 s51, s51, s62", f"s_mul_i32 s51, s51, {7*3584}",
                       f"s_and_b32 s62, s48, {3 >> cfg.MAP}", f"s_mul_i32 s62, s62, {896 << cfg.MAP}", "s_add_u32 s51, s51, s62"): a(s_)
            for q in range(1 + cfg.MAP): a.vm(f"buffer_load_dword v{SINK}, v5, s[32:35], s51 offen offset:{896*q}", "pf")
        if pos == cfg.MT[0]:
            r0 = cfg.MR
            nl = (448 - r0) * 28 // 512 + 1
            for s_ in (f"v_min_u32 v5, {nl-1}, v0", "v_lshlrev_b32 v5, 7, v5", "s_lshl_b32 s51, s2, 1", "s_and_b32 s62, s44, 1", "s_add_u32 s51, s51, s62",
                       f"s_mul_i32 s51, s51, {(448 - r0) * 7}", f"s_add_u32 s51, s51, {r0*3584}"): a(s_)
            a.vm(f"buffer_load_dword v{SINK}, v5, s[32:35], s51 offen", "pf")
        if pos in cfg.MT[1:]:
            for s_ in ("v_min_u32 v6, 12, v0", "v_lshlrev_b32 v6, 7, v6", f"s_xor_b32 s51, s2, {cfg.MT[1:].index(pos)}", "s_lshl_b32 s51, s51, 2", "s_add_u32 s51, s51, s44", "s_mul_i32 s62, s51, 1568"): a(s_)
            a.vm(f"buffer_load_dword v{SINK}, v6, s[36:39], s62 offen", "pf")
            for s_ in ("v_min_u32 v7, 3, v0", "v_lshlrev_b32 v7, 7, v7", "s_mul_i32 s62, s51, 392"): a(s_)
            a.vm(f"buffer_load_dword v{SINK}, v7, s[16:19], s62 offen", "pf")
    def landed(tag, off):
        a.wait(vm=tag); lds_add(a, "v12", "v14", off)
    def free(lab, off): lds_wait(a, lab, "v12", "v2", 4, sleep=1, off=off)
    mtouch(-1)
    def gostore(pos):
        if pos != cfg.GP: return
        a("s_or_b32 s59, s59, s44")
        a("s_cbranch_scc1 L_nogo")
        free("L_clr", GQ0)
        a(f"buffer_store_dword v14, v13, s[12:15], s74 offen {SC1}")
        a("L_nogo:")
    st(name="setup")
    a("s_barrier")
    a(f"s_setprio {cfg.PF}")
    for g in range(cfg.Q0): qkv_dma(g)
    mtouch(-2)
    a("s_barrier")
    st(name="bx2")
    pend = []; tries = [0]
    def gocheck():
        a("v_cmp_gt_u32 vcc, 1, v223")
        a("s_nop 3")
        a("s_cbranch_vccnz L_go"); a("L_go_x:")
    def announce(p):
        tag, off, need = p
        a.wait(vm=tag)
        if tag == "go": gocheck()
        else: lds_add(a, "v12", "v14", off)
        st(name=f"_l{tag[0]}{tag[1]}")
    def tryflag(block):
        k = tries[0]; tries[0] += 1
        a("s_cmp_lg_u32 s75, 0")
        a(f"s_cbranch_scc1 L_nofl{k}")
        if block: lds_wait(a, "L_af", "v12", "v2", 4, off=AF)
        else:
            a(f"ds_read_b32 v2, v12 offset:{AF}")
            a("s_waitcnt lgkmcnt(0)"); a.lgq = []
            a("v_cmp_gt_u32 vcc, 4, v2")
            a("s_nop 3")
            a(f"s_cbranch_vccnz L_nofl{k}")
        a(f"buffer_store_dword v14, v13, s[24:27], s76 offen {SC1}")
        a("s_mov_b32 s75, 1")
        if asmlib.STAMP and k: st.n -= cf;
        st(name="cfl0")
        if asmlib.STAMP and k and cf: st.names.pop()
        a(f"L_nofl{k}:")
    cf = 1 if (asmlib.STAMP_SEL is None or "cfl0" in asmlib.STAMP_SEL) else 0
    base_vm = a.vm
    trying = [False]
    def vm_hook(txt, tag=None):
        base_vm(txt, tag)
        while pend and (a._cnt(a.vmq, pend[0][0]) or 0) >= (cfg.W0 if pend[0][0] == ("Q", 1) else cfg.W): announce(pend.pop(0))
        if trying[0] and not any(p[0] == "go" for p in pend):
            trying[0] += 1
            if trying[0] % cfg.TI == 0: tryflag(False)
    a.vm = vm_hook
    def until(lab, off, at):
        while pend and pend[0][2] < at + cfg.MG: announce(pend.pop(0))
        free(lab, off)
    for s_ in ("s_lshl_b32 s76, s45, 4", "s_add_u32 s76, s76, s46", "s_lshl_b32 s76, s76, 7", f"s_add_u32 s76, s76, {WS_F}", "s_mov_b32 s75, s44"): a(s_)
    pend.append((("Q", 1), GQ0, 0))
    mtouch(-3)
    for g in range(cfg.Q0, 4): qkv_dma(g)
    mtouch(-4)
    pend.append((("Q", 3), GQ1, 14))
    for g, off in ((4, GQ2), (5, GQ3), (6, GQ4)):
        qkv_dma(g); pend.append((("Q", g), off, 12*g - 10))
    ffn_dma(a, 0, vDF); pend.append((("F", 0), GATE(0), 74))
    mtouch(0)
    gostore(0)
    ffn_dma(a, 1, vDF); pend.append((("F", 1), GATE(1), 84 + 12))
    mtouch(1)
    gostore(1)
    until("L_cq2", CQ2, 33)
    ffn_dma(a, 2, vDF); pend.append((("F", 2), GATE(2), 84 + 44))
    mtouch(2)
    until("L_ce", CE, 57)
    st(name="ce")
    assert cfg.CF and cfg.G23 and cfg.K0 == 24
    def goload(pos):
        if pos == cfg.GOP:
            a.vm(f"buffer_load_dword v223, v222, s[12:15], 0 offen {SC1}", "go"); pend.append(("go", None, 84 + 72))
    goload(0)
    ffn_dma(a, 3, vDF); pend.append((("F", 3), GATE(3), 84 + 72))
    mtouch(3)
    st(name="_i3")
    if cfg.AS == 3:
        while pend and pend[0][2] < 84 + 31: announce(pend.pop(0))
        att_setup()
    until("L_cons5", CONS(0), 84 + 31)
    st(name="_c5")
    goload(1)
    trying[0] = 1
    ffn_dma(a, 4, vDF); pend.append((("F", 4), GATE(4), 84 + 100))
    ffn_dma(a, 5, vDF); pend.append((("F", 5), GATE(5), 84 + 128))
    mtouch(5)
    until("L_cons6", CONS(1), 84 + 55)
    assert not any(p[0] == "go" for p in pend)
    trying[0] = False
    tryflag(True)
    st(name="_c6")
    ffn_dma(a, 6, vDF); pend.append((("F", 6), GATE(6), 84 + 156))
    mtouch(6)
    if cfg.AS == 1: att_setup()
    while pend: announce(pend.pop(0))
    a.vm = base_vm
    if cfg.EW:
        free("L_consw", CONS(2))
        for i in range(5):
            a(f"s_add_u32 m0, s56, {CB1 + 2048*i}")
            a(f"s_add_u32 s51, s{57 + i//4}, {(i%4)*16*896}")
            a.vm(f"buffer_load_dwordx4 v3, s[36:39], s51 offen lds", "wx")
            a.vm(f"buffer_load_dwordx4 v4, s[36:39], s51 offen offset:1024 lds", "wx")
    st(name="_cf6")
    def kvload(slot, j): return f"buffer_load_dwordx4 {vr(KV+16*slot+4*j,4)}, {vr(vL)}, s[4:7], s69 offen offset:{1024*j} {SC1}"
    kvadv = ["s_add_u32 s69, s69, 4096", "s_and_b32 s69, s69, 0xffff"]
    poll(a, "L_p1", "v2", "v1", "s[24:27]", "s68", 1, sleep=cfg.PS1)
    st(name="poll1")
    for j in (1, 2, 3, 0):
        for ks in range(2): a.vm(f"buffer_load_dwordx4 {vr(QL[j]+4*ks,4)}, {vr(vL)}, s[24:27], s{8+j} offen offset:{1024*ks} {SC1}", "q")
    for sl in range(3):
        for j in range(4): a.vm(kvload(sl, j), ("kv", sl))
        for x in kvadv: a(x)
    mtouch(7)
    a(f"s_setprio {cfg.PC}")
    QO = [1, 2, 3, 0]
    def qk(n, ks):
        kt, qt = (n//4) % 4, n % 4
        s = vr(S+16*(n&1), 16)
        return f"v_mfma_f32_32x32x16_bf16 {s}, {vr(KV+16*kt+4*ks,4)}, {vr(QL[QO[qt]]+4*ks,4)}, {'0' if ks==0 else s}"
    def pv(n, ks):
        kt, qt = (n//4) % 4, n % 4
        o = vr(O+16*QO[qt], 16)
        return f"v_mfma_f32_32x32x16_bf16 {o}, {vr(KV+16*kt+8+4*ks,4)}, {vr(PP+4*ks,4)}, {o}"
    a.wait(vm=("kv", 0))
    lds_add(a, "v12", "v14", HA-CNT)
    st(name="att0")
    if cfg.CWH: lds_wait(a, "L_cwh", "v12", "v2", cfg.CWH, sleep=1, off=HD-CNT)
    a(qk(0, 0)); a(qk(0, 1))
    a("s_nop 7"); a("s_nop 3")
    a.raw(".p2align 3")
    a("L_att:")
    def softmax(n, m, odd):
        sb = S + 16*(n & 1)
        for j in range(4):
            a(f"v_exp_f32{'_e64' if (odd and j == 1) else ''} v{sb+4*m+j}, v{sb+4*m+j}")
        for j in range(2): a(f"v_cvt_pk_bf16_f32 v{PP+2*m+j}, v{sb+4*m+2*j}, v{sb+4*m+2*j+1}")
    for n in range(16):
        kt, qt = n//4, n % 4
        ms = [qk(n+1, 0), qk(n+1, 1), pv(n-1, 1), pv(n, 0)]
        for m in range(4):
            a(ms[m])
            odd = False
            if n == 12 and m == 0:
                a("s_cbranch_scc1 L_last"); a("s_nop 0")
            if m == 0: a(kvload((kt+3) % 4, qt))
            if qt == 2 and m == 2 and kt == 0:
                a("s_add_u32 s55, s55, 1"); odd = True
            if n == 0 and m == 1 and asmlib.STAMP and cfg.ITS:
                a("s_mov_b64 s[96:97], s[94:95]"); a("s_mov_b64 s[94:95], s[92:93]"); a("s_mov_b64 s[92:93], s[90:91]"); a("s_memtime s[90:91]")
            if qt == 2 and m == 3: a("s_waitcnt vmcnt(9)"); odd = True
            if qt == 0 and m == 2: a("s_waitcnt vmcnt(9)"); odd = True
            if qt == 3 and m == 1: a(kvadv[0])
            if qt == 3 and m == 2: a(kvadv[1])
            if qt == 3 and m == 3 and kt == 0:
                a("s_cmp_eq_u32 s55, 4"); a("s_cselect_b32 s6, 0, s6")
            if qt == 3 and m == 3 and kt == 2: a("s_cmp_eq_u32 s55, 4"); odd = True
            softmax(n, m, odd)
    a("s_branch L_att")
    a.raw(".p2align 3")
    a("L_last:")
    def cwr(j, q): a(f"ds_write_b128 v{T+4+j}, {vr(O+16*j+4*q,4)} offset:{(j-1)*4096+q*1024}")
    for n in range(12, 16):
        ms = [qk(n+1, 0), qk(n+1, 1), pv(n-1, 1), pv(n, 0)] if n < 15 else [pv(14, 1), None, None, pv(15, 0)]
        for m in range(4):
            if n == 15 and m == 0: cwr(2, 0); cwr(2, 1)
            if ms[m] and not (n == 12 and m == 0): a(ms[m])
            odd = False
            if n == 12 and m == 0: a(f"ds_read_b32 v{T}, v12 offset:{HX}")
            if n == 12 and m == 2: a("s_waitcnt vmcnt(8) lgkmcnt(0)"); a(f"v_cmp_gt_u32 vcc, 4, v{T}")
            if n == 13 and m == 0:
                a("s_cbranch_vccnz L_hd"); a("L_hd_x:"); odd = True
            if n == 13 and m == 1: a(f"s_mov_b32 s42, {f2u(2.0**-64):#x}")
            if n == 13 and m == 2: a(f"s_mov_b32 s43, {f2u(2.0**64):#x}")
            if n == 14: cwr(1, m)
            if n == 15 and m == 1: cwr(2, 2); cwr(2, 3)
            if n == 15 and m >= 2: cwr(3, 2*m-4); cwr(3, 2*m-3)
            softmax(n, m, odd)
    a("s_setprio 2")
    a("s_waitcnt lgkmcnt(0)")
    a(pv(15, 1))
    st(name="attend")
    lds_add(a, "v12", "v14", CW)
    lds_wait(a, "L_cw", "v12", f"v{T}", 4, off=CW)
    st(name="_Tc")
    for q in (3, 0, 1, 2):
        for j in range(3):
            a.lg(f"ds_read_b128 {vr(O+16+16*j+4*q,4)}, v{T+4} offset:{j*4096+q*1024}", q)
    def add3(q):
        a.wait(lg=q)
        for r in range(4*q, 4*q+4): a(f"v_add_f32 v{O+r}, v{O+r}, v{O+16+r}")
        for r in range(4*q, 4*q+4): a(f"v_add_f32 v{O+32+r}, v{O+32+r}, v{O+48+r}")
        for r in range(4*q, 4*q+4): a(f"v_add_f32 v{O+r}, v{O+r}, v{O+32+r}")
    add3(3)
    a(f"v_mov_b32 v{T}, v{O+12}")
    a(f"v_mov_b32 v{T+1}, v{O+12}")
    add3(0)
    a(f"v_permlane32_swap_b32 v{T}, v{T+1}")
    add3(1)
    a(f"v_cmp_le_f32 vcc, s42, v{T+1}")
    a(f"v_cmp_ge_f32 s[56:57], s43, v{T+1}")
    a(f"v_rcp_f32 v{T}, v{T+1}")
    add3(2)
    a("s_and_b64 vcc, vcc, s[56:57]")
    a("s_cmp_eq_u64 vcc, -1")
    a("s_cbranch_scc0 L_slow")
    a("L_fin:")
    for r in range(8): a(f"v_mul_f32 v{O+r}, v{O+r}, v{T}")
    for r in range(4): a(f"v_cvt_pk_bf16_f32 v{PP+r}, v{O+2*r}, v{O+2*r+1}")
    a.vm(f"buffer_store_dwordx4 {vr(PP,4)}, {vr(vL)}, s[24:27], s67 offen {SC1}", "st")
    for r in range(8, 16): a(f"v_mul_f32 v{O+r}, v{O+r}, v{T}")
    for r in range(4, 8): a(f"v_cvt_pk_bf16_f32 v{PP+r}, v{O+2*r}, v{O+2*r+1}")
    a(f"v_cndmask_b32 v{PP+6}, v{PP+6}, 0, s[40:41]")
    a(f"v_cndmask_b32 v{PP+7}, v{PP+7}, 0, s[40:41]")
    a.vm(f"buffer_store_dwordx4 {vr(PP+4,4)}, {vr(vL)}, s[24:27], s67 offen offset:1024 {SC1}", "st")
    st(name="_prefl2")
    a("v_mov_b32 v13, 0")
    a.wait(vm="all")
    arrive(a, "v13", "v12", "v14", 2)
    a.wait(lg="all")
    flag_if_last(a, "v13", "v14", "s60")
    st(name="fl2")
    if asmlib.STAMP and cfg.ITS:
        assert st.n <= 10
        st.n = 14; st.names += ["it"]*4
    a("L_c_end:")
    st.flush(63, 8)
    a("L_end:")
    a("s_endpgm")
    a("L_go:")
    poll(a, "L_p0", "v223", "v222", "s[12:15]", "0", 1)
    a("s_branch L_go_x")
    lds_wait(a, "L_hd", "v12", f"v{T}", 4, off=HX)
    a("s_branch L_hd_x")
    S1 = S + 16
    a("L_slow:")
    a("s_lshl_b32 s56, s65, 18")
    a(f"s_add_u32 s56, s56, {WS_KV}")
    a("s_mov_b32 s57, s56")
    a("s_mov_b32 s55, 64")
    a(f"v_mov_b32 v{T+2}, 0xff800000")
    a("s_waitcnt vmcnt(0)")
    a("L_slow1:")
    for j in range(2): a(f"buffer_load_dwordx4 {vr(KV+4*j,4)}, {vr(vL)}, s[24:27], s57 offen offset:{1024*j} {SC1}")
    a("s_waitcnt vmcnt(0)")
    a(qk(3, 0)); a(qk(3, 1))
    a("s_nop 7"); a("s_nop 7")
    for r in range(8): a(f"v_max3_f32 v{T+2}, v{S1+2*r}, v{S1+2*r+1}, v{T+2}")
    a("s_add_u32 s57, s57, 4096")
    a("s_sub_u32 s55, s55, 1"); a("s_cmp_lg_u32 s55, 0")
    a("s_cbranch_scc1 L_slow1")
    a(f"v_mov_b32 v{T+3}, v{T+2}")
    a("s_nop 1")
    a(f"v_permlane32_swap_b32 v{T+3}, v{T+2}")
    a("s_nop 1")
    a(f"v_max_f32 v{T+2}, v{T+2}, v{T+3}")
    for r in range(16): a(f"v_mov_b32 v{O+r}, 0")
    a("s_mov_b32 s55, 64")
    a("L_slow2:")
    for j in range(4): a(f"buffer_load_dwordx4 {vr(KV+4*j,4)}, {vr(vL)}, s[24:27], s56 offen offset:{1024*j} {SC1}")
    a("s_waitcnt vmcnt(0)")
    a(qk(3, 0)); a(qk(3, 1))
    a("s_nop 7"); a("s_nop 7")
    for r in range(16): a(f"v_sub_f32 v{S1+r}, v{S1+r}, v{T+2}")
    for r in range(16): a(f"v_exp_f32 v{S1+r}, v{S1+r}")
    a("s_nop 0")
    for r in range(8): a(f"v_cvt_pk_bf16_f32 v{PP+r}, v{S1+2*r}, v{S1+2*r+1}")
    a("s_nop 1")
    a(pv(3, 0)); a(pv(3, 1))
    a("s_add_u32 s56, s56, 4096")
    a("s_sub_u32 s55, s55, 1"); a("s_cmp_lg_u32 s55, 0")
    a("s_cbranch_scc1 L_slow2")
    a("s_nop 7"); a("s_nop 7")
    a(f"v_mov_b32 v{T}, v{O+12}")
    a(f"v_mov_b32 v{T+1}, v{O+12}")
    a("s_nop 1")
    a(f"v_permlane32_swap_b32 v{T}, v{T+1}")
    a("s_nop 1")
    a(f"v_rcp_f32 v{T}, v{T+1}")
    a("s_nop 0")
    a("s_branch L_fin")
    a("L_code_end:")

def gen_h(a, st):
    X0 = 16; ACCF = 128; AQ = 192
    AS = 144; vR = 148; LT = 152; vXD = 160; vX = 164; vTQ = 168; t = 172
    vTF = 1; vC = 3; vOne = 4; vG = 5; vL = 7
    a("s_setprio 1")
    mapping(a)
    a(f"v_lshrrev_b32 v{t+2}, 3, v0")
    a("s_lshl_b32 s51, s52, 5")
    a(f"v_add_u32 v{t+2}, s51, v{t+2}")
    a(f"v_mul_u32_u24 v{t+2}, 896, v{t+2}")
    a(f"v_lshrrev_b32 v{t+3}, 4, v0")
    a(f"v_and_b32 v{t+4}, 7, v0")
    a(f"v_xor_b32 v{t+3}, v{t+3}, v{t+4}")
    a(f"v_lshl_add_u32 {vr(vXD)}, v{t+3}, 4, v{t+2}")
    a(f"v_xor_b32 v{t+3}, 64, {vr(vXD)}")
    a(f"v_add_u32 {vr(vXD+1)}, 6144, v{t+3}")
    a(f"v_add_u32 {vr(vXD+2)}, {2*6144}, {vr(vXD)}")
    a(f"v_add_u32 {vr(vXD+3)}, {3*6144}, v{t+3}")
    if cfg.XT < 9:
        assert cfg.MAP == 1 and cfg.ROT == 0
        for s_ in (f"v_bfe_u32 v{t+5}, v0, 2, 2", f"v_mul_u32_u24 v{t+5}, 896, v{t+5}", f"v_and_b32 v{t+6}, 3, v0", f"v_lshl_add_u32 v{t+5}, v{t+6}, 7, v{t+5}",
                   "s_lshl_b32 s56, s52, 3", "s_add_u32 s56, s56, s50", f"s_mul_i32 s56, s56, {4*896}", "s_add_u32 s56, s56, 384"): a(s_)
    a(f"s_mul_i32 s53, s44, {AR}")
    a(f"s_add_u32 s53, s53, {XS}")
    a("s_lshl_b32 s55, s3, 7")
    a(f"s_mov_b32 s30, {2048*448*2}")
    a("s_mov_b32 s31, 0x00020000")
    a("s_mov_b32 m0, s53")
    a("s_waitcnt lgkmcnt(0)")
    a("s_mov_b32 s28, s4"); a("s_mov_b32 s29, s5")
    st(name="_h0")
    def xload(cb):
        for rg in range(4):
            a.vm(f"buffer_load_dwordx4 {vr(vXD+rg)}, s[28:31], s55 offen offset:{rg*1024} lds", ("x", cb))
        if cb < 6:
            a(f"s_add_u32 m0, s53, {(cb+1)*4096}")
            a("s_add_u32 s55, s55, 128"); a("s_cmp_ge_u32 s55, 896"); a("s_cselect_b32 s55, 0, s55")
    for cb in range(cfg.XA - 1):
        xload(cb)
        if cb == cfg.XT:
            a.vm(f"buffer_load_dword v255, v{t+5}, s[28:31], s56 offen", "pf")
    ws_srd(a)
    xread_addr(a, vX, t)
    for i in range(4): a(f"v_mov_b32 v{AS+i}, 0")
    a(f"v_mov_b32 v{t+10}, 0")
    a(f"v_mov_b32 v{t+8}, 0x3f803f80")
    a("s_mov_b32 s61, 0xffff0000")
    a(f"v_mov_b32 {vr(vOne)}, 1")
    a(f"v_mov_b32 {vr(vC)}, {CNT}")
    a(f"v_lshlrev_b32 {vr(vL)}, 4, v0")
    a(f"v_and_b32 v{t+9}, 31, v0")
    a(f"v_cmp_eq_u32 vcc, 28, v{t+9}")
    a(f"v_lshl_add_u32 v{t+9}, v{t+9}, 2, {vr(vC)}")
    sigma(a, "s60", "s46")
    a(f"v_cndmask_b32 v6, 0, v{t+8}, vcc")
    a(f"v_lshrrev_b32 v{t+5}, 5, v0")
    a(f"v_bfe_u32 v{t+2}, v0, 2, 2")
    a(f"v_lshl_add_u32 v{t+2}, v{t+5}, 3, v{t+2}")
    a(f"v_and_b32 v{t+3}, 3, v0")
    a(f"v_bfe_u32 v{t+4}, v0, 4, 1")
    a(f"v_mul_u32_u24 v{t+5}, 224, v{t+2}")
    a(f"v_lshl_add_u32 v{t+5}, v{t+3}, 3, v{t+5}")
    a(f"v_mul_u32_u24 v{t+6}, {OU}, v{t+4}")
    a(f"v_add_u32 {vr(vTF)}, v{t+5}, v{t+6}")
    a(f"v_mul_u32_u24 v{t+6}, {2*AR+128}, v{t+4}")
    a(f"v_add_u32 v{t+5}, {XS-128}, v{t+5}")
    a(f"v_add_u32 {vr(vTF+1)}, v{t+5}, v{t+6}")
    a(f"v_mul_u32_u24 v{t+5}, 192, v{t+2}")
    a(f"v_lshl_add_u32 v{t+5}, v{t+3}, 3, v{t+5}")
    a(f"v_lshl_add_u32 v{t+5}, v{t+4}, 5, v{t+5}")
    a("s_and_b32 s51, s60, 1")
    a("s_lshl_b32 s51, s51, 3")
    a(f"v_add_u32 {vr(vTQ)}, s51, v{t+5}")
    a(f"v_add_u32 {vr(vTQ+1)}, {XS}, {vr(vTQ)}")
    a(f"v_add_u32 {vr(vTQ+2)}, {XS+2*AR}, {vr(vTQ)}")
    a("s_mul_i32 s54, s60, 3")
    for i in range(3):
        a(f"s_add_u32 s51, s54, {i}")
        a(f"s_lshr_b32 s62, s51, 4")
        a("s_and_b32 s51, s51, 15")
        a("s_lshl_b32 s51, s51, 6")
        a("s_add_u32 s51, s51, s52")
        a("s_lshl_b32 s56, s51, 11")
        a("s_lshl_b32 s57, s51, 12")
        a(f"s_lshl_b32 s58, s62, 11")
        a("s_add_u32 s57, s57, s58")
        a(f"s_add_u32 s57, s57, {WS_KV-2048}")
        a(f"s_cmp_eq_u32 s62, 0")
        a(f"s_cselect_b32 s{32+i}, s56, s57")
        a(f"s_cselect_b32 s{35+i}, {f2u(QSCALE):#x}, 1.0")
    a("s_mov_b32 s42, 0"); a("s_mov_b32 s43, -1")
    a("s_mov_b32 s38, 0x0fffffff"); a("s_mov_b32 s39, 0x0fffffff")
    st(name="_hsetup")
    xload(cfg.XA - 1)
    def dots(cb):
        for r in range(X0+16*cb, X0+16*cb+16):
            a(f"v_dot2c_f32_bf16 v{AS+(r&1)}, v{r}, v{t+8}")
            a(f"v_dot2c_f32_bf16 v{AS+2+(r&1)}, v{r}, v{r}")
    for cb in range(7):
        a.wait(vm=("x", cb))
        st(name=("" if cb == 6 else "_") + f"x{cb}")
        for sp in range(4): a.lg(f"ds_read_b128 {vr(X0+16*cb+4*sp,4)}, {vr(vX+sp)} offset:{cb*4096}", ("x", cb))
        if cb + cfg.XA < 7: xload(cb + cfg.XA)
        if cb == cfg.BX: a("s_barrier")
        if cb == 6:
            a("s_cmp_lg_u32 s44, 1")
            a("s_cbranch_scc1 L_nocnt")
            a(f"ds_write_b32 v{t+9}, v{t+10}")
            a("L_nocnt:")
        if cb:
            a.wait(lg=("x", cb-1)); dots(cb-1)
    a.wait(lg="all")
    a("s_barrier")
    dots(6)
    a(f"s_mov_b32 s51, {f2u(1/448):#x}")
    a(f"s_mov_b32 s55, {f2u(1e-5):#x}")
    a("s_nop 0")
    a(f"v_add_f32 v{AS}, v{AS}, v{AS+1}")
    a(f"v_add_f32 v{AS+2}, v{AS+2}, v{AS+3}")
    a(f"v_mov_b32 v{AS+1}, v{AS}")
    a(f"v_mov_b32 v{AS+3}, v{AS+2}")
    a("s_nop 1")
    a(f"v_permlane32_swap_b32 v{AS+1}, v{AS}")
    a(f"v_permlane32_swap_b32 v{AS+3}, v{AS+2}")
    a("s_nop 1")
    a(f"v_add_f32 v{AS}, v{AS}, v{AS+1}")
    a(f"v_add_f32 v{AS+2}, v{AS+2}, v{AS+3}")
    a(f"v_mul_f32 v{AS}, s51, v{AS}")
    a(f"v_mul_f32 v{AS+2}, s51, v{AS+2}")
    a(f"v_fma_f32 v{AS+2}, -v{AS}, v{AS}, v{AS+2}")
    a(f"v_max_f32 v{AS+2}, 0, v{AS+2}")
    a(f"v_add_f32 v{AS+2}, s55, v{AS+2}")
    a(f"v_rsq_f32 v{vR}, v{AS+2}")
    a("s_nop 0")
    a(f"v_mul_f32 v{vR+1}, -v{AS}, v{vR}")
    st(name="_t0")
    def ln_pk(k):
        for i in range(4):
            r = X0 + 4*k + i
            a(f"v_lshlrev_b32 v{LT+2*i}, 16, v{r}"); a(f"v_and_b32 v{LT+2*i+1}, s61, v{r}")
        for i in range(4): a(f"v_pk_fma_f32 {vr(LT+2*i,2)}, {vr(LT+2*i,2)}, {vr(vR,2)}, {vr(vR,2)} op_sel:[0,0,1] op_sel_hi:[1,0,1]")
        for i in range(4): a(f"v_cvt_pk_bf16_f32 v{X0+4*k+i}, v{LT+2*i}, v{LT+2*i+1}")
    K0 = cfg.K0; KT = 28 - K0; NA = 84
    KQ = cfg.KQ
    order = [("q", k, tl) for k in range(KQ) for tl in range(3)] + [("q", k, tl) for tl in range(3) for k in range(KQ, 28)]
    nxt = [0]*7; AV = [0, 0, 0, 0] + list(cfg.AV)
    for ff in range(7*K0):
        tl = min((t_ for t_ in range(7) if ff >= AV[t_] and nxt[t_] < K0), key=lambda t_: (nxt[t_], t_))
        order.append(("f", nxt[tl], tl)); nxt[tl] += 1
    order += [("f", k, tl) for tl in range(7) for k in range(K0, 28)]
    lastq = {tl: max(f for f in range(NA) if order[f][2] == tl) for tl in range(3)}
    chunk = lambda f: order[f][1] // 4 + (7 if order[f][0] == "f" else 0)
    first = {c: min(f for f in range(len(order)) if chunk(f) == c) for c in range(14)}
    last = {c: max(f for f in range(len(order)) if chunk(f) == c) for c in range(14)}
    xlast = {max(f for f in range(len(order)) if order[f][1] == k): k for k in range(6)}
    LE = min(79, lastq[0] - 2 - (1 if KQ < 26 else 0))
    JOIN = last[7] + 1
    NM = len(order); SC = NA + 7*K0
    HP = 52
    ACC = 16; HR = 80; W = 112; WREG = 128
    vD = 12; vD2 = 2; vT0 = 8; vT1 = 9; vP = 10; vL1 = 11; u = 44
    SK = [70, 71, 72, 73, 74, 75, 76]
    late = tilemap(a) + ["s_and_b32 s40, s44, 1", "s_lshr_b32 s41, s44, 1", f"s_mul_i32 s77, s44, {RNG}",
            f"s_mul_i32 s65, s52, {144*1024}", f"s_mul_i32 s51, s46, {7*1024}", "s_add_u32 s65, s65, s51", f"s_add_u32 s65, s65, {WS_A}", "s_add_u32 s66, s65, 4096",
            "s_lshl_b32 s46, s50, 7", f"s_mul_i32 s0, s44, {448*896}", "s_add_u32 s0, s0, s46",
            f"s_mul_i32 s1, s40, {8*28*128}", f"s_add_u32 s1, s1, {WOS}", "s_sub_u32 s1, s1, s77",
            f"s_mul_i32 s51, s49, {2*144*1024}", f"s_mul_i32 s55, s44, {28*1024}", "s_add_u32 s55, s55, s51", f"s_add_u32 s55, s55, {WS_A}",
            f"s_mul_i32 s21, s41, {144*1024}", "s_add_u32 s20, s55, s21", "s_add_u32 s69, s51, s21", "s_sub_u32 s21, s55, s21", f"s_add_u32 s21, s21, {144*1024}",
            "s_lshl_b32 s51, s40, 14", "s_add_u32 s69, s69, s51", f"s_add_u32 s69, s69, {WS_A+112*1024}",
            "s_lshr_b32 s68, s49, 1", "s_lshl_b32 s68, s68, 11",
            "s_lshl_b32 s51, s44, 9", "s_add_u32 s47, s68, s51", f"s_add_u32 s47, s47, {WS_F+32768}",
            "s_lshl_b32 s51, s40, 10", "s_add_u32 s68, s68, s51", f"s_add_u32 s68, s68, {WS_F+65536}",
            "s_lshl_b32 s45, s49, 1", "s_add_u32 s45, s45, s41", "s_lshl_b32 s45, s45, 5",
            f"s_mul_i32 s7, s44, {14*1024}", f"s_mul_i32 s6, s44, {14*8*896}", "s_add_u32 s6, s6, s46",
            "s_lshl_b32 s51, s40, 6", "s_add_u32 s46, s46, s51", "s_mov_b32 s51, s64", "s_add_u32 s59, s59, 32768"]
    for g in range(7):
        late.append(f"s_lshl_b32 s{SK[g]}, s51, 12")
        if g < 6: late += ["s_add_u32 s51, s51, 1", "s_cmp_ge_u32 s51, 7", "s_cselect_b32 s51, 0, s51"]
    b_ = Asm(); srd(b_, 28, 16, 1792*448*2); srd(b_, 12, 8, 448*448*2); srd(b_, 8, 4, 2048*448*2)
    late += [l.strip() for l in b_.L]
    late += [f"v_lshrrev_b32 v{u}, 3, v0", f"v_bfe_u32 v{u+3}, v0, 4, 1", f"v_lshlrev_b32 v{u+1}, 2, v{u+3}", f"v_and_b32 v{u+2}, 7, v0",
             f"v_xor_b32 v{u+2}, v{u+2}, v{u+1}", f"v_mul_u32_u24 v{u}, 896, v{u}", f"v_lshl_add_u32 {vr(vD)}, v{u+2}, 4, v{u}",
             f"v_bfe_u32 v{u}, v0, 2, 2", f"v_lshrrev_b32 v{u+4}, 5, v0", f"v_lshl_add_u32 v{u+1}, v{u+4}, 2, v{u}", f"v_lshlrev_b32 v{u+1}, 7, v{u+1}",
             f"v_and_b32 v{u+2}, 3, v0", f"v_lshl_add_u32 v{u+1}, v{u+2}, 3, v{u+1}", f"v_lshl_add_u32 v{u+1}, v{u+3}, 5, v{u+1}", f"v_lshrrev_b32 v{u}, 1, v{u}",
             f"v_xor_b32 v{u}, s40, v{u}", f"v_lshl_add_u32 v{u+1}, v{u}, 6, v{u+1}", f"v_add_u32 {vr(vT0)}, s77, v{u+1}", f"v_xor_b32 {vr(vT1)}, 64, {vr(vT0)}",
             f"v_and_b32 v{u}, 31, v0", f"v_add_u32 v{u}, s45, v{u}", f"v_mul_u32_u24 v{u}, 896, v{u}", f"v_lshl_add_u32 v{u}, v{u+4}, 4, v{u}", f"v_add_u32 v6, s46, v{u}",
             f"v_add_u32 v13, s1, {vr(vT0)}", "v_xor_b32 v14, 64, v13",
             f"v_bfe_u32 {vr(vP)}, v0, 1, 2", f"v_lshlrev_b32 {vr(vP)}, 7, {vr(vP)}",
             f"v_add_u32 v15, s20, {vr(vL)}", f"v_add_u32 {vr(vL1)}, s21, {vr(vL)}"]
    early = ["s_lshl_b32 s59, s45, 4", "s_add_u32 s59, s59, s46", "s_lshl_b32 s59, s59, 7", f"s_add_u32 s59, s59, {WS_F}", "v_mov_b32 v6, 0"]
    class Z: pass
    z = Z()
    tmp = [128, 132, 136, 140]
    z.pool = [240, 244, 248, 252, 8, 12] + tmp; z.freg = {}; z.rp = 0; z.waited = -1; z.lim = 1; z.epiq = []
    z.lq = []
    for k in range(cfg.LPRE, 28): z.lq += [(k, o) for o in ln_ops(X0, k, LT, vR, 4)]
    checks = {first[2] - 7: ("gq24", GQ1, 3), first[4] - 7: ("gq48", GQ2, 4), first[5] - 7: ("gq60", GQ3, 5), first[6] - 7: ("gq72", GQ4, 6), NA - 7: ("gate0", GATE(0), 7)}
    GL = [1, 2] + ([3] if cfg.G23 else []) + [4, 5] + ([6] if K0 == 24 else [])
    for g in GL: checks[first[7+g] - 8] = (f"gate{g}", GATE(g), 10 if (g == 2 and not cfg.G23) else 7 + g if g < GL[-1] else 13)
    assert all(b - a_ >= 4 for a_, b in zip(sorted(checks), sorted(checks)[1:]))
    ool = []
    def frag(f):
        p, k, tl = order[f]; g, sp = k // 4, k % 4
        c = [r_ for r_ in z.pool if not (r_ in tmp and f >= NA)]
        if not c: return False
        reg = c[0]; z.pool.remove(reg); z.freg[f] = reg
        for rd in range(2):
            if p == "q":
                if g < 4: ad, off = vTQ, g*12288 + 16*sp*192
                else: ad, off = vTQ + 1 + sp//2, (sp % 2)*AR + QA[g]
                off += 4*rd*192 + tl*56
            else:
                if FSLOT[g] == "D": ad, off = vTF, 16*sp*224
                else: ad, off = vTF+1, FA[FSLOT[g]] + (sp//2)*AR + 16*(sp % 2)*224
                off += 4*rd*224 + tl*32
            a.lg(f"ds_read_b64_tr_b16 {vr(reg+2*rd,2)}, {vr(ad)} offset:{off}", ("f", f))
        return True
    def epi_q(tl, var):
        b = AQ + 16*tl
        o = [] if var else [f"v_mul_f32 v{b+r}, s{35+tl}, v{b+r}" for r in range(16)]
        o += [f"v_cvt_pk_bf16_f32 v{b+r}, v{b+2*r}, v{b+2*r+1}" for r in range(8)]
        o += [f"v_cndmask_b32 v{b+r}, v6, v{b+r}, s[38:39]" for r in range(8)] if var else [f"v_cndmask_b32 v{b+r}, v{b+r}, 0, s[42:43]" for r in (6, 7)]
        if tl == 2 and not var: o.append(("mix",))
        o += [("vm", f"buffer_store_dwordx4 {vr(b+4*q,4)}, {vr(vL)}, s[24:27], s{32+tl} offen offset:{1024*q} {SC1}") for q in range(2)]
        return [(tl, x) for x in o]
    def epi_f(tl):
        b = ACCF + 16*tl
        return [(None, x) for x in [f"v_max_f32 v{b+r}, 0, v{b+r}" for r in range(8)] + [f"v_mul_f32 v{b+r}, v{b+r}, v{b+8+r}" for r in range(8)] +
                [f"v_cvt_pk_bf16_f32 v{HP+4*tl+r}, v{b+2*r}, v{b+2*r+1}" for r in range(4)]]
    epi_at = {SC + KT*tl + KT - 1 + 3: epi_f(tl) for tl in range(7)}
    def put(x):
        if isinstance(x, str): a(x); return 1
        if x[0] == "vm": a.vm(x[1], "st"); return 4
        a("s_cmp_eq_u32 s60, 10"); a("s_cbranch_scc1 L_mix"); a("L_mix_x:"); return 2
    def stream(lo, hi, var):
        sfx = "v" if var else ""
        for f in range(lo, hi):
            p, k, tl = order[f]; ff = f - NA
            used = 0
            if p == "f" and tl >= 4 and k == 0:
                flushed = False
                while any(e[0] is not None and e[0] <= tl - 4 for e in z.epiq): put(z.epiq.pop(0)[1]); flushed = True
                if flushed: a("s_nop 1")
            if f > z.waited:
                z.waited = min(NM-1, f + (2 if p == "q" else 1 if z.rp - f < 7 else 3), z.rp-1)
                assert z.waited >= f
                wait_lg_tags(a, [("f", z.waited)])
            assert not z.lq or z.lq[0][0] > k
            acc = vr((AQ if p == "q" else ACCF) + 16*tl, 16)
            ab = [vr(z.freg[f], 4), vr(X0+4*k, 4)]
            sw = var if p == "q" else 0
            a(f"v_mfma_f32_32x32x16_bf16 {acc}, {ab[sw]}, {ab[1-sw]}, {'0' if k == 0 else acc}")
            st(name=f"_a{f}" if p == "q" else f"_f{ff}")
            if f == z.waited: used += 1
            if f >= 1 and not (z.freg[f-1] in (8, 12) and f > max(xlast)): z.pool.append(z.freg[f-1])
            if f - 1 in xlast: z.pool.append(X0 + 4*xlast[f-1])
            for t_ in range(3):
                if f == lastq[t_] + 3: z.epiq += epi_q(t_, var)
            if f == JOIN + 2: z.epiq += [(None, x) for x in early]
            if f in epi_at: z.epiq += epi_at.pop(f)
            sig = {33: CQ2, 57: CE, last[7]: CONS(0), last[8]: CONS(1)}
            if cfg.EW: sig[last[9]] = CONS(2)
            if f in sig:
                if f < NA: assert z.waited >= f + 2
                lds_add(a, vr(vC), vr(vOne), sig[f], "c"); used += 3
            if f == 81: st(name="b7")
            if f + 3 in checks:
                a.lg(f"ds_read_b32 {vr(vG)}, {vr(vC)} offset:{checks[f+3][1]}", "g"); used += 1
            if f + 1 in checks:
                a.wait(lg="g"); a(f"v_cmp_gt_u32 vcc, 4, {vr(vG)}"); used += 2
            if f in checks:
                lab = f"L_{checks[f][0]}{sfx}"
                st(name=f"_pre{checks[f][0]}")
                a(f"s_cbranch_vccnz {lab}"); a(f"{lab}_x:"); used += 1
                ool.append((lab, checks[f][1]))
                z.lim = checks[f][2]
                st(name=f"_{checks[f][0]}")
            if ff == cfg.FL:
                assert not z.epiq
                st(name="_prefl0")
                a.wait(vm="all")
                if cfg.CF: lds_add(a, vr(vC), vr(vOne), AF, "c"); st(name="fl0")
                else: arrive(a, "v6", vr(vC), vr(vOne), 0, "ar")
                used += 4
            if ff == cfg.FL + 3 and not cfg.CF:
                a.wait(lg="ar")
                flag_if_last(a, "v6", vr(vOne), "s59"); used += 5
                st(name="fl0")
            if cfg.SA and used <= 1 and z.epiq and isinstance(z.epiq[0][1], tuple) and z.epiq[0][1][0] == "vm" and z.rp > f + 3 and f < JOIN - 4:
                put(z.epiq.pop(0)[1]); continue
            n = 0
            while z.rp < NM and chunk(z.rp) <= z.lim and z.rp <= f + 8 and n < 2 and frag(z.rp):
                z.rp += 1; n += 1; used += 2
            take = -(-len(z.lq) // max(1, LE - f))
            for q in range(min(take, len(z.lq))): a(z.lq.pop(0)[1]); used += 1
            while z.epiq and used < (cfg.SLOTS if ff < cfg.LP0 else 8):
                if cfg.SA and isinstance(z.epiq[0][1], tuple) and z.epiq[0][1][0] == "vm":
                    c = [q for q, e in enumerate(z.epiq) if isinstance(e[1], str)]
                    if not c: break
                    used += put(z.epiq.pop(c[0])[1])
                else: used += put(z.epiq.pop(0)[1])
            if ff >= cfg.LP0 and used < cfg.LPN: a(f"s_nop {cfg.LPN - used - 1}")
            if ff > max(cfg.FL + 5, 72):
                assert 8 not in z.pool and 12 not in z.pool and all(z.freg[q] not in (8, 12) for q in range(f, z.rp))
                n = 0
                while late and used < cfg.SLOTS - 1 and n < 2: a(late.pop(0)); used += 1; n += 1
    a.raw(".p2align 3")
    for k in range(cfg.LPRE - cfg.LP2 - 1): ln_pk(k)
    a(f"ds_read_b32 {vr(vG)}, {vr(vC)} offset:{GQ0}")
    ln_pk(cfg.LPRE - cfg.LP2 - 1)
    st(name="_p0")
    a("s_waitcnt lgkmcnt(0)")
    a(f"v_cmp_gt_u32 vcc, 4, {vr(vG)}")
    a("s_cmp_ge_u32 s60, 11")
    a("s_nop 2")
    a("s_cbranch_vccnz L_gq0"); a("L_gq0_x:"); ool.append(("L_gq0", GQ0))
    st(name="b0")
    for k in range(7): frag(k); z.rp += 1
    for k in range(cfg.LPRE - cfg.LP2, cfg.LPRE): ln_pk(k)
    a("s_cbranch_scc1 L_pav")
    import copy
    saved = (list(a.vmq), list(a.lgq), st.n, list(st.names), len(a.L), copy.deepcopy(z.__dict__))
    a.raw(".p2align 3")
    a("L_pav:")
    stream(0, JOIN, 1)
    a("s_branch L_pav_x")
    endv = (list(a.vmq), list(a.lgq), copy.deepcopy(z.__dict__))
    vcode = a.L[saved[4]:]; a.L = a.L[:saved[4]]
    a.vmq, a.lgq, st.n, st.names = saved[0], saved[1], saved[2], saved[3]
    z.__dict__.update(saved[5])
    stream(0, JOIN, 0)
    assert endv == (a.vmq, a.lgq, z.__dict__)
    a("L_pav_x:")
    stream(JOIN, NM, 0)
    assert not late
    lds_add(a, vr(vC), vr(vOne), HD-CNT)
    for e in z.epiq: put(e[1])
    a(f"v_add_u32 {vr(vD2)}, {8*896-1024}, {vr(vD)}")
    a("v_mov_b32 v1, 0")
    a("s_nop 5")
    for k in sorted(epi_at):
        for e in epi_at[k]: put(e[1])
    st(name="hg1")
    assert cfg.HST == 0
    def pace(n):
        if len(a.vmq) > n:
            a(f"s_waitcnt vmcnt({n})"); a.vmq = a.vmq[len(a.vmq)-n:]
    def hstore(tl): a.vm(f"buffer_store_dwordx4 {vr(HP+4*tl,4)}, {vr(vL)}, s[24:27], {'s65' if tl < 4 else 's66'} offen offset:{1024*(tl%4)} {SC1}", "st")
    def hflag():
        arrive(a, "v1", vr(vC), vr(vOne), 1)
        a.wait(lg="all")
        flag_if_last(a, "v1", vr(vOne), "s59")
    if cfg.HST != 1: lds_wait(a, "L_ha", vr(vC), "v5", 4, sleep=2, off=HA-CNT)
    st(name="_ha")
    keep = list(a.vmq)
    a("s_cmp_lt_u32 s50, 7")
    a("s_cbranch_scc1 L_htile")
    lds_add(a, vr(vC), vr(vOne), HX)
    for tl in range(7 if cfg.HST == 0 else 0):
        pace(1); hstore(tl)
    a.wait(vm="all"); hflag()
    a("s_branch L_h_end")
    a("L_htile:")
    a.vmq = keep
    for i in range(2): a.vm(f"buffer_load_dwordx4 {vr(HR+4*i,4)}, v6, s[8:11], 0 offen offset:{32*i}", "x")
    lds_wait(a, "L_hdh", vr(vC), "v5", 4, off=HD-CNT)
    def slot(i): return (CB1 + 2048*i) if i < 6 else RB + 2048*((i - 6) % 6)
    def wdma(i, half):
        if half == 0:
            a(f"s_add_u32 m0, s77, {slot(i)}")
            a(f"s_mul_i32 s4, s{SK[i//4]}, 14")
            a("s_add_u32 s4, s4, s0")
            if i % 4: a(f"s_add_u32 s4, s4, {(i%4)*16*896}")
            a.vm(f"buffer_load_dwordx4 {vr(vD)}, s[28:31], s4 offen lds", ("w", i))
        else:
            a.vm(f"buffer_load_dwordx4 {vr(vD2)}, s[28:31], s4 offen offset:1024 lds", ("w", i))
    def wodma(k):
        a(f"s_add_u32 m0, s7, {WOS+k*1024}")
        a(f"s_add_u32 s5, s6, {k*8*896}")
        a.vm(f"buffer_load_dwordx4 {vr(vD)}, s[12:15], s5 offen lds", "wo")
    wlate = {}
    def wreg(i): return wlate[i] if i >= 22 else WREG + 8*(i-6) if i >= 6 else W + 8*(i & 1)
    def reads(i):
        for ct in range(2):
            for r_ in range(2):
                a.lg(f"ds_read_b64_tr_b16 {vr(wreg(i)+4*ct+2*r_,2)}, {vr(vT0+ct)} offset:{slot(i)+r_*1024}", ("r", i))
    wq = [(i, half) for i in range(5 if cfg.EW else 0, 28) for half in range(2)]
    woq = list(range(14))
    rd = [6]
    def rd1():
        if len(a.lgq) >= 11: a.wait(lg="all")
        a.wait(vm=("w", rd[0])); reads(rd[0]); rd[0] += 1
    def drain():
        while rd[0] < 22 and (not wq or wq[0][0] > rd[0]) and a._cnt(a.vmq, ("w", rd[0])) is None: rd1()
    def wop(v):
        i, half = wq.pop(0)
        if half == 0 and i >= 12:
            while rd[0] <= i - 6: rd1()
            a.wait(lg=("r", i-6))
        pace(v); wdma(i, half)
        if half: drain()
    nst = 0; flagged = False
    for n in range(cfg.PRE + cfg.WOP // 2):
        V1 = cfg.V1 if n < cfg.VN else cfg.V1B
        for q in range(cfg.HSN):
            if nst < 7 and n % cfg.HSI == 0:
                pace(V1); hstore(nst); nst += 1
        for half in range(2):
            if n < cfg.PRE: wop(V1)
            else: pace(V1); wodma(woq.pop(0))
        if n == 3:
            assert a._cnt(a.vmq, "x") is None
            for b in (0, 4):
                a(f"v_permlane32_swap_b32 v{HR+b}, v{HR+b+2}")
                a(f"v_permlane32_swap_b32 v{HR+b+1}, v{HR+b+3}")
            a("s_mov_b32 s51, 0xffff0000")
            for i in range(8):
                a(f"v_lshlrev_b32 v{ACC+2*i}, 16, v{HR+i}")
                a(f"v_and_b32 v{ACC+2*i+1}, s51, v{HR+i}")
            srd(a, 8, 18, 2048*448*2)
        if nst == 7 and not flagged and a._cnt(a.vmq, "st") is None:
            hflag(); flagged = True
            st(name="hfl1")
    assert flagged
    st(name="hpre")
    poll(a, "L_p2", "v5", vr(vP), "s[24:27]", "s47", 1, sleep=8)
    st(name="hpoll2")
    a(f"v_and_b32 {vr(vP)}, 7, v0")
    a(f"v_lshlrev_b32 {vr(vP)}, 7, {vr(vP)}")
    a(f"s_setprio {cfg.PH2}")
    hpool = [HR + 8*k for k in range(4)]
    hreg = {}
    nh = [0]
    def hload(i, tt):
        if tt == 0: hreg[i] = hpool.pop(0)
        a.vm(f"buffer_load_dwordx4 {vr(hreg[i]+4*tt,4)}, {vr(15 if tt == 0 else vL1)}, s[24:27], s{SK[i//4]} offen offset:{1024*(i%4)} {SC1}", ("h", i))
    def next_op(v):
        k = nh[0]
        if wq and wq[0][1] == 1: wop(v)
        elif k < 56 and (k % 2 or hpool): pace(v); hload(k // 2, k % 2); nh[0] += 1
        elif wq: wop(v)
        elif woq: pace(v); wodma(woq.pop(0))
        else: return False
        drain()
        return True
    for k in range(8): next_op(cfg.V2)
    if len(a.lgq) >= 11: a.wait(lg="all")
    reads(0)
    assert 6 <= cfg.N1 <= cfg.EP <= 19
    NL = max(cfg.N1, cfg.NL)
    PA = [None, 12, 2, 11]
    def dmf(i, m):
        tt, ct = m // 2, m % 2
        acc = vr(ACC+16*m, 16)
        a(f"v_mfma_f32_32x32x16_bf16 {acc}, {vr(wreg(i)+4*ct,4)}, {vr(hreg[i]+4*tt,4)}, {'0' if (i == 0 and m) else acc}")
    nr = 22
    def look(q):
        if q == cfg.EQ: a.vm(f"buffer_load_dword v0, {vr(vP)}, s[24:27], s68 offen {SC1}", "p3")
        if q == cfg.CP - 2:
            a.wait(vm="p3")
            a("v_cmp_gt_u32 s[56:57], 1, v0")
            a(f"v_lshrrev_b32 v0, 4, {vr(vL)}")
        if q == cfg.CP - 1:
            a("s_nop 0")
            a(f"s_and_b32 s56, s56, {GM[0]:#x}")
            a(f"s_cselect_b32 s14, 0, {WS_BYTES}")
    GK = [[0, 1, 2, 3, 8, 9, 10, 11], [4, 5, 6, 7, 12, 13, 14, 15]]; GM = [0x33, 0xcc]
    if cfg.GS: GK.reverse(); GM.reverse()
    for i in range(22):
        if i == cfg.N1:
            if cfg.CAW:
                while next_op(cfg.V3 if cfg.N1 >= 15 else cfg.V2): pass
            st(name="hN1")
            if cfg.CAW: lds_wait(a, "L_ca", vr(vC), "v5", 1, sleep=1, off=CW)
        if i == NL:
            while next_op(cfg.V3): pass
            assert nh[0] == 56 and not wq and not woq
            post = [f"v_add_u32 v1, s77, {vr(vL)}"]
            for j in range(1, 4): post += [f"s_xor_b32 s51, s44, {j}", f"s_mul_i32 s51, s51, {RNG}", f"v_add_u32 v{PA[j]}, s51, {vr(vL)}"]
            post += ["s_lshl_b32 s51, s41, 2", f"v_add_u32 v15, s51, {vr(vC)}", "s_mov_b32 s12, s22", "s_mov_b32 s13, s23"]
        if i + 1 < 6:
            if len(a.lgq) >= 11: a.wait(lg="all")
            a.wait(vm=("w", i+1)); reads(i+1)
        while 6 <= i and rd[0] <= min(21, i + 1):
            assert not wq or wq[0][0] > rd[0]
            rd1()
        assert nh[0] >= 2*i + 2
        a.wait(vm=("h", i), lg=("r", i))
        if i == 5: lds_add(a, vr(vC), vr(vOne), HX, "c")
        st(name=f"_s{i}")
        for m in range(4):
            dmf(i, m)
            if m == 0 and i >= 1:
                hpool.append(hreg[i-1])
                if 6 <= i-1: hpool.append(wreg(i-1))
                if i == 6: hpool += [W, W + 8]
            if i < cfg.N1:
                for z in range(cfg.OPG): next_op(cfg.V2 if i < cfg.NV else cfg.V2B)
                if i == cfg.NP and m == 0: a("s_setprio 1")
                if cfg.PAD: a(f"s_nop {cfg.PAD-1}")
            elif i < NL:
                if i >= cfg.N1 + cfg.HD: next_op(cfg.V3)
            else:
                for z in range(2):
                    if post: a(post.pop(0))
            if i >= 19 and m in (0, 2):
                wlate[nr] = hpool.pop(0)
                a.wait(vm=("w", nr));
                if len(a.lgq) > 8: a.wait(lg=("r", nr-2))
                reads(nr); nr += 1
            if i == 21 and m == 1:
                a.wait(vm="wo")
                lds_add(a, vr(vC), vr(vOne), WOL, "c")
            look(4*i + m - 88)
    assert nr == 28 and not post
    oreg = {}
    def oload(k, srd_):
        if k % 4 == 0: a(f"s_add_u32 s4, s69, {1024*k}")
        if k not in oreg:
            b = hpool.pop(0); oreg[k] = b; oreg[k+1] = b + 4
        a.vm(f"buffer_load_dwordx4 {vr(oreg[k],4)}, {vr(vL)}, {srd_}, s4 offen offset:{1024*(k%4)} {SC1}", ("o", k))
    def poll2(): a.vm(f"buffer_load_dword v{P2R}, {vr(vP)}, s[24:27], s68 offen {SC1}", "p2")
    morder = [(k, ct) for g in range(2) for ct in (1, 0) for k in GK[g]]
    def wf(k): return WFB[(k % 10)//2] + 4*(k % 2)
    def wrd(k):
        stp, ct = morder[k]
        row = 28*(stp//2) + 16*(stp % 2)
        for r_ in range(2):
            ad = (8 if (stp == 15 and r_) else 13) + ct
            a.lg(f"ds_read_b64_tr_b16 {vr(wf(k)+2*r_,2)}, v{ad} offset:{(row+8*r_)*128}", ("w", k))
    a.wait(lg="all")
    for q, (i, m) in enumerate([(i, m) for i in range(22, 28) for m in (2, 3)]):
        a.wait(vm=("h", i))
        dmf(i, m)
        if q == 0: hpool += [hreg[21], wreg(21)]
        look(q)
        if cfg.CP <= q < cfg.CP + 8: oload(GK[0][q - cfg.CP], "s[12:15]")
        if q == 8:
            a(f"ds_read_b32 v5, {vr(vC)} offset:{WOL}")
            a("v_and_b32 v8, 0xfffffdff, v13"); a("v_and_b32 v9, 0xfffffdff, v14")
        if q == 10: a("s_waitcnt lgkmcnt(0)"); a("v_cmp_gt_u32 vcc, 4, v5")
        if q == 11: a("s_cbranch_vccnz L_wol"); a("L_wol_x:"); ool.append(("L_wol", WOL))
    for k in GK[0][::2]:
        if k not in oreg:
            b = hpool.pop(0); oreg[k] = b; oreg[k+1] = b + 4
    WFB = [hpool.pop(0) for k in range(5)]
    P2R = hpool.pop(0)
    st(name="_X")
    wp = 0
    for q, (i, m) in enumerate([(i, m) for i in range(22, 28) for m in (0, 1)]):
        dmf(i, m)
        if m == 0 and i > 22: hpool += [hreg[i-1], wreg(i-1)]
        if q < 2:
            for z in range(2): wrd(wp); wp += 1
        look(q + 12)
        if cfg.CP <= q + 12 < cfg.CP + 8: oload(GK[0][q + 12 - cfg.CP], "s[12:15]")
        if q == cfg.P2:
            assert q + 12 >= cfg.CP + 7
            poll2()
        if 2 <= q < 10: a.lg(f"ds_write_b128 v1, {vr(ACC+32+4*(q-2),4)} offset:{RB+4096+(q-2)*1024}", "d")
        if q == 6: a.wait(lg=("w", 3))
        if q == 10: lds_add(a, vr(vC), vr(vOne), R1, "d")
        if q == 11:
            for z in range(2): wrd(wp); wp += 1
    st(name="hdown")
    def fixup(g):
        a("s_cmp_lg_u32 s14, 0")
        a(f"s_cbranch_scc1 L_have{g}")
        keep = list(a.vmq)
        a("s_mov_b32 s62, 0")
        a(f"L_p3{g}:")
        a("s_add_u32 s62, s62, 1")
        a("s_waitcnt vmcnt(0)")
        a(f"v_cmp_gt_u32 s[56:57], 1, v{P2R}")
        a(f"s_cmp_gt_u32 s62, {cfg.SPIN}")
        a(f"s_cbranch_scc1 L_p3{g}_x")
        a("s_nop 1")
        a(f"s_and_b32 s56, s56, {GM[g]:#x}")
        a(f"s_cbranch_scc0 L_p3{g}_x")
        a(f"s_sleep {cfg.PS3}")
        a(f"buffer_load_dword v{P2R}, {vr(vP)}, s[24:27], s68 offen {SC1}")
        a(f"s_branch L_p3{g}")
        a(f"L_p3{g}_x:")
        a.vmq = []
        for k in GK[g]: oload(k, "s[24:27]")
        poll2()
        assert a.vmq == keep, (a.vmq, keep)
        a(f"L_have{g}:")
    fixup(0)
    st(name="hpoll3")
    ot = ["s_xor_b32 s51, s44, 2", f"s_mul_i32 s51, s51, {RNG}", "s_add_u32 s51, s51, 4096", "v_and_b32 v2, 31, v0", "v_mul_u32_u24 v2, 80, v2",
          "v_lshrrev_b32 v5, 5, v0", "v_lshl_add_u32 v2, v5, 3, v2", "v_add_u32 v2, s51, v2", "v_lshrrev_b32 v5, 2, v0",
          "v_mul_u32_u24 v11, 80, v5", "v_and_b32 v6, 3, v0", "v_lshl_add_u32 v11, v6, 4, v11", "v_add_u32 v11, s51, v11",
          "v_add_u32 v5, s45, v5", "v_mul_u32_u24 v5, 896, v5", "v_lshl_add_u32 v5, v6, 4, v5", "v_add_u32 v6, s46, v5", f"s_mov_b32 s51, {16*896}"]
    assert cfg.OT
    nb_ = 0
    for k in range(32):
        stp, ct = morder[k]
        if k == 16:
            assert nb_ == 8
            fixup(1)
            st(name="hpoll4")
        a.wait(vm=("o", stp), lg=(("w", min(31, k+1)) if k % 2 == 0 else None))
        acc = vr(ACC+16*ct, 16)
        a(f"v_mfma_f32_32x32x16_bf16 {acc}, {vr(wf(k),4)}, {vr(oreg[stp],4)}, {acc}")
        if k == 0: hpool += [hreg[27], wreg(27)]
        if wp < 32 and wp <= k + 6: wrd(wp); wp += 1
        if k == cfg.KB:
            a.wait(vm="p2")
            a(f"v_cmp_gt_u32 s[56:57], 1, v{P2R}")
        if k == cfg.KB + 1:
            a(f"s_and_b32 s56, s56, {GM[1]:#x}")
            a(f"s_cselect_b32 s14, 0, {WS_BYTES}")
        if k > cfg.KB:
            for z in range(-(-(8 - nb_) // max(1, 16 - k)) if k < 16 else 0):
                oload(GK[1][nb_], "s[12:15]"); nb_ += 1
                if nb_ == 8: poll2()
        if k == 3: a.lg(f"ds_read_b32 v5, {vr(vC)} offset:{R1}", "g")
        if k == 5: a.wait(lg="g"); a("v_cmp_gt_u32 vcc, 4, v5")
        if k == 6: a("s_cbranch_vccnz L_r1"); a("L_r1_x:"); ool.append(("L_r1", R1))
        if 6 <= k < 10:
            for q in range(2*(k-6), 2*(k-6)+2):
                a.lg(f"ds_read_b128 {vr(ACC+32+4*q,4)}, v{PA[2+q//4]} offset:{RB+4096+q*1024}", "p")
        if k == 12: a.wait(lg="p")
        if 12 <= k < 16:
            for r in range(4*(k-12), 4*(k-12)+4): a(f"v_add_f32 v{ACC+32+r}, v{ACC+32+r}, v{ACC+48+r}")
        if 19 <= k < 23:
            for r in range(4*(k-19), 4*(k-19)+4): a(f"v_add_f32 v{ACC+r}, v{ACC+r}, v{ACC+32+r}")
        if k in (10, 11, 16, 17, 18):
            for z in range(4):
                if ot: a(ot.pop(0))
        if k == 25:
            a("s_nop 7")
            for q in range(4): a.lg(f"ds_write_b128 v1, {vr(ACC+16+4*q,4)} offset:{RB+q*1024}", "e")
            lds_add(a, "v15", vr(vOne), RX, "e")
        if cfg.XP:
            if k == 28: a.lg(f"ds_read_b32 v5, v15 offset:{RX}", "g")
            if k == 30: a.wait(lg="g"); a("v_cmp_gt_u32 vcc, 2, v5")
    assert not ot
    st(name="homf")
    PT = ACC + 32; OF = ACC + 48
    if cfg.XP: a("s_cbranch_vccz L_rx_x")
    lds_wait(a, "L_rx", "v15", "v5", 2, off=RX)
    a("L_rx_x:")
    for q in range(4): a.lg(f"ds_read_b128 {vr(PT+4*q,4)}, v{PA[1]} offset:{RB+q*1024}", ("e", q))
    if cfg.XP: a("s_nop 5")
    for hq in range(2):
        a.wait(lg=("e", 2*hq+1))
        for r in range(8*hq, 8*hq+8): a(f"v_add_f32 v{ACC+r}, v{ACC+r}, v{PT+r}")
        for r in range(4*hq, 4*hq+4): a(f"v_cvt_pk_bf16_f32 v{OF+r}, v{ACC+2*r}, v{ACC+2*r+1}")
        b = 4*hq
        if cfg.OT:
            for z in range(2): a(f"ds_write_b64 v2, {vr(OF+b+2*z,2)} offset:{RB+32*hq+16*z}")
            continue
        a("s_nop 1")
        a(f"v_permlane32_swap_b32 v{OF+b}, v{OF+b+2}")
        a(f"v_permlane32_swap_b32 v{OF+b+1}, v{OF+b+3}")
        a(f"buffer_store_dwordx4 {vr(OF+b,4)}, v6, s[8:11], 0 offen offset:{32*hq}")
    if cfg.OT:
        for z in range(2): a.lg(f"ds_read_b128 {vr(PT+4*z,4)}, v11 offset:{RB+16*80*z}", ("t", z))
        for z in range(2):
            a.wait(lg=("t", z))
            a(f"buffer_store_dwordx4 {vr(PT+4*z,4)}, v6, s[8:11], {'s51' if z else '0'} offen {cfg.OFL}")
    a("L_h_end:")
    st.flush(63, 8)
    a("s_endpgm")
    a.L += vcode
    for lab, off in ool:
        lds_wait(a, lab, vr(vC), vr(vG), 4, off=off)
        a(f"s_branch {lab}_x")
    a("L_mix:")
    b = AQ + 32; m = b + 8
    for s_ in (f"v_mov_b32 v{m}, 0x3f80", f"v_cndmask_b32 v{b+6}, v{b+6}, v{m}, s[42:43]", "s_lshl_b32 s51, s44, 11", f"s_add_u32 s51, s51, {VS0}",
               f"v_lshrrev_b32 v{m+5}, 5, v0", f"v_and_b32 v{m}, 31, v0", f"v_lshlrev_b32 v{m}, 6, v{m}", f"v_lshl_add_u32 v{m}, v{m+5}, 3, v{m}",
               f"v_bfe_u32 v{m+1}, v0, 1, 2", f"v_lshl_add_u32 v{m}, v{m+1}, 4, v{m}", f"v_add_u32 v{m}, s51, v{m}",
               f"v_xor_b32 v{m+1}, 16, v{m}", f"v_xor_b32 v{m+2}, 32, v{m}", f"v_xor_b32 v{m+3}, 48, v{m}",
               f"v_bfe_u32 v{m+4}, v0, 2, 2", f"v_lshl_add_u32 v{m+4}, v{m+5}, 2, v{m+4}", f"v_lshrrev_b32 v{m+5}, 1, v{m+4}", f"v_lshlrev_b32 v{m+5}, 4, v{m+5}",
               f"v_and_b32 v{m+6}, 3, v0", f"v_lshlrev_b32 v{m+6}, 3, v{m+6}", f"v_bfe_u32 v{m+7}, v0, 4, 1", f"v_lshl_add_u32 v{m+6}, v{m+7}, 5, v{m+6}",
               f"v_xor_b32 v{m+5}, v{m+5}, v{m+6}", f"v_lshlrev_b32 v{m+4}, 6, v{m+4}", f"v_add3_u32 v{m+4}, v{m+4}, v{m+5}, s51"): a(s_)
    a("s_mov_b64 s[56:57], vcc")
    lds_wait(a, "L_mixw", vr(vC), f"v{m+5}", 4, off=CE)
    a("s_mov_b64 vcc, s[56:57]")
    for i in range(4): a(f"ds_write_b64 v{m+i}, {vr(b+2*i,2)}")
    for i in range(4): a(f"ds_read_b64_tr_b16 {vr(b+2*i,2)}, v{m+4} offset:{512*i}")
    a("s_waitcnt lgkmcnt(0)")
    a("s_branch L_mix_x")

def build():
    a = Asm()
    st = Stamps(a, 0, 22)
    common(a, st)
    n0 = st.n
    gen_h(a, st)
    hn = st.names[1:]
    st.n = n0; st.names = st.names[:n0]
    gen_c(a, st)
    if asmlib.STAMP: a.raw(f"; STAMPS C {st.names[1:]}\n; STAMPS H {hn}")
    s = f"; @launch grid=(256,1,1) block=(512,1,1) lds={LDS}\n"
    s += '.amdgcn_target "amdgcn-amd-amdhsa--gfx950"\n.text\n' + kernel_head(NAME) + a.text()
    s += '.section .rodata,"a"\n' + kernel_desc(NAME, 256, 256, 102)
    if cfg.ALIGN:
        import align
        s, f_, m_ = align.align(s, nop=cfg.ALIGN if cfg.ALIGN > 1 else False)
    return s
def set_args(args):
    for x in args:
        if x.startswith("sel="): asmlib.STAMP_SEL = x[4:].split(",")
        elif "=" in x:
            k, v = x.split("="); setattr(cfg, k, eval(v))
if __name__ == "__main__":
    asmlib.STAMP = "--stamp" in sys.argv
    asmlib.STAMP_REAL = "--real" in sys.argv
    set_args(sys.argv[2:])
    open(sys.argv[1], "w").write(build() + ("; ARGS " + " ".join(x for x in sys.argv[2:] if "=" in x and not x.startswith("sel=")) + "\n" if asmlib.STAMP else ""))
```
